```python
import torch

def _softmax(x, axis=-1):
    return torch.softmax(x, dim=axis)
def _gelu(x):
    return torch.nn.functional.gelu(x, approximate="tanh")
def _silu(x):
    return torch.nn.functional.silu(x)
def _sigmoid(x):
    return torch.sigmoid(x)
def _layernorm(x, axis=-1, eps=1e-5):
    m = x.mean(dim=axis, keepdim=True)
    v = x.var(dim=axis, keepdim=True, unbiased=False)
    return (x - m) / torch.sqrt(v + eps)
def _scatter_add(tgt, idx, src, axis=0):
    return tgt.clone().index_add_(axis, idx, src)
def _segment_sum(src, seg, n):
    out = torch.zeros((n,) + src.shape[1:], dtype=src.dtype)
    return out.index_add_(0, seg, src)
def _pad(x, pw):
    flat = tuple(v for pair in reversed(pw) for v in pair)
    return torch.nn.functional.pad(x, flat)

kernel_name = 'parallel_sum__linear_kernel_hedgehog__dense_activation_squared_relu__prompt'

def setup_inputs():

    _w = (lambda a: (lambda t: t.to(torch.bfloat16) if t.is_floating_point() else t)(torch.as_tensor(a)))
    def _A_setup():
        B, S, D, H = 1, 2048, 640, 32
        Dh = D // H
        return {
            "x": _w((lambda *s: torch.randn(*s, dtype=torch.bfloat16) * 0.05)(B, S, D)),
            "wqkv": _w((lambda *s: torch.randn(*s, dtype=torch.bfloat16) * 0.8)(D, 3 * D)),
            "w_phi": _w((lambda *s: torch.randn(*s, dtype=torch.bfloat16) * 0.8)(H, Dh, Dh) * (Dh ** -0.5)),
            "wo": _w((lambda *s: torch.randn(*s, dtype=torch.bfloat16) * 0.2)(D, D)),
        }
    _A_in = _A_setup()

    def _B_setup():
        B, S, D, F = 1, 2048, 640, 1728
        return {
            "x": _w((lambda *s: torch.randn(*s, dtype=torch.bfloat16) * 0.05)(B, S, D)),
            "w1": _w((lambda *s: torch.randn(*s, dtype=torch.bfloat16) * 0.05)(D, F)),
            "b1": _w((lambda *s: torch.randn(*s, dtype=torch.bfloat16) * 0.8)(F)),
            "w2": _w((lambda *s: torch.randn(*s, dtype=torch.bfloat16) * 0.05)(F, D)),
            "b2": _w((lambda *s: torch.randn(*s, dtype=torch.bfloat16) * 3.2)(D)),
        }
    _B_in = _B_setup()

    return {
        "A_x": _A_in["x"],
        "A_wqkv": _A_in["wqkv"],
        "A_w_phi": _A_in["w_phi"],
        "A_wo": _A_in["wo"],
        "B_x": _B_in["x"],
        "B_w1": _B_in["w1"],
        "B_b1": _B_in["b1"],
        "B_w2": _B_in["w2"],
        "B_b2": _B_in["b2"],
    }

def reference(A_x, A_wqkv, A_w_phi, A_wo, B_x, B_w1, B_b1, B_w2, B_b2):
    def _A_ref(x, wqkv, w_phi, wo):
        B, S, D = x.shape
        H = 32; Dh = D // H
        qkv = (lambda x, *d: x.permute(*d))((x @ wqkv).reshape(B, S, 3, H, Dh), 2, 0, 3, 1, 4)
        q, k, v = qkv[0], qkv[1], qkv[2]
        pq = torch.einsum("bhsd,hdf->bhsf", q, w_phi)
        pk = torch.einsum("bhsd,hdf->bhsf", k, w_phi)
        phi_q = torch.concatenate([_softmax(pq, axis=-1), _softmax(-pq, axis=-1)], axis=-1)
        phi_k = torch.concatenate([_softmax(pk, axis=-1), _softmax(-pk, axis=-1)], axis=-1)
        kv = torch.einsum("bhsf,bhsd->bhfd", phi_k, v)
        z  = torch.einsum("bhsf->bhf", phi_k)
        num = torch.einsum("bhqf,bhfd->bhqd", phi_q, kv)
        den = torch.einsum("bhqf,bhf->bhq", phi_q, z)[..., None] + 1e-6
        o = num / den
        return (lambda x, *d: x.permute(*d))(o, 0, 2, 1, 3).reshape(B, S, D) @ wo

    def _B_ref(x, w1, b1, w2, b2):
        h = torch.einsum("bsd,df->bsf", x, w1) + b1
        zero = torch.zeros_like(h)
        r = torch.where(h > zero, h, zero)
        h = r * r
        out = torch.einsum("bsf,fd->bsd", h, w2) + b2
        return out

    x = A_x
    xn = _layernorm(x, axis=-1)
    return x + _A_ref(xn, A_wqkv, A_w_phi, A_wo) + _B_ref(xn, B_w1, B_b1, B_w2, B_b2)
```

```python
class Asm:
    def __init__(self):
        self.lines = []
        self.nlabel = 0
    def __call__(self, s):
        for l in s.strip("\n").split("\n"):
            self.lines.append("    " + l.strip())
    def label(self, name):
        self.lines.append(name + ":")
    def newlabel(self, p="L"):
        self.nlabel += 1
        return f"{p}_{self.nlabel}"
    def comment(self, s):
        self.lines.append("    ; " + s)
    def text(self):
        return "\n".join(self.lines) + "\n"
    def srd(self, d, base_lo, base_hi, nbytes):
        self(f"s_mov_b32 s{d}, s{base_lo}")
        self(f"s_and_b32 s{d+1}, s{base_hi}, 0xffff")
        self(f"s_mov_b32 s{d+2}, {nbytes}")
        self(f"s_mov_b32 s{d+3}, 0x00020000")
    def srd_off(self, d, base_lo, base_hi, off, nbytes):
        self(f"s_add_u32 s{d}, s{base_lo}, {off}")
        self(f"s_addc_u32 s{d+1}, s{base_hi}, 0")
        self(f"s_and_b32 s{d+1}, s{d+1}, 0xffff")
        self(f"s_mov_b32 s{d+2}, {nbytes}")
        self(f"s_mov_b32 s{d+3}, 0x00020000")

def vr(b, n=1):
    return f"v{b}" if n == 1 else f"v[{b}:{b+n-1}]"
def ar(b, n=1):
    return f"a{b}" if n == 1 else f"a[{b}:{b+n-1}]"
def sr(b, n=1):
    return f"s{b}" if n == 1 else f"s[{b}:{b+n-1}]"

def kernel_text(name, body):
    return f""".globl {name}
.p2align 8
.type {name},@function
{name}:
{body}
"""
def kd_text(name, vgpr, sgpr, accum):
    return f""".p2align 6
.amdhsa_kernel {name}
  .amdhsa_next_free_vgpr {vgpr}
  .amdhsa_next_free_sgpr {sgpr}
  .amdhsa_accum_offset {accum}
  .amdhsa_group_segment_fixed_size 0
  .amdhsa_kernarg_size 96
  .amdhsa_user_sgpr_count 2
  .amdhsa_user_sgpr_kernarg_segment_ptr 1
  .amdhsa_system_sgpr_workgroup_id_x 1
.end_amdhsa_kernel
"""
HEADER_COMMENT = """; Kernarg layout for this problem (96 bytes, ptrs only, base s[0:1]):
"""
def file_text(launches, kernels):
    s = HEADER_COMMENT
    for (k, g, b, lds) in launches:
        s += f"; @launch kernel={k} grid=({g},1,1) block=({b},1,1) lds={lds}\n"
    s += '.amdgcn_target "amdgcn-amd-amdhsa--gfx950"\n.text\n'
    for name, body, vg, sg, ac in kernels:
        s += kernel_text(name, body)
    s += '.section .rodata,"a"\n'
    for name, body, vg, sg, ac in kernels:
        s += kd_text(name, vg, sg, ac)
    return s
```

```python
from asmlib import *
LOG2E = 0x3fb8aa3b
def softmax20(a, p_, V_C, EP, EM, PH, T):
    MX, MNn, SP, SM = T, T + 1, T + 2, T + 3
    a(f"v_max3_f32 v{MX}, v{p_[0]}, v{p_[1]}, v{p_[2]}")
    a(f"v_min3_f32 v{MNn}, v{p_[0]}, v{p_[1]}, v{p_[2]}")
    for i in range(3, 19, 2):
        a(f"v_max3_f32 v{MX}, v{MX}, v{p_[i]}, v{p_[i+1]}")
        a(f"v_min3_f32 v{MNn}, v{MNn}, v{p_[i]}, v{p_[i+1]}")
    a(f"v_max_f32 v{MX}, v{MX}, v{p_[19]}")
    a(f"v_min_f32 v{MNn}, v{MNn}, v{p_[19]}")
    a(f"v_mul_f32 v{MX}, v{MX}, v{V_C}")
    a(f"v_mul_f32 v{MNn}, v{MNn}, v{V_C}")
    for i in range(20):
        a(f"v_fma_f32 v{EP+i}, v{p_[i]}, v{V_C}, -v{MX}")
        a(f"v_fma_f32 v{EM+i}, -v{p_[i]}, v{V_C}, v{MNn}")
    for i in range(20):
        a(f"v_exp_f32 v{EP+i}, v{EP+i}")
        a(f"v_exp_f32 v{EM+i}, v{EM+i}")
    a(f"v_add_f32 v{SP}, v{EP}, v{EP+1}")
    a(f"v_add_f32 v{SM}, v{EM}, v{EM+1}")
    for i in range(2, 20):
        a(f"v_add_f32 v{SP}, v{SP}, v{EP+i}")
        a(f"v_add_f32 v{SM}, v{SM}, v{EM+i}")
    a(f"v_rcp_f32 v{SP}, v{SP}")
    a(f"v_rcp_f32 v{SM}, v{SM}")
    a("s_nop 0")
    for p in range(10):
        a(f"v_mul_f32 v{EP+2*p}, v{EP+2*p}, v{SP}")
        a(f"v_mul_f32 v{EP+2*p+1}, v{EP+2*p+1}, v{SP}")
        a(f"v_cvt_pk_bf16_f32 v{PH+p}, v{EP+2*p}, v{EP+2*p+1}")
    for p in range(10):
        a(f"v_mul_f32 v{EM+2*p}, v{EM+2*p}, v{SM}")
        a(f"v_mul_f32 v{EM+2*p+1}, v{EM+2*p+1}, v{SM}")
        a(f"v_cvt_pk_bf16_f32 v{PH+10+p}, v{EM+2*p}, v{EM+2*p+1}")
```

```python
from asmlib import *
from layout import *
from k1tables import SLOT_A, TILES, LIGHTS, tile_quad, where

CS = 0
WPHI = 1024
ZERO = WPHI + 3200
CSP = 6144
XOFF = 10240; XSTG = 16384
WOFF = XOFF + 3 * XSTG; WSTG = 32768
LDS_K1 = WOFF + 3 * WSTG
PHI = XOFF
VP = PHI + 40960
PREP = VP + 24576
LOG2E = 0x3fb8aa3b
ONES2 = 0x3f803f80

def gen_k1(timing=False, dis='', pfx="K1", SC=' sc0 sc1', OSC=''):
    a = Asm()
    S_X, S_W0 = 16, 20
    S_WS = 36
    S_T = 40
    S_WV, S_MT, S_GI, S_HP, S_TQ = 48, 49, 50, 51, 52
    S_XRD, S_WRD = 53, 54
    S_XSO = 55
    S_WSO = 56
    S_WSTEP = 60
    S_I = 64; S_M0X, S_M0W = 65, 66; S_SIG = 67
    S_PTR = 68
    S_M2 = 80
    S_ROLE = 86; S_CSK = 87
    S_F1W = 91
    S_CSPUB, S_C2W, S_C3W = 88, 89, 90
    S_T0 = 94
    V_L = 1; V_T31 = 2; V_HF = 3
    V_XV = 4; V_WV = 5
    V_XA = 9
    V_WB = 11; V_WC = 15
    V_STAMP = 19
    V_TMP = 20
    V_XF = 30; V_WF = 54
    V_ONES = 102
    V_ACC = 104
    V_E = 168
    V_M = 248
    V_MN0, V_RS0, V_MN1, V_RS1 = 248, 249, 250, 251
    P = pfx

    stamp_n = [0]
    def stamp(name):
        if not timing: return
        i = stamp_n[0]; stamp_n[0] += 1
        a(f"s_memtime s[{S_T0+2}:{S_T0+3}]")
        a("s_waitcnt lgkmcnt(0)")
        a(f"s_sub_u32 s{S_T0+2}, s{S_T0+2}, s{S_T0}")
        a(f"v_writelane_b32 v{V_STAMP}, s{S_T0+2}, {i}")
    def pst(lane):
        if timing and 'P' in dis:
            a(f"s_memtime s[{S_T0+2}:{S_T0+3}]")
            a("s_waitcnt lgkmcnt(0)")
            a(f"s_sub_u32 s{S_T0+2}, s{S_T0+2}, s{S_T0}")
            a(f"v_writelane_b32 v{V_STAMP}, s{S_T0+2}, {lane}")
    def xf(buf, tt): return V_XF + buf * 8 + tt * 4
    def wf(buf, T): return V_WF + buf * 16 + T * 4
    def acc(i): return V_ACC + 16 * i
    def flag_add(kind):
        if kind == 'x': a(f"s_lshl_b32 s{S_T+4}, s{S_MT}, 2")
        elif kind == 'c':
            a(f"s_lshl_b32 s{S_T+4}, s{S_ROLE}, 2"); a(f"s_add_u32 s{S_T+4}, s{S_T+4}, 64")
        else: a(f"s_mov_b32 s{S_T+4}, 128")
        a(f"v_mov_b32 v{V_TMP+8}, s{S_T+4}")
        a(f"v_mov_b32 v{V_TMP+9}, 1")
        a(f"s_mov_b64 s[{S_T+6}:{S_T+7}], exec")
        a("s_mov_b64 exec, 1")
        a(f"global_atomic_add v{V_TMP+8}, v{V_TMP+9}, s[{S_PTR+2}:{S_PTR+3}] sc1")
        a(f"s_mov_b64 exec, s[{S_T+6}:{S_T+7}]")

    def advance_slot():
        a(f"s_add_u32 s{S_XRD}, s{S_XRD}, {XSTG}")
        a(f"s_add_u32 s{S_WRD}, s{S_WRD}, {WSTG}")
        a(f"s_cmp_eq_u32 s{S_XRD}, {XOFF+3*XSTG}")
        a(f"s_cselect_b32 s{S_XRD}, {XOFF}, s{S_XRD}")
        a(f"s_cselect_b32 s{S_WRD}, 0, s{S_WRD}")
    def dma_stage(sx, sw):
        a(f"s_add_u32 m0, s{S_M0X}, s{sx}")
        a(f"s_add_u32 s{S_T}, s{S_XSO}, 81920")
        a(f"buffer_load_dwordx4 v{V_XV}, s[{S_X}:{S_X+3}], s{S_XSO} offen lds")
        a(f"s_add_u32 m0, m0, 8192")
        a(f"s_add_u32 s{S_T+1}, s{S_M0W}, s{sw}")
        a(f"buffer_load_dwordx4 v{V_XV}, s[{S_X}:{S_X+3}], s{S_T} offen lds")
        for p in range(4):
            a(f"s_add_u32 m0, s{S_T+1}, {p*8192}")
            a("s_nop 0")
            a(f"buffer_load_dwordx4 v{V_WV+p}, s[{S_W0+4*p}:{S_W0+4*p+3}], s{S_WSO+p} offen lds")
        next_sigma()
    def next_sigma(xonly=False, wonly=False):
        if not wonly: a(f"s_add_u32 s{S_XSO}, s{S_XSO}, 128")
        if not xonly:
            for p in range(4): a(f"s_add_u32 s{S_WSO+p}, s{S_WSO+p}, s{S_WSTEP+p}")
        if xonly:
            a(f"s_cmp_eq_u32 s{S_XSO}, 1280"); a(f"s_cselect_b32 s{S_XSO}, 0, s{S_XSO}")
            return
        a(f"s_add_u32 s{S_SIG}, s{S_SIG}, 1")
        a(f"s_cmp_eq_u32 s{S_SIG}, 10")
        a(f"s_cselect_b32 s{S_SIG}, 0, s{S_SIG}")
        if not wonly: a(f"s_cselect_b32 s{S_XSO}, 0, s{S_XSO}")
        for p in range(4): a(f"s_cselect_b32 s{S_WSO+p}, 0, s{S_WSO+p}")
    def prologue_x():
        for st in range(3):
            a(f"s_add_u32 m0, s{S_M0X}, {XOFF + st*XSTG}")
            a(f"s_add_u32 s{S_T}, s{S_XSO}, 81920")
            a(f"buffer_load_dwordx4 v{V_XV}, s[{S_X}:{S_X+3}], s{S_XSO} offen lds")
            a(f"s_add_u32 m0, m0, 8192")
            a("s_nop 0")
            a(f"buffer_load_dwordx4 v{V_XV}, s[{S_X}:{S_X+3}], s{S_T} offen lds")
            next_sigma(xonly=True)
    def prologue_w():
        for p in range(4): a(f"s_mul_i32 s{S_WSO+p}, s{S_SIG}, s{S_WSTEP+p}")
        for st in range(3):
            for p in range(4):
                a(f"s_add_u32 m0, s{S_M0W}, {st*WSTG + p*8192}")
                a("s_nop 0")
                a(f"buffer_load_dwordx4 v{V_WV+p}, s[{S_W0+4*p}:{S_W0+4*p+3}], s{S_WSO+p} offen lds")
            next_sigma(wonly=True)

    def xrow_stats():
        R = V_E
        S1, S2 = V_TMP, V_TMP + 1
        a(f"v_mov_b32 v{V_TMP+2}, {hex(ONES2)}")
        a(f"v_mov_b32 v{S1}, 0"); a(f"v_mov_b32 v{S2}, 0")
        for i in range(8):
            a(f"v_dot2_f32_bf16 v{S1}, v{R+i}, v{V_TMP+2}, v{S1}")
            a(f"v_dot2_f32_bf16 v{S2}, v{R+i}, v{R+i}, v{S2}")
        for dpp in ("row_shr:1", "row_shr:2", "row_shr:4", "row_shr:8", "row_bcast:15 row_mask:0xa", "row_bcast:31 row_mask:0xc"):
            a("s_nop 1")
            a(f"v_add_f32_dpp v{S1}, v{S1}, v{S1} {dpp}" + (" row_mask:0xf" if "mask" not in dpp else "") + " bank_mask:0xf")
            a(f"v_add_f32_dpp v{S2}, v{S2}, v{S2} {dpp}" + (" row_mask:0xf" if "mask" not in dpp else "") + " bank_mask:0xf")
        a(f"v_mul_f32 v{V_TMP+4}, 0xbacccccd, v{S1}")
        a(f"v_mul_f32 v{S2}, 0x3acccccd, v{S2}")
        a(f"v_fma_f32 v{S2}, -v{V_TMP+4}, v{V_TMP+4}, v{S2}")
        a(f"v_max_f32 v{S2}, 0, v{S2}")
        a(f"v_add_f32 v{S2}, 0x3727c5ac, v{S2}")
        a(f"v_rsq_f32 v{V_TMP+5}, v{S2}")
        a(f"s_lshl_b32 s{S_T}, s{S_MT}, 7")
        a(f"s_lshl_b32 s{S_T+1}, s{S_ROLE}, 3")
        a(f"s_add_u32 s{S_T}, s{S_T}, s{S_T+1}")
        a(f"s_add_u32 s{S_T}, s{S_T}, s{S_WV}")
        a(f"s_lshl_b32 s{S_T}, s{S_T}, 3")
        a(f"s_add_u32 s{S_T}, s{S_T}, {STATG_OFF}")
        a(f"v_mov_b32 v{V_TMP+6}, s{S_T}")
        a(f"s_mov_b64 s[{S_T+6}:{S_T+7}], exec")
        a("s_mov_b32 exec_lo, 0"); a("s_mov_b32 exec_hi, 0x80000000")
        if 'X' in dis: a(f"global_atomic_swap_x2 v{V_TMP+6}, {vr(V_TMP+4,2)}, s[{S_PTR}:{S_PTR+1}] sc1")
        else: a(f"global_store_dwordx2 v{V_TMP+6}, {vr(V_TMP+4,2)}, s[{S_PTR}:{S_PTR+1}]{SC}")
        a(f"s_mov_b64 exec, s[{S_T+6}:{S_T+7}]")

    def dma_pieces(sx, sw):
        G = []
        G.append([f"s_add_u32 m0, s{S_M0X}, s{sx}", f"s_add_u32 s{S_T}, s{S_XSO}, 81920",
                  f"buffer_load_dwordx4 v{V_XV}, s[{S_X}:{S_X+3}], s{S_XSO} offen lds"])
        G.append([f"s_add_u32 m0, s{S_M0X}, s{sx}", f"s_add_u32 m0, m0, 8192", f"s_add_u32 s{S_T}, s{S_XSO}, 81920",
                  f"buffer_load_dwordx4 v{V_XV}, s[{S_X}:{S_X+3}], s{S_T} offen lds"])
        for p in range(4):
            G.append([f"s_add_u32 s{S_T+1}, s{S_M0W}, s{sw}", f"s_add_u32 m0, s{S_T+1}, {p*8192}", "s_nop 0",
                      f"buffer_load_dwordx4 v{V_WV+p}, s[{S_W0+4*p}:{S_W0+4*p+3}], s{S_WSO+p} offen lds"])
        return G
    def run_main(typ, ntile, lab):
        nTT = 1 if typ == 'A' else 2
        ACS = V_E
        ool = []
        def read_list(ks, buf):
            L = []
            for tt in range(nTT):
                L.append(f"v_xad_u32 v{V_TMP+tt}, v{V_XA+tt}, {ks*16}, s{S_XRD}")
                L.append(f"ds_read_b128 {vr(xf(buf,tt),4)}, v{V_TMP+tt}")
            for T in range(ntile):
                for rd in range(2):
                    L.append(f"ds_read_b64_tr_b16 {vr(wf(buf,T)+2*rd,2)}, v{V_WC+T} offset:{ks*2048+rd*512}")
            return [] if 'r' in dis else L
        nreads = nTT + 2 * ntile
        def upd_w():
            for T in range(ntile): a(f"v_add_u32 v{V_WC+T}, s{S_WRD}, v{V_WB+T}")
        def side(name, tests, fn, else_fn=None):
            if 'S' in dis:
                if else_fn: else_fn()
                return
            L = a.newlabel(lab + "_" + name)
            a(f"s_cmp_lg_u32 s{tests[0][0]}, {tests[0][1]}")
            a(f"s_cbranch_scc1 {L}e")
            fn()
            if else_fn:
                a(f"s_branch {L}x")
            a.label(L + "e")
            if else_fn:
                else_fn()
                a.label(L + "x")
        def dummy():
            a(f"buffer_load_dword v{V_ONES}, v{V_ONES+1}, s[{S_X}:{S_X+3}], 0 offen")
        pend = []
        def kstep(i, ks):
            n = i * 4 + ks
            buf = n % 3; nb = (n + 2) % 3
            nks = (ks + 2) & 3
            last_reads = (n + 2) >= 40
            if ks == 2:
                assert not pend
                a("s_waitcnt lgkmcnt(0)")
                if i < 9:
                    def st(lane):
                        if timing and 'W' in dis:
                            a(f"s_memtime s[{S_T0+2}:{S_T0+3}]")
                            a("s_waitcnt lgkmcnt(0)")
                            a(f"s_sub_u32 s{S_T0+2}, s{S_T0+2}, s{S_T0}")
                            a(f"v_writelane_b32 v{V_STAMP}, s{S_T0+2}, {lane}")
                    st(32 + 3 * i)
                    a(f"s_waitcnt vmcnt({[6, 9, 8, 8, 8, 8, 8, 8, 1][i]})")
                    st(33 + 3 * i)
                    a("s_barrier")
                    st(34 + 3 * i)
                    a(f"s_mov_b32 s{S_M2+1}, s{S_XRD}"); a(f"s_mov_b32 s{S_M2+2}, s{S_WRD}")
                    advance_slot()
                    upd_w()
                    if i <= 6 and 'd' not in dis:
                        for g in dma_pieces(S_M2 + 1, S_M2 + 2): pend.append(g)
                        pend.append(next_sigma)
                        if i == 1:
                            pend.append(lambda: side("c2", [(S_C2W, 1)], c2, dummy))
                        elif i == 2:
                            pend.append(lambda: side("f1", [(S_F1W, 1)], f1, dummy))
                        elif i == 4:
                            pend.append(lambda: side("c3", [(S_C3W, 1)], lambda: flag_add('c'), dummy))
                        else:
                            pend.append(dummy)
            else:
                a(f"s_waitcnt lgkmcnt({0 if n == 39 else nreads})")
            rl = [] if last_reads else read_list(nks, nb)
            mf = []
            for T in range(ntile):
                for tt in range(nTT):
                    j = T * nTT + tt
                    if 'm' not in dis:
                        mf.append(f"v_mfma_f32_32x32x16_bf16 {vr(acc(j),16)}, {vr(wf(buf,T),4)}, {vr(xf(buf,tt),4)}, {vr(acc(j),16)}")
            half = (len(rl) + 1) // 2
            groups = [rl[:half], rl[half:]] + [[] for _ in range(8)]
            nm = max(2, len(mf))
            for j in range(nm):
                if j < len(mf): a(mf[j])
                for x in groups[j]: a(x)
                if j >= nm - 2 and pend:
                    g = pend.pop(0)
                    if callable(g): g()
                    else:
                        for x in g: a(x)
                    if pend and callable(pend[0]) and pend[0] is next_sigma:
                        pend.pop(0)()
            if i == 0:
                def cs(buf=buf):
                    for T in range(ntile):
                        c = vr(ACS + 16 * T, 16)
                        a(f"v_mfma_f32_32x32x16_bf16 {c}, {vr(V_M+4,4)}, {vr(wf(buf,T),4)}, 0" if typ == 'A' else
                          f"v_mfma_f32_32x32x16_bf16 {c}, {vr(V_M+4,4)}, {vr(wf(buf,T),4)}, {c}")
                if typ == 'A':
                    side("cs", [(S_CSK, ks)], cs)
                else:
                    side("cs", [(S_CSK, ks & 1)], cs)
            if i == 1 and ks == 0:
                def cw():
                    nT_ = 4 if typ == 'A' else 2
                    a(f"s_mul_i32 s{S_T}, s{S_HP}, {nT_*128}")
                    a(f"s_lshl_b32 s{S_T+1}, s{S_TQ}, 10")
                    a(f"s_add_u32 s{S_T}, s{S_T}, s{S_T+1}")
                    a(f"v_lshlrev_b32 v{V_TMP+8}, 7, v{V_HF}")
                    a(f"v_lshl_add_u32 v{V_TMP+8}, v{V_T31}, 2, v{V_TMP+8}")
                    a(f"v_add_u32 v{V_TMP+8}, s{S_T}, v{V_TMP+8}")
                    a(f"v_cmp_eq_u32 vcc, 1, v{V_HF}")
                    a("s_nop 1")
                    for T in range(0, nT_, 2):
                        hi = ACS + 16 * (T + 1) if T + 1 < ntile else ACS + 16 * T
                        a(f"v_cndmask_b32 v{V_TMP+9}, v{ACS+16*T}, v{hi}, vcc")
                        a(f"ds_write_b32 v{V_TMP+8}, v{V_TMP+9} offset:{CSP+T*128}")
                side("cw", [(S_CSPUB, 1)], cw)
            if i == 8 and ks == 2:
                poll_issue()
            if i == 9 and ks == 0 and 'S' not in dis:
                poll_check_and_load(typ)
        def f1():
            L = a.newlabel(lab + "_f1z")
            a(f"s_cmp_eq_u32 s{S_WV}, 0")
            a(f"s_cbranch_scc0 {L}")
            flag_add('x')
            a(f"s_branch {L}x")
            a.label(L)
            flag_add('z')
            a.label(L + "x")
        def c2():
            ncon = 4 if typ == 'A' else 2
            a(f"v_lshlrev_b32 v{V_TMP+8}, 4, v{V_L}")
            for c in range(ncon):
                a(f"ds_read_b128 {vr(ACS+4*c,4)}, v{V_TMP+8} offset:{CSP+c*1024}")
            a(f"s_mul_i32 s{S_T}, s{S_ROLE}, 10240")
            a(f"s_lshl_b32 s{S_T+1}, s{S_MT}, 10")
            a(f"s_add_u32 s{S_T}, s{S_T}, s{S_T+1}")
            a(f"s_add_u32 s{S_T}, s{S_T}, {CSG_OFF}")
            a(f"v_add_u32 v{V_TMP+8}, s{S_T}, v{V_TMP+8}")
            a("s_waitcnt lgkmcnt(0)")
            for c in range(1, ncon):
                for e in range(4): a(f"v_add_f32 v{ACS+e}, v{ACS+e}, v{ACS+4*c+e}")
            if 'X' in dis:
                a(f"global_atomic_swap_x2 v{V_TMP+8}, {vr(ACS,2)}, s[{S_PTR}:{S_PTR+1}] sc1")
                a(f"global_atomic_swap_x2 v{V_TMP+8}, {vr(ACS+2,2)}, s[{S_PTR}:{S_PTR+1}] offset:8 sc1")
            else: a(f"global_store_dwordx4 v{V_TMP+8}, {vr(ACS,4)}, s[{S_PTR}:{S_PTR+1}]{SC}")
        a("s_waitcnt vmcnt(10) lgkmcnt(0)")
        a("s_barrier")
        stamp(typ + " first barrier")
        upd_w()
        for x in read_list(0, 0): a(x)
        for x in read_list(1, 1): a(x)
        for i in range(10):
            if timing and 'T' in dis:
                a(f"s_memtime s[{S_T0+2}:{S_T0+3}]")
                a("s_waitcnt lgkmcnt(0)")
                a(f"s_sub_u32 s{S_T0+2}, s{S_T0+2}, s{S_T0}")
                a(f"v_writelane_b32 v{V_STAMP}, s{S_T0+2}, {16+i}")
            for ks in range(4): kstep(i, ks)
        a(f"s_branch {lab}_EXIT")
        k = 0
        while k < len(ool):
            L, fn = ool[k]; k += 1
            a.label(L); fn(); a(f"s_branch {L}r")
        a.label(lab + "_EXIT")

    V_FL = V_M + 2
    def poll_issue():
        a(f"s_lshl_b32 s{S_T}, s{S_MT}, 2")
        a(f"v_mov_b32 v{V_TMP+8}, s{S_T}")
        a(f"s_lshl_b32 s{S_T}, s{S_ROLE}, 2")
        a(f"v_mov_b32 v{V_TMP+9}, s{S_T}")
        a(f"global_load_dword v{V_M+6}, v{V_TMP+8}, s[{S_PTR+2}:{S_PTR+3}] sc1")
        a(f"global_load_dword v{V_M+7}, v{V_TMP+9}, s[{S_PTR+2}:{S_PTR+3}] offset:64 sc1")
    def poll_check_and_load(typ):
        Lp = a.newlabel(P + "_poll"); Lok = a.newlabel(P + "_pok")
        a(f"s_mov_b32 s{S_T+2}, 0")
        a.label(Lp)
        a("s_waitcnt vmcnt(0)")
        a(f"s_add_u32 s{S_T+2}, s{S_T+2}, 1")
        a(f"s_cmp_gt_u32 s{S_T+2}, 4000")
        a(f"s_cbranch_scc1 {Lok}")
        a(f"v_readfirstlane_b32 s{S_T}, v{V_M+6}")
        a(f"v_readfirstlane_b32 s{S_T+1}, v{V_M+7}")
        a(f"s_cmp_lt_u32 s{S_T}, 16")
        a(f"s_cbranch_scc1 {Lp}r")
        a(f"s_cmp_ge_u32 s{S_T+1}, 10")
        a(f"s_cbranch_scc1 {Lok}")
        a.label(Lp + "r")
        a("s_sleep 4")
        poll_issue()
        a(f"s_branch {Lp}")
        a.label(Lok)
        for tt in range(1 if typ == 'A' else 2):
            a(f"v_lshrrev_b32 v{V_TMP+8}, 7, v{V_XA+tt}")
            a(f"s_lshl_b32 s{S_T}, s{S_MT}, 7")
            a(f"v_add_u32 v{V_TMP+8}, s{S_T}, v{V_TMP+8}")
            a(f"v_lshlrev_b32 v{V_TMP+8}, 3, v{V_TMP+8}")
            a(f"v_add_u32 v{V_TMP+8}, {STATG_OFF}, v{V_TMP+8}")
            a(f"global_load_dwordx2 {vr(V_M+2*tt,2)}, v{V_TMP+8}, s[{S_PTR}:{S_PTR+1}] sc1")
        L = a.newlabel(P + "_csl")
        a(f"s_cmp_ge_u32 s{S_WV}, 4"); a(f"s_cbranch_scc1 {L}")
        a(f"s_mul_i32 s{S_T}, s{S_ROLE}, 10240")
        a(f"s_add_u32 s{S_T}, s{S_T}, {CSG_OFF}")
        a(f"v_lshl_add_u32 v{V_TMP+8}, v0, 2, s{S_T}")
        for j in range(10):
            if j % 4 == 0 and j: a(f"v_add_u32 v{V_TMP+8}, 4096, v{V_TMP+8}")
            a(f"global_load_dword v{V_E+64+j}, v{V_TMP+8}, s[{S_PTR}:{S_PTR+1}] offset:{(j%4)*1024} sc1")
        a.label(L)
    def finish_stats(typ):
        a("s_waitcnt lgkmcnt(0)")
        stamp(typ + " main loop end")
        L = a.newlabel(P + "_cs2")
        a("s_waitcnt vmcnt(0)")
        a(f"s_cmp_ge_u32 s{S_WV}, 4"); a(f"s_cbranch_scc1 {L}")
        for j in range(1, 10):
            a(f"v_add_f32 v{V_E+64}, v{V_E+64}, v{V_E+64+j}")
        a(f"v_lshlrev_b32 v{V_TMP}, 2, v0")
        a(f"ds_write_b32 v{V_TMP}, v{V_E+64} offset:{CS}")
        a("s_waitcnt lgkmcnt(0)")
        a.label(L)
        a("s_barrier")
        stamp(typ + " stats barrier")

    a("s_cmp_ge_u32 s2, 256")
    a(f"s_cbranch_scc1 {P}_END")
    a("s_load_dwordx4 s[4:7], s[0:1], 0")
    a("s_load_dwordx4 s[8:11], s[0:1], 16")
    a("s_load_dwordx4 s[12:15], s[0:1], 40")
    a(f"s_load_dwordx2 s[{S_PTR+8}:{S_PTR+9}], s[0:1], 56")
    a(f"s_load_dwordx4 s[{S_T}:{S_T+3}], s[0:1], 80")
    if timing: a(f"s_memtime s[{S_T0}:{S_T0+1}]")
    if timing: a("s_memrealtime s[98:99]")
    a(f"v_and_b32 v{V_L}, 63, v0")
    a(f"v_lshrrev_b32 v{V_TMP}, 6, v0")
    a(f"v_and_b32 v{V_T31}, 31, v0")
    a(f"v_readfirstlane_b32 s{S_WV}, v{V_TMP}")
    a(f"v_bfe_u32 v{V_HF}, v0, 5, 1")
    a(f"s_and_b32 s{S_T+4}, s2, 7")
    a(f"s_lshr_b32 s{S_T+5}, s2, 3")
    a(f"s_and_b32 s{S_T+6}, s{S_T+4}, 1")
    a(f"s_lshl_b32 s{S_T+6}, s{S_T+6}, 3")
    a(f"s_and_b32 s{S_T+7}, s{S_T+5}, 7")
    a(f"s_add_u32 s{S_MT}, s{S_T+6}, s{S_T+7}")
    a(f"s_lshr_b32 s{S_T+4}, s{S_T+4}, 1")
    a(f"s_lshl_b32 s{S_T+4}, s{S_T+4}, 2")
    a(f"s_lshr_b32 s{S_T+5}, s{S_T+5}, 3")
    a(f"s_add_u32 s{S_ROLE}, s{S_T+4}, s{S_T+5}")
    a(f"s_lshr_b32 s{S_GI}, s{S_ROLE}, 1")
    a(f"s_and_b32 s{S_M2}, s{S_ROLE}, 1")
    a(f"s_sub_u32 s{S_SIG}, s{S_MT}, 10")
    a(f"s_cmp_lt_u32 s{S_MT}, 10")
    a(f"s_cselect_b32 s{S_SIG}, s{S_MT}, s{S_SIG}")
    if 'R' in dis: a(f"s_mov_b32 s{S_SIG}, 0")
    if 'H' in dis:
        a(f"s_and_b32 s{S_SIG}, s{S_MT}, 1"); a(f"s_mul_i32 s{S_SIG}, s{S_SIG}, 5")
    a(f"s_lshl_b32 s{S_XSO}, s{S_SIG}, 7")
    V_ROW, V_S8 = V_TMP + 1, V_TMP + 4
    a(f"v_lshrrev_b32 v{V_TMP}, 3, v{V_L}")
    a(f"s_lshl_b32 s{S_T+4}, s{S_WV}, 3")
    a(f"v_add_u32 v{V_ROW}, s{S_T+4}, v{V_TMP}")
    a(f"v_bfe_u32 v{V_TMP+2}, v{V_ROW}, 1, 3")
    a(f"v_and_b32 v{V_TMP+3}, 7, v{V_L}")
    a(f"v_xor_b32 v{V_TMP+2}, v{V_TMP+2}, v{V_TMP+3}")
    a(f"v_and_b32 v{V_TMP+8}, 3, v{V_TMP+2}")
    a(f"v_lshrrev_b32 v{V_TMP+2}, 2, v{V_TMP+2}")
    a(f"v_lshl_add_u32 v{V_TMP+2}, v{V_TMP+8}, 1, v{V_TMP+2}")
    a(f"v_mul_u32_u24 v{V_XV}, 1280, v{V_ROW}")
    a(f"v_lshl_add_u32 v{V_XV}, v{V_TMP+2}, 4, v{V_XV}")
    a(f"v_bfe_u32 v{V_S8}, v{V_L}, 4, 1")
    a(f"v_lshlrev_b32 v{V_S8}, 2, v{V_S8}")
    a(f"v_xor_b32 v{V_S8}, v{V_S8}, v{V_TMP+3}")
    a(f"s_lshl_b32 s{S_M0X}, s{S_WV}, 10")
    a(f"s_add_u32 s{S_M0W}, s{S_M0X}, {WOFF}")
    a(f"s_mov_b32 s{S_XRD}, {XOFF}"); a(f"s_mov_b32 s{S_WRD}, 0")
    a(f"s_mul_i32 s{S_T+4}, s{S_MT}, 163840")
    a(f"s_lshl_b32 s{S_T+5}, s{S_ROLE}, 3")
    a(f"s_add_u32 s{S_T+5}, s{S_T+5}, s{S_WV}")
    a(f"s_mul_i32 s{S_T+5}, s{S_T+5}, 1280")
    a(f"v_lshlrev_b32 v{V_TMP+9}, 4, v{V_L}")
    a(f"v_add_u32 v{V_TMP+8}, 1024, v{V_TMP+9}")
    a(f"v_cmp_gt_u32 vcc, 16, v{V_L}")
    a(f"v_mov_b32 v{V_TMP+7}, 0x7f000000")
    a("s_waitcnt lgkmcnt(0)")
    pst(32)
    a.srd_off(S_X, 4, 5, f"s{S_T+4}", 163840)
    a(f"v_cndmask_b32 v{V_TMP+8}, v{V_TMP+7}, v{V_TMP+8}, vcc")
    a(f"s_mov_b64 s[{S_PTR}:{S_PTR+1}], s[{S_T+2}:{S_T+3}]")
    a(f"s_mov_b64 s[{S_PTR+2}:{S_PTR+3}], s[{S_T}:{S_T+1}]")
    a(f"buffer_load_dwordx4 {vr(V_E,4)}, v{V_TMP+9}, s[{S_X}:{S_X+3}], s{S_T+5} offen")
    a(f"buffer_load_dwordx4 {vr(V_E+4,4)}, v{V_TMP+8}, s[{S_X}:{S_X+3}], s{S_T+5} offen")
    prologue_x()
    pst(33)
    a(f"s_mov_b64 s[{S_PTR+4}:{S_PTR+5}], s[8:9]")
    a(f"s_mov_b64 s[{S_PTR+6}:{S_PTR+7}], s[14:15]")
    a(f"s_mov_b64 s[{S_PTR+10}:{S_PTR+11}], s[10:11]")
    a(f"s_cmp_eq_u32 s{S_M2}, 1")
    a(f"s_cbranch_scc1 {P}_B")

    V_U, V_ROW0, V_RSW = V_M + 0, V_M + 1, V_M + 2
    def common_setup():
        a(f"v_bfe_u32 v{V_U}, v{V_L}, 4, 1")
        a(f"v_lshlrev_b32 v{V_U}, 2, v{V_U}")
        a(f"v_and_b32 v{V_TMP+8}, 3, v{V_L}")
        a(f"v_add_u32 v{V_U}, v{V_U}, v{V_TMP+8}")
        a(f"v_bfe_u32 v{V_ROW0}, v{V_L}, 2, 2")
        a(f"v_bfe_u32 v{V_RSW}, v{V_L}, 3, 1")
        a(f"v_lshlrev_b32 v{V_RSW}, 2, v{V_RSW}")
        a(f"v_lshl_add_u32 v{V_ROW0}, v{V_HF}, 3, v{V_ROW0}")
        for i in range(64): a(f"v_mov_b32 v{V_ACC+i}, 0")
    def cs_roles():
        a(f"s_cmp_lt_u32 s{S_MT}, 10")
        a(f"s_cselect_b32 s{S_CSK}, s{S_TQ}, 99")
        a(f"s_cselect_b32 s{S_CSPUB}, 1, 0")
        a(f"s_cselect_b32 s{S_C2W}, 1, 0")
        a(f"s_cselect_b32 s{S_C3W}, 1, 0")
        a(f"s_cmp_eq_u32 s{S_WV}, 1"); a(f"s_cselect_b32 s{S_C2W}, s{S_C2W}, 0")
        a(f"s_cmp_eq_u32 s{S_WV}, 0"); a(f"s_cselect_b32 s{S_C3W}, s{S_C3W}, 0")
        a(f"v_mov_b32 v{V_ONES+1}, 0")
        a(f"s_cmp_eq_u32 s{S_WV}, 0"); a(f"s_cselect_b32 s{S_F1W}, 1, 0")
    def after_setup():
        pst(35)
        a("s_waitcnt vmcnt(18)")
        pst(36)
        xrow_stats()
        pst(37)
        for i in range(4): a(f"v_mov_b32 v{V_M+4+i}, {hex(ONES2)}")
        for i in range(64): a(f"v_mov_b32 v{V_E+i}, 0")

    a(f"s_lshr_b32 s{S_HP}, s{S_WV}, 2")
    a(f"s_and_b32 s{S_TQ}, s{S_WV}, 3")
    for p in range(4):
        a.srd(S_W0 + 4 * p, 6, 7, 640 * 3840)
        a(f"s_mov_b32 s{S_WSTEP+p}, {64*3840}")
    a(f"s_mul_i32 s{S_T}, s{S_GI}, 160")
    a(f"s_lshl_b32 s{S_T+1}, s{S_GI}, 7")
    a(f"v_mul_u32_u24 v{V_TMP+5}, 3840, v{V_ROW}")
    a(f"v_lshl_add_u32 v{V_TMP+6}, v{V_S8}, 4, v{V_TMP+5}")
    a(f"s_add_u32 s{S_T+2}, s{S_T}, 1280")
    a(f"v_add_u32 v{V_WV}, s{S_T+2}, v{V_TMP+6}")
    a(f"s_add_u32 s{S_T+2}, s{S_T}, {2560+32}")
    a(f"v_add_u32 v{V_WV+2}, s{S_T+2}, v{V_TMP+6}")
    a(f"v_add_u32 v{V_WV+3}, s{S_T+1}, v{V_TMP+6}")
    a(f"v_and_b32 v{V_TMP+7}, 1, v{V_S8}")
    a(f"v_lshl_add_u32 v{V_TMP+7}, v{V_TMP+7}, 4, v{V_TMP+5}")
    a(f"v_mov_b32 v{V_TMP+8}, 2560")
    a(f"v_mov_b32 v{V_TMP+9}, {1280+128}")
    a(f"v_cmp_gt_u32 vcc, 4, v{V_S8}")
    a("s_nop 1")
    a(f"v_cndmask_b32 v{V_TMP+8}, v{V_TMP+8}, v{V_TMP+9}, vcc")
    a(f"v_add3_u32 v{V_WV+1}, v{V_TMP+7}, v{V_TMP+8}, s{S_T}")
    prologue_w()
    pst(34)
    a(f"s_mul_i32 s{S_T}, s{S_GI}, 3200")
    a.srd_off(S_WS, S_PTR + 4, S_PTR + 5, f"s{S_T}", 3200)
    common_setup()
    a(f"v_and_b32 v{V_TMP+1}, 3, v{V_U}")
    a(f"v_lshlrev_b32 v{V_TMP+1}, 3, v{V_TMP+1}")
    a(f"v_cmp_lt_u32 vcc, 3, v{V_U}")
    for T in range(4):
        cs = []
        for hp in (0, 1):
            TT = T if T < len(TILES[hp]) else 0
            ent = []
            for u in range(8):
                q, hf = u >> 1, u & 1
                c, hi = tile_quad(hp, TT, q, hf)
                ent.append((SLOT_A[c] << 1) | hi)
            cs.append((sum(ent[s] << (8 * s) for s in range(4)), sum(ent[4 + s] << (8 * s) for s in range(4))))
        a(f"s_cmp_eq_u32 s{S_HP}, 0")
        a(f"s_mov_b32 s{S_T+2}, {hex(cs[1][0])}")
        a(f"s_cselect_b32 s{S_T+2}, {hex(cs[0][0])}, s{S_T+2}")
        a(f"s_mov_b32 s{S_T+3}, {hex(cs[1][1])}")
        a(f"s_cselect_b32 s{S_T+3}, {hex(cs[0][1])}, s{S_T+3}")
        a(f"v_mov_b32 v{V_TMP+2}, s{S_T+2}")
        a(f"v_mov_b32 v{V_TMP+3}, s{S_T+3}")
        a(f"v_cndmask_b32 v{V_TMP+2}, v{V_TMP+2}, v{V_TMP+3}, vcc")
        a(f"v_lshrrev_b32 v{V_TMP+2}, v{V_TMP+1}, v{V_TMP+2}")
        a(f"v_and_b32 v{V_TMP+3}, 1, v{V_TMP+2}")
        a(f"v_bfe_u32 v{V_TMP+4}, v{V_TMP+2}, 1, 3")
        a(f"v_bfe_u32 v{V_TMP+5}, v{V_TMP+2}, 4, 2")
        a(f"v_xor_b32 v{V_TMP+4}, v{V_TMP+4}, v{V_RSW}")
        a(f"v_lshlrev_b32 v{V_TMP+4}, 4, v{V_TMP+4}")
        a(f"v_lshl_add_u32 v{V_TMP+4}, v{V_TMP+3}, 3, v{V_TMP+4}")
        a(f"v_lshl_add_u32 v{V_TMP+4}, v{V_TMP+5}, 13, v{V_TMP+4}")
        a(f"v_lshl_add_u32 v{V_TMP+4}, v{V_ROW0}, 7, v{V_TMP+4}")
        a(f"v_add_u32 v{V_WB+T}, {WOFF}, v{V_TMP+4}")
    def x_addr(tts, rowbase_sgpr_shift, sg):
        a(f"v_bfe_u32 v{V_TMP+1}, v{V_T31}, 1, 3")
        a(f"v_lshlrev_b32 v{V_TMP+2}, 2, v{V_HF}")
        a(f"v_xor_b32 v{V_TMP+1}, v{V_TMP+1}, v{V_TMP+2}")
        a(f"s_lshl_b32 s{S_T}, s{sg}, {rowbase_sgpr_shift}")
        for tt in range(tts):
            a(f"v_add_u32 v{V_TMP+2}, s{S_T}, v{V_T31}")
            if tt: a(f"v_add_u32 v{V_TMP+2}, {32*tt}, v{V_TMP+2}")
            a(f"v_lshlrev_b32 v{V_TMP+2}, 7, v{V_TMP+2}")
            a(f"v_lshl_add_u32 v{V_XA+tt}, v{V_TMP+1}, 4, v{V_TMP+2}")
    x_addr(1, 5, S_TQ)
    cs_roles()
    a(f"v_lshlrev_b32 v{V_TMP+1}, 2, v0")
    a(f"v_mov_b32 v{V_TMP+2}, 0")
    a(f"v_cmp_gt_u32 vcc, 320, v0")
    a(f"s_and_saveexec_b64 s[{S_T+6}:{S_T+7}], vcc")
    a(f"ds_write_b32 v{V_TMP+1}, v{V_TMP+2} offset:{ZERO}")
    a(f"s_mov_b64 exec, s[{S_T+6}:{S_T+7}]")
    after_setup()
    a(f"v_lshlrev_b32 v{V_TMP+1}, 4, v0")
    a(f"buffer_load_dwordx4 {vr(V_E+76,4)}, v{V_TMP+1}, s[{S_WS}:{S_WS+3}], 0 offen")
    a(f"s_cmp_lg_u32 s{S_HP}, 0")
    a(f"s_cbranch_scc1 {P}A_H1")
    run_main('A', 4, P + "A0")
    a(f"s_branch {P}A_EPI")
    a.label(P + "A_H1")
    run_main('A', 3, P + "A1")
    a.label(P + "A_EPI")
    a(f"v_lshlrev_b32 v{V_TMP}, 4, v0")
    a(f"v_cmp_gt_u32 vcc, 200, v0")
    a(f"s_and_saveexec_b64 s[{S_T+6}:{S_T+7}], vcc")
    a(f"ds_write_b128 v{V_TMP}, {vr(V_E+76,4)} offset:{WPHI}")
    a(f"s_mov_b64 exec, s[{S_T+6}:{S_T+7}]")
    finish_stats('A')
    V_MN, V_RS, V_C = V_MN0, V_RS0, V_M + 2
    CSR = V_XF
    a(f"s_mul_i32 s{S_T}, s{S_HP}, 512")
    a(f"v_lshl_add_u32 v{V_TMP+4}, v{V_HF}, 4, s{S_T}")
    for T in range(3):
        for q in range(4):
            a(f"ds_read_b128 {vr(CSR+16*T+4*q,4)}, v{V_TMP+4} offset:{CS+T*128+q*32}")
    A2 = V_E
    a(f"v_bfe_u32 v{V_TMP}, v{V_L}, 4, 1")
    a(f"v_lshlrev_b32 v{V_TMP}, 2, v{V_TMP}")
    a(f"v_and_b32 v{V_TMP+1}, 3, v{V_L}")
    a(f"v_add_u32 v{V_TMP}, v{V_TMP}, v{V_TMP+1}")
    a(f"v_and_b32 v{V_TMP+1}, 1, v{V_TMP}")
    a(f"v_lshrrev_b32 v{V_TMP}, 1, v{V_TMP}")
    a(f"v_bfe_u32 v{V_TMP+2}, v{V_L}, 2, 2")
    a(f"v_mul_u32_u24 v{V_TMP+2}, 40, v{V_TMP+2}")
    a(f"v_lshl_add_u32 v{V_TMP+2}, v{V_TMP}, 3, v{V_TMP+2}")
    a(f"s_mul_i32 s{S_T}, s{S_HP}, 1600")
    a(f"v_mul_u32_u24 v{V_TMP+3}, 800, v{V_TMP+1}")
    a(f"v_add3_u32 v{V_TMP+2}, v{V_TMP+2}, v{V_TMP+3}, s{S_T}")
    a(f"v_add_u32 v{V_TMP+2}, {WPHI}, v{V_TMP+2}")
    a(f"v_mov_b32 v{V_TMP+3}, {ZERO}")
    a(f"v_cmp_eq_u32 vcc, v{V_TMP+1}, v{V_HF}")
    a("s_nop 1")
    a(f"v_cndmask_b32 v{V_TMP+2}, v{V_TMP+3}, v{V_TMP+2}, vcc")
    for xy in range(2):
        for s_ in range(3):
            for rd in range(2):
                a(f"ds_read_b64_tr_b16 {vr(A2+(xy*3+s_)*4+2*rd,2)}, v{V_TMP+2} offset:{s_*320+rd*160+xy*32}")
    def qregs(lg):
        T, p = where(0, lg)
        return [acc(T) + 4 * p + r for r in range(4)]
    def cs_of(r): return CSR + (r - V_ACC)
    kv_ = sum([qregs(('k', i)) for i in range(5)], [])
    vv = sum([qregs(('v', i)) for i in range(5)], [])
    a("s_waitcnt lgkmcnt(12)")
    for r in kv_: a(f"v_fmac_f32 v{r}, v{cs_of(r)}, v{V_MN}")
    KF = V_E + 24
    for p in range(10):
        a(f"v_cvt_pk_bf16_f32 v{KF+p}, v{kv_[2*p]}, v{kv_[2*p+1]}")
    a(f"v_mov_b32 v{KF+10}, 0"); a(f"v_mov_b32 v{KF+11}, 0")
    a(f"v_mul_f32 v{V_C}, {hex(LOG2E)}, v{V_RS}")
    PX, PY = V_E + 48, V_E + 64
    a("s_waitcnt lgkmcnt(0)")
    for xy, PP in ((0, PX), (1, PY)):
        for s_ in range(3):
            c = "0" if s_ == 0 else vr(PP, 16)
            a(f"v_mfma_f32_32x32x16_bf16 {vr(PP,16)}, {vr(A2+(xy*3+s_)*4,4)}, {vr(KF+4*s_,4)}, {c}")
    VPK = V_E + 36
    for p in range(10):
        for e in range(2):
            r = vv[2 * p + e]
            a(f"v_fmac_f32 v{r}, v{cs_of(r)}, v{V_MN}")
            a(f"v_mul_f32 v{r}, v{r}, v{V_RS}")
        a(f"v_cvt_pk_bf16_f32 v{VPK+p}, v{vv[2*p]}, v{vv[2*p+1]}")
    a(f"v_mov_b32 v{VPK+10}, 0x3f80")
    a(f"v_mov_b32 v{VPK+11}, 0")
    V_HL, V_VPA, V_PHA, V_QA = V_M + 3, V_M + 4, V_M + 5, V_M + 6
    a(f"v_lshrrev_b32 v{V_TMP}, 7, v{V_XA}")
    a(f"s_lshl_b32 s{S_T}, s{S_HP}, 1")
    a(f"v_add_u32 v{V_HL}, s{S_T}, v{V_HF}")
    a(f"v_mul_u32_u24 v{V_VPA}, 192, v{V_TMP}")
    a(f"v_mad_u32_u24 v{V_VPA}, v{V_HL}, 48, v{V_VPA}")
    a(f"v_add_u32 v{V_VPA}, {VP}, v{V_VPA}")
    a(f"v_mul_u32_u24 v{V_PHA}, 320, v{V_TMP}")
    a(f"v_mul_u32_u24 v{V_TMP+1}, 80, v{V_HL}")
    a(f"v_add_u32 v{V_PHA}, v{V_PHA}, v{V_TMP+1}")
    for j in range(3):
        a(f"ds_write_b128 v{V_VPA}, {vr(VPK+4*j,4)} offset:{16*j}")
    a.srd_off(S_WS, S_PTR, S_PTR + 1, QBUF_OFF, QBUF_BYTES)
    a(f"s_lshl_b32 s{S_T}, s{S_MT}, 2")
    a(f"s_add_u32 s{S_T}, s{S_T}, s{S_TQ}")
    a(f"s_mul_i32 s{S_T}, s{S_T}, 80")
    a(f"s_lshl_b32 s{S_T+1}, s{S_GI}, 3")
    a(f"s_add_u32 s{S_T}, s{S_T}, s{S_T+1}")
    a(f"s_lshl_b32 s{S_T}, s{S_T}, 9")
    a(f"v_lshl_add_u32 v{V_QA}, v{V_T31}, 4, s{S_T}")
    def store_light(src, csr, addr, pk):
        for p in range(4):
            for e in range(2):
                r = src + 2 * p + e
                a(f"v_fmac_f32 v{r}, v{csr+2*p+e}, v{V_MN}")
                a(f"v_mul_f32 v{r}, v{r}, v{V_RS}")
            a(f"v_cvt_pk_bf16_f32 v{pk+p}, v{src+2*p}, v{src+2*p+1}")
        a(f"buffer_store_dwordx4 {vr(pk,4)}, v{addr}, s[{S_WS}:{S_WS+3}], 0 offen{OSC}")
    l00, l01 = LIGHTS[0][0][0][1], LIGHTS[0][0][1][1]; l10, l11 = LIGHTS[1][0][0][1], LIGHTS[1][0][1][1]
    assert l01 - l00 == l11 - l10
    a(f"s_cmp_eq_u32 s{S_HP}, 0")
    a(f"s_mov_b32 s{S_T}, {l10*512}")
    a(f"s_cselect_b32 s{S_T}, {l00*512}, s{S_T}")
    a(f"v_mul_u32_u24 v{V_TMP+5}, {(l01-l00)*512}, v{V_HF}")
    a(f"v_add3_u32 v{V_TMP+5}, v{V_TMP+5}, v{V_QA}, s{S_T}")
    store_light(acc(0), cs_of(acc(0)), V_TMP + 5, A2)
    a(f"s_cmp_lg_u32 s{S_HP}, 0")
    a(f"s_cbranch_scc1 {P}A_noT3")
    for q in range(4):
        a(f"ds_read_b128 {vr(CSR+48+4*q,4)}, v{V_TMP+4} offset:{CS+3*128+q*32}")
    (m0, m1), (n0, n1) = LIGHTS[0][1], LIGHTS[0][2]
    a(f"v_mul_u32_u24 v{V_TMP+5}, {(m1[1]-m0[1])*512}, v{V_HF}")
    a(f"v_add_u32 v{V_TMP+5}, v{V_TMP+5}, v{V_QA}")
    a(f"v_add_u32 v{V_TMP+6}, {n0[1]*512}, v{V_TMP+5}")
    assert n1[1] - n0[1] == m1[1] - m0[1]
    if m0[1]: a(f"v_add_u32 v{V_TMP+5}, {m0[1]*512}, v{V_TMP+5}")
    a("s_waitcnt lgkmcnt(0)")
    store_light(acc(3), CSR + 48, V_TMP + 5, A2 + 4)
    store_light(acc(3) + 8, CSR + 56, V_TMP + 6, A2 + 8)
    a.label(P + "A_noT3")
    stamp("A before softmax")
    p_ = [PX + i for i in range(16)] + [PY + i for i in range(4)]
    MX, MNn = V_TMP, V_TMP + 1
    a("s_nop 3")
    a(f"v_max3_f32 v{MX}, v{p_[0]}, v{p_[1]}, v{p_[2]}")
    a(f"v_min3_f32 v{MNn}, v{p_[0]}, v{p_[1]}, v{p_[2]}")
    for i in range(3, 19, 2):
        a(f"v_max3_f32 v{MX}, v{MX}, v{p_[i]}, v{p_[i+1]}")
        a(f"v_min3_f32 v{MNn}, v{MNn}, v{p_[i]}, v{p_[i+1]}")
    a(f"v_max_f32 v{MX}, v{MX}, v{p_[19]}")
    a(f"v_min_f32 v{MNn}, v{MNn}, v{p_[19]}")
    a(f"v_mul_f32 v{MX}, v{MX}, v{V_C}")
    a(f"v_mul_f32 v{MNn}, v{MNn}, v{V_C}")
    EP = CSR; EM = CSR + 20
    for i in range(20):
        a(f"v_fma_f32 v{EP+i}, v{p_[i]}, v{V_C}, -v{MX}")
        a(f"v_fma_f32 v{EM+i}, -v{p_[i]}, v{V_C}, v{MNn}")
    for i in range(20):
        a(f"v_exp_f32 v{EP+i}, v{EP+i}")
        a(f"v_exp_f32 v{EM+i}, v{EM+i}")
    SP, SM = V_TMP + 2, V_TMP + 3
    a(f"v_add_f32 v{SP}, v{EP}, v{EP+1}")
    a(f"v_add_f32 v{SM}, v{EM}, v{EM+1}")
    for i in range(2, 20):
        a(f"v_add_f32 v{SP}, v{SP}, v{EP+i}")
        a(f"v_add_f32 v{SM}, v{SM}, v{EM+i}")
    a(f"v_rcp_f32 v{SP}, v{SP}")
    a(f"v_rcp_f32 v{SM}, v{SM}")
    a("s_nop 0")
    PH = V_ACC
    for p in range(10):
        a(f"v_mul_f32 v{EP+2*p}, v{EP+2*p}, v{SP}")
        a(f"v_mul_f32 v{EP+2*p+1}, v{EP+2*p+1}, v{SP}")
        a(f"v_cvt_pk_bf16_f32 v{PH+p}, v{EP+2*p}, v{EP+2*p+1}")
    for p in range(10):
        a(f"v_mul_f32 v{EM+2*p}, v{EM+2*p}, v{SM}")
        a(f"v_mul_f32 v{EM+2*p+1}, v{EM+2*p+1}, v{SM}")
        a(f"v_cvt_pk_bf16_f32 v{PH+10+p}, v{EM+2*p}, v{EM+2*p+1}")
    for j in range(5):
        a(f"ds_write_b128 v{V_PHA}, {vr(PH+4*j,4)} offset:{PHI+16*j}")
    stamp("A after softmax")
    a(f"v_mov_b32 v{V_TMP+4}, 0")
    a(f"global_load_dword v{V_TMP+5}, v{V_TMP+4}, s[{S_PTR+2}:{S_PTR+3}] offset:128 sc1")
    a(f"s_lshr_b32 s{S_T}, s{S_WV}, 1")
    a(f"s_and_b32 s{S_T+1}, s{S_WV}, 1")
    W0 = V_M
    a(f"v_bfe_u32 v{W0}, v{V_L}, 2, 2")
    a(f"v_lshl_add_u32 v{W0}, v{V_HF}, 3, v{W0}")
    a(f"v_bfe_u32 v{W0+1}, v{V_L}, 4, 1")
    a(f"v_lshlrev_b32 v{W0+1}, 2, v{W0+1}")
    a(f"v_and_b32 v{W0+2}, 3, v{V_L}")
    a(f"v_add_u32 v{W0+1}, v{W0+1}, v{W0+2}")
    a(f"s_mul_i32 s{S_T+2}, s{S_T}, 48")
    a(f"s_add_u32 s{S_T+2}, s{S_T+2}, {VP}")
    a(f"v_mul_u32_u24 v{W0+2}, 192, v{W0}")
    a(f"v_lshl_add_u32 v{W0+2}, v{W0+1}, 3, v{W0+2}")
    a(f"v_add_u32 v{W0+2}, s{S_T+2}, v{W0+2}")
    a(f"s_mul_i32 s{S_T+2}, s{S_T}, 80")
    a(f"s_lshl_b32 s{S_T+3}, s{S_T+1}, 6")
    a(f"s_add_u32 s{S_T+2}, s{S_T+2}, s{S_T+3}")
    a(f"v_mul_u32_u24 v{W0+3}, 320, v{W0}")
    a(f"v_lshl_add_u32 v{W0+3}, v{W0+1}, 3, v{W0+3}")
    a(f"v_add_u32 v{W0+3}, s{S_T+2}, v{W0+3}")
    a.srd_off(S_WS, S_PTR, S_PTR + 1, KVS_OFF, KVS_BYTES)
    a(f"s_lshl_b32 s{S_T+2}, s{S_GI}, 2")
    a(f"s_add_u32 s{S_T+2}, s{S_T+2}, s{S_T}")
    a(f"s_mul_i32 s{S_T+2}, s{S_T+2}, 3360")
    a(f"s_lshl_b32 s{S_T+3}, s{S_T+1}, 7")
    a(f"s_add_u32 s{S_T+2}, s{S_T+2}, s{S_T+3}")
    a(f"v_mul_u32_u24 v{W0}, 640, v{V_HF}")
    a(f"v_lshl_add_u32 v{W0}, v{V_T31}, 2, v{W0}")
    a(f"v_add_u32 v{W0}, s{S_T+2}, v{W0}")
    a("s_waitcnt lgkmcnt(0)")
    a("s_barrier")
    stamp("A phi barrier")
    KA, KB = V_XF, V_XF + 32
    for kk in range(8):
        for rd in range(2):
            a(f"ds_read_b64_tr_b16 {vr(KA+4*kk+2*rd,2)}, v{W0+2} offset:{kk*3072+rd*768}")
            a(f"ds_read_b64_tr_b16 {vr(KB+4*kk+2*rd,2)}, v{W0+3} offset:{PHI+kk*5120+rd*1280}")
    KVD = V_E
    for kk in range(8):
        a(f"s_waitcnt lgkmcnt({min(15, 4*(7-kk))})")
        c = "0" if kk == 0 else vr(KVD, 16)
        a(f"v_mfma_f32_32x32x16_bf16 {vr(KVD,16)}, {vr(KA+4*kk,4)}, {vr(KB+4*kk,4)}, {c}")
    stamp("A kv mfma issued")
    a(f"s_mov_b32 s{S_T+5}, 0")
    a.label(P + "A_POLL")
    a("s_waitcnt vmcnt(0)")
    a(f"s_add_u32 s{S_T+5}, s{S_T+5}, 1")
    a(f"s_cmp_gt_u32 s{S_T+5}, 4000")
    a(f"s_cbranch_scc1 {P}A_GO")
    a(f"v_readfirstlane_b32 s{S_T+4}, v{V_TMP+5}")
    a(f"s_cmp_ge_u32 s{S_T+4}, 32")
    a(f"s_cbranch_scc1 {P}A_GO")
    a("s_sleep 2")
    a(f"global_load_dword v{V_TMP+5}, v{V_TMP+4}, s[{S_PTR+2}:{S_PTR+3}] offset:128 sc1")
    a(f"s_branch {P}A_POLL")
    a.label(P + "A_GO")
    a(f"s_cmp_eq_u32 s{S_T+1}, 0")
    a(f"s_cselect_b32 s{S_T+4}, 32, 8")
    a(f"v_cmp_gt_u32 vcc, s{S_T+4}, v{V_T31}")
    a(f"s_and_b64 exec, exec, vcc")
    a("s_nop 7"); a("s_nop 3")
    for q in range(2):
        for r in range(4):
            a(f"buffer_atomic_add_f32 v{KVD+4*q+r}, v{W0}, s[{S_WS}:{S_WS+3}], 0 offen offset:{(8*q+r)*160}")
    a(f"buffer_atomic_add_f32 v{KVD+8}, v{W0}, s[{S_WS}:{S_WS+3}], 0 offen offset:{16*160}")
    a(f"v_cmp_eq_u32 vcc, 0, v{V_HF}")
    a(f"s_and_b64 exec, exec, vcc")
    for r in range(1, 4):
        a(f"buffer_atomic_add_f32 v{KVD+8+r}, v{W0}, s[{S_WS}:{S_WS+3}], 0 offen offset:{(16+r)*160}")
    a("s_mov_b64 exec, -1")
    stamp("A atomics issued")
    a(f"s_branch {P}_DONE")

    a.label(P + "_B")
    S_N, S_CNT, S_B = S_M2 + 3, S_M2 + 4, S_M2 + 5
    a(f"s_and_b32 s{S_HP}, s{S_WV}, 3")
    a(f"s_lshr_b32 s{S_TQ}, s{S_WV}, 2")
    a(f"s_lshl_b32 s{S_T}, s{S_GI}, 2")
    a(f"s_sub_u32 s{S_T+1}, s{S_GI}, 5")
    a(f"s_max_i32 s{S_T+1}, s{S_T+1}, 0")
    a(f"s_sub_u32 s{S_N}, s{S_T}, s{S_T+1}")
    a(f"s_cmp_lt_u32 s{S_GI}, 5")
    a(f"s_cselect_b32 s{S_CNT}, 4, 3")
    for p in range(4):
        a(f"s_cmp_lt_u32 {p}, s{S_CNT}")
        a(f"s_cselect_b32 s{S_T}, {p}, 0")
        a(f"s_add_u32 s{S_T}, s{S_T}, s{S_N}")
        a(f"s_add_u32 s{S_T+2}, s{S_T}, 8")
        a(f"s_sub_u32 s{S_T+3}, s{S_T}, 2")
        a(f"s_cmp_lt_u32 s{S_T}, 2")
        a(f"s_cselect_b32 s{S_W0+4*p}, s6, s12")
        a(f"s_cselect_b32 s{S_W0+4*p+1}, s7, s13")
        a(f"s_mov_b32 s{S_W0+4*p+2}, {640*3456}")
        a(f"s_cselect_b32 s{S_W0+4*p+2}, {640*3840}, s{S_W0+4*p+2}")
        a(f"s_mov_b32 s{S_W0+4*p+3}, 0x00020000")
        a(f"s_mov_b32 s{S_T+1}, 3456")
        a(f"s_cselect_b32 s{S_T+1}, 3840, s{S_T+1}")
        a(f"s_cselect_b32 s{S_T+2}, s{S_T+2}, s{S_T+3}")
        a(f"s_and_b32 s{S_W0+4*p+1}, s{S_W0+4*p+1}, 0xffff")
        a(f"s_lshl_b32 s{S_WSTEP+p}, s{S_T+1}, 6")
        a(f"s_lshl_b32 s{S_T+2}, s{S_T+2}, 7")
        a(f"v_mul_lo_u32 v{V_TMP+5}, v{V_ROW}, s{S_T+1}")
        a(f"v_lshl_add_u32 v{V_TMP+5}, v{V_S8}, 4, v{V_TMP+5}")
        a(f"v_add_u32 v{V_WV+p}, s{S_T+2}, v{V_TMP+5}")
    prologue_w()
    a(f"s_add_u32 s{S_N}, s{S_N}, s{S_HP}")
    common_setup()
    a(f"v_and_b32 v{V_TMP+1}, 1, v{V_U}")
    a(f"v_bfe_u32 v{V_TMP+2}, v{V_U}, 1, 1")
    a(f"v_bfe_u32 v{V_TMP+3}, v{V_U}, 2, 1")
    a(f"v_lshl_add_u32 v{V_TMP+1}, v{V_TMP+3}, 1, v{V_TMP+1}")
    a(f"s_lshl_b32 s{S_T}, s{S_HP}, 13")
    a(f"s_add_u32 s{S_T}, s{S_T}, {WOFF}")
    for T in range(2):
        a(f"v_add_u32 v{V_TMP+4}, {4*T}, v{V_TMP+1}")
        a(f"v_xor_b32 v{V_TMP+4}, v{V_TMP+4}, v{V_RSW}")
        a(f"v_lshlrev_b32 v{V_TMP+4}, 4, v{V_TMP+4}")
        a(f"v_lshl_add_u32 v{V_TMP+4}, v{V_TMP+2}, 3, v{V_TMP+4}")
        a(f"v_lshl_add_u32 v{V_TMP+4}, v{V_ROW0}, 7, v{V_TMP+4}")
        a(f"v_add_u32 v{V_WB+T}, s{S_T}, v{V_TMP+4}")
    x_addr(2, 6, S_TQ)
    cs_roles()
    a(f"s_lshl_b32 s{S_B}, s{S_MT}, 3")
    a(f"s_add_u32 s{S_B}, s{S_B}, s{S_GI}")
    after_setup()
    a(f"s_cmp_lt_u32 s{S_B}, 32")
    a(f"s_cselect_b32 s{S_T}, 1, 0")
    a(f"s_cmp_eq_u32 s{S_WV}, 2")
    a(f"s_cselect_b32 s{S_T+1}, s{S_T}, 0")
    a(f"s_or_b32 s{S_F1W}, s{S_F1W}, s{S_T+1}")
    a(f"s_cmp_eq_u32 s{S_WV}, 0")
    a(f"s_cselect_b32 s{S_T+1}, 1, 0")
    a(f"s_and_b32 s{S_T}, s{S_T}, s{S_T+1}")
    a(f"s_cmp_eq_u32 s{S_T}, 0")
    a(f"s_cbranch_scc1 {P}B_NOZ")
    a(f"s_mul_i32 s{S_T}, s{S_B}, 3360")
    a(f"s_add_u32 s{S_T}, s{S_T}, {KVS_OFF}")
    a.srd_off(S_WS, S_PTR, S_PTR + 1, f"s{S_T}", 3360)
    a(f"v_lshlrev_b32 v{V_TMP}, 4, v{V_L}")
    for i in range(4):
        a(f"buffer_store_dwordx4 {vr(V_E,4)}, v{V_TMP}, s[{S_WS}:{S_WS+3}], 0 offen offset:{i*1024}{SC}")
    a.label(P + "B_NOZ")
    a(f"buffer_load_dword v{V_ONES}, v{V_ONES+1}, s[{S_X}:{S_X+3}], 0 offen")
    run_main('B', 2, P + "B")
    finish_stats('B')
    CSR = V_XF
    a(f"s_mul_i32 s{S_T}, s{S_HP}, 256")
    a(f"v_lshl_add_u32 v{V_TMP+4}, v{V_HF}, 4, s{S_T}")
    for T in range(2):
        for q in range(4):
            a(f"ds_read_b128 {vr(CSR+16*T+4*q,4)}, v{V_TMP+4} offset:{CS+T*128+q*32}")
    a(f"s_cmp_ge_u32 s{S_HP}, s{S_CNT}")
    a(f"s_cbranch_scc1 {P}B_EPI_DONE")
    a(f"s_cmp_lt_u32 s{S_N}, 2")
    a(f"s_cbranch_scc1 {P}B_QLINE")
    a(f"s_sub_u32 s{S_T}, s{S_N}, 2")
    a(f"s_lshl_b32 s{S_T+1}, s{S_T}, 7")
    a.srd_off(S_WS, S_PTR + 6, S_PTR + 7, f"s{S_T+1}", 128)
    BIA = V_E
    a(f"v_lshlrev_b32 v{V_TMP+5}, 4, v{V_HF}")
    for T in range(2):
        for p in range(2):
            a(f"buffer_load_dwordx4 {vr(BIA+(T*2+p)*4,4)}, v{V_TMP+5}, s[{S_WS}:{S_WS+3}], 0 offen offset:{(4*T+2*p)*16}")
    a(f"s_lshl_b32 s{S_T+1}, s{S_MT}, 3")
    a(f"s_lshl_b32 s{S_T+2}, s{S_TQ}, 2")
    a(f"s_add_u32 s{S_T+1}, s{S_T+1}, s{S_T+2}")
    a(f"s_mul_i32 s{S_T+1}, s{S_T+1}, {KS}")
    a(f"s_lshl_b32 s{S_T+2}, s{S_T}, 1")
    a(f"s_add_u32 s{S_T+1}, s{S_T+1}, s{S_T+2}")
    a(f"s_lshl_b32 s{S_T+1}, s{S_T+1}, 10")
    a(f"v_lshrrev_b32 v{V_TMP+5}, 4, v{V_T31}")
    a(f"v_mul_u32_u24 v{V_TMP+5}, {KS*1024}, v{V_TMP+5}")
    a(f"v_and_b32 v{V_TMP+6}, 15, v{V_T31}")
    a(f"v_lshl_add_u32 v{V_TMP+6}, v{V_HF}, 4, v{V_TMP+6}")
    a(f"v_lshl_add_u32 v{V_TMP+5}, v{V_TMP+6}, 4, v{V_TMP+5}")
    a(f"v_add_u32 v{V_TMP+5}, s{S_T+1}, v{V_TMP+5}")
    a(f"v_add_u32 v{V_TMP+6}, {2*KS*1024}, v{V_TMP+5}")
    a("s_waitcnt lgkmcnt(0)")
    MR = [(V_MN0, V_RS0), (V_MN1, V_RS1)]
    for tt in range(2):
        for T in range(2):
            A_ = acc(T * 2 + tt)
            for i in range(16):
                a(f"v_fmac_f32 v{A_+i}, v{CSR+16*T+i}, v{MR[tt][0]}")
    a("s_waitcnt vmcnt(0)")
    BF = V_E + 16
    for T in range(2):
        for p in range(2):
            for j in range(4):
                src = BIA + (T * 2 + p) * 4 + j
                a(f"v_lshlrev_b32 v{BF+16*T+8*p+2*j}, 16, v{src}")
                a(f"v_and_b32 v{BF+16*T+8*p+2*j+1}, 0xffff0000, v{src}")
    a.srd_off(S_WS, S_PTR, S_PTR + 1, ABUF_OFF, ABUF_BYTES)
    OPK = V_XF
    for tt in range(2):
        for T in range(2):
            A_ = acc(T * 2 + tt)
            for i in range(16):
                a(f"v_fma_f32 v{A_+i}, v{A_+i}, v{MR[tt][1]}, v{BF+16*T+i}")
                a(f"v_max_f32 v{A_+i}, 0, v{A_+i}")
                a(f"v_mul_f32 v{A_+i}, v{A_+i}, v{A_+i}")
            for p in range(2):
                o = OPK + ((tt * 2 + T) * 2 + p) * 4
                for j in range(4):
                    a(f"v_cvt_pk_bf16_f32 v{o+j}, v{A_+8*p+2*j}, v{A_+8*p+2*j+1}")
                a(f"buffer_store_dwordx4 {vr(o,4)}, v{V_TMP+5+tt}, s[{S_WS}:{S_WS+3}], 0 offen offset:{T*1024+p*512}{OSC}")
    a(f"s_branch {P}B_EPI_DONE")
    a.label(P + "B_QLINE")
    a.srd_off(S_WS, S_PTR, S_PTR + 1, QBUF_OFF, QBUF_BYTES)
    a(f"s_lshl_b32 s{S_T+1}, s{S_MT}, 2")
    a(f"s_lshl_b32 s{S_T+2}, s{S_TQ}, 1")
    a(f"s_add_u32 s{S_T+1}, s{S_T+1}, s{S_T+2}")
    a(f"s_mul_i32 s{S_T+1}, s{S_T+1}, 80")
    a(f"s_lshl_b32 s{S_T+2}, s{S_N}, 3")
    a(f"s_add_u32 s{S_T+1}, s{S_T+1}, s{S_T+2}")
    a(f"s_add_u32 s{S_T+1}, s{S_T+1}, 64")
    a(f"s_lshl_b32 s{S_T+1}, s{S_T+1}, 9")
    a(f"v_lshlrev_b32 v{V_TMP+5}, 9, v{V_HF}")
    a(f"v_lshl_add_u32 v{V_TMP+5}, v{V_T31}, 4, v{V_TMP+5}")
    a(f"v_add_u32 v{V_TMP+5}, s{S_T+1}, v{V_TMP+5}")
    a(f"v_add_u32 v{V_TMP+6}, {80*512}, v{V_TMP+5}")
    a("s_waitcnt lgkmcnt(0)")
    OPK = V_E
    for tt in range(2):
        for T in range(2):
            A_ = acc(T * 2 + tt)
            for i in range(16):
                a(f"v_fmac_f32 v{A_+i}, v{CSR+16*T+i}, v{MR[tt][0]}")
                a(f"v_mul_f32 v{A_+i}, v{A_+i}, v{MR[tt][1]}")
            for p in range(2):
                o = OPK + ((tt * 2 + T) * 2 + p) * 4
                for j in range(4):
                    a(f"v_cvt_pk_bf16_f32 v{o+j}, v{A_+8*p+2*j}, v{A_+8*p+2*j+1}")
                a(f"buffer_store_dwordx4 {vr(o,4)}, v{V_TMP+5+tt}, s[{S_WS}:{S_WS+3}], 0 offen offset:{(4*T+2*p)*512}{OSC}")
    a.label(P + "B_EPI_DONE")
    stamp("B epi done")
    SB = S_B
    a(f"s_cmp_ge_u32 s{SB}, {KS}")
    a(f"s_cbranch_scc1 {P}_DONE")
    a(f"s_cmp_lt_u32 s{SB}, {KS_H}")
    a(f"s_cselect_b32 s{S_WS}, s{S_PTR+8}, s{S_PTR+10}")
    a(f"s_cselect_b32 s{S_WS+1}, s{S_PTR+9}, s{S_PTR+11}")
    a(f"s_mov_b32 s{S_WS+2}, {640*1280}")
    a(f"s_cselect_b32 s{S_WS+2}, {1728*1280}, s{S_WS+2}")
    a(f"s_mov_b32 s{S_WS+3}, 0x00020000")
    a(f"s_cselect_b64 vcc, -1, 0")
    a(f"s_and_b32 s{S_WS+1}, s{S_WS+1}, 0xffff")
    a(f"s_mov_b64 s[{S_T+6}:{S_T+7}], vcc")
    a(f"s_mul_i32 s{S_T+5}, s{S_WV}, 5120")
    a(f"s_add_u32 s{S_T+5}, s{S_T+5}, {PREP}")
    a(f"s_mul_i32 s{S_T+4}, s{S_WV}, 160")
    a(f"s_lshl_b32 s{S_T}, s{SB}, 2")
    for i in range(5):
        a(f"v_add_u32 v{V_TMP}, {64*i}, v{V_L}")
        a(f"v_mul_u32_u24 v{V_TMP+1}, 6554, v{V_TMP}")
        a(f"v_lshrrev_b32 v{V_TMP+1}, 16, v{V_TMP+1}")
        a(f"v_mul_u32_u24 v{V_TMP+2}, 10, v{V_TMP+1}")
        a(f"v_sub_u32 v{V_TMP+2}, v{V_TMP}, v{V_TMP+2}")
        a(f"v_bfe_u32 v{V_TMP+3}, v{V_TMP+1}, 2, 2")
        a(f"v_and_b32 v{V_TMP+4}, 3, v{V_TMP+1}")
        a(f"v_lshrrev_b32 v{V_TMP+7}, 4, v{V_TMP+1}")
        a(f"v_lshl_add_u32 v{V_TMP+4}, v{V_TMP+7}, 2, v{V_TMP+4}")
        a(f"v_add_u32 v{V_TMP+8}, s{S_T}, v{V_TMP+3}")
        a(f"v_lshl_add_u32 v{V_WB}, v{V_TMP+8}, 3, v{V_TMP+4}")
        a(f"v_subrev_u32 v{V_WB+1}, 216, v{V_TMP+8}")
        a(f"v_mul_u32_u24 v{V_WB+2}, 13108, v{V_WB+1}")
        a(f"v_lshrrev_b32 v{V_WB+2}, 16, v{V_WB+2}")
        a(f"v_mul_u32_u24 v{V_WB+3}, 5, v{V_WB+2}")
        a(f"v_sub_u32 v{V_WB+3}, v{V_WB+1}, v{V_WB+3}")
        a(f"v_and_b32 v{V_WC}, 1, v{V_WB+3}")
        a(f"v_lshlrev_b32 v{V_WC}, 3, v{V_WC}")
        a(f"v_bfe_u32 v{V_WC+1}, v{V_WB+3}, 1, 1")
        a(f"v_mad_u32_u24 v{V_WC}, v{V_WC+1}, 20, v{V_WC}")
        a(f"v_lshlrev_b32 v{V_WC+1}, 4, v{V_TMP+7}")
        a(f"v_add_u32 v{V_WC+1}, 16, v{V_WC+1}")
        a(f"v_cmp_eq_u32 vcc, 4, v{V_WB+3}")
        a("s_nop 1")
        a(f"v_cndmask_b32 v{V_WC}, v{V_WC}, v{V_WC+1}, vcc")
        a(f"v_mad_u32_u24 v{V_WC}, v{V_WB+2}, 40, v{V_WC}")
        a(f"v_add_u32 v{V_WC}, v{V_WC}, v{V_TMP+4}")
        a(f"v_cndmask_b32 v{V_WB}, v{V_WC}, v{V_WB}, s[{S_T+6}:{S_T+7}]")
        a(f"v_mul_u32_u24 v{V_WB}, 1280, v{V_WB}")
        a(f"v_lshl_add_u32 v{V_WB}, v{V_TMP+2}, 4, v{V_WB}")
        a(f"v_add_u32 v{V_M+i}, s{S_T+4}, v{V_WB}")
    for i in range(5):
        a(f"s_add_u32 m0, s{S_T+5}, {i*1024}")
        a("s_nop 0")
        a(f"buffer_load_dwordx4 v{V_M+i}, s[{S_WS}:{S_WS+3}], 0 offen lds")
    a(f"v_lshrrev_b32 v{V_TMP}, 2, v{V_L}")
    a(f"v_mul_u32_u24 v{V_TMP}, 160, v{V_TMP}")
    a(f"v_and_b32 v{V_TMP+1}, 3, v{V_L}")
    a(f"v_lshl_add_u32 v{V_TMP+2}, v{V_TMP+1}, 4, v{V_TMP}")
    a(f"v_lshl_add_u32 v{V_TMP+3}, v{V_TMP+1}, 3, v{V_TMP}")
    a(f"v_add_u32 v{V_TMP+2}, s{S_T+5}, v{V_TMP+2}")
    a(f"v_add_u32 v{V_TMP+3}, s{S_T+5}, v{V_TMP+3}")
    a.srd_off(S_WS, S_PTR, S_PTR + 1, BBUF_OFF, BBUF_BYTES)
    a(f"s_mul_i32 s{S_T}, s{SB}, 40")
    a(f"s_mul_i32 s{S_T+1}, s{S_WV}, 5")
    a(f"s_add_u32 s{S_T}, s{S_T}, s{S_T+1}")
    a(f"s_lshl_b32 s{S_T}, s{S_T}, 10")
    a(f"v_lshlrev_b32 v{V_TMP+4}, 4, v{V_L}")
    a(f"v_add_u32 v{V_TMP+4}, s{S_T}, v{V_TMP+4}")
    a(f"v_add_u32 v{V_TMP+7}, 4096, v{V_TMP+4}")
    a("s_waitcnt vmcnt(0)")
    OB = V_ACC
    for nt in range(5):
        for rd in range(2):
            if nt < 4:
                a(f"ds_read_b64_tr_b16 {vr(OB+4*nt+2*rd,2)}, v{V_TMP+2} offset:{64*(nt//2)+8*(nt%2)+rd*2560}")
            else:
                a(f"ds_read_b64_tr_b16 {vr(OB+4*nt+2*rd,2)}, v{V_TMP+3} offset:{128+rd*2560}")
    a("s_waitcnt lgkmcnt(0)")
    for nt in range(4):
        a(f"buffer_store_dwordx4 {vr(OB+4*nt,4)}, v{V_TMP+4}, s[{S_WS}:{S_WS+3}], 0 offen offset:{nt*1024}{OSC}")
    a(f"buffer_store_dwordx4 {vr(OB+16,4)}, v{V_TMP+7}, s[{S_WS}:{S_WS+3}], 0 offen{OSC}")
    a.label(P + "_DONE")
    if timing:
        a("s_mov_b64 exec, -1")
        a("s_waitcnt vmcnt(0)")
        stamp_n[0] = 15
        stamp("end")
        a("s_memrealtime s[44:45]")
        a("s_waitcnt lgkmcnt(0)")
        a("s_lshl_b32 s46, s2, 7")
        a(f"s_lshl_b32 s47, s{S_WV}, 4")
        a("s_add_u32 s46, s46, s47")
        a(f"s_add_u32 s46, s46, {0x1320000}")
        a("v_mov_b32 v12, s46"); a("v_mov_b32 v14, s98"); a("v_mov_b32 v15, s44")
        a("s_mov_b64 s[44:45], exec"); a("s_mov_b64 exec, 1")
        a(f"global_store_dwordx2 v12, v[14:15], s[{S_PTR}:{S_PTR+1}]")
        a("s_mov_b64 exec, s[44:45]")
        a("s_cmp_eq_u32 s2, 0")
        a(f"s_cselect_b32 s40, {0x1300000}, 0")
        a("s_cmp_eq_u32 s2, 64")
        a(f"s_cselect_b32 s40, {0x1300000+4096}, s40")
        a("s_cmp_eq_u32 s40, 0")
        a(f"s_cbranch_scc1 {P}_END")
        a(f"s_lshl_b32 s41, s{S_WV}, 9")
        a("s_add_u32 s40, s40, s41")
        a(f"v_lshlrev_b32 v13, 2, v{V_L}")
        a("v_add_u32 v13, s40, v13")
        a(f"global_store_dword v13, v{V_STAMP}, s[{S_PTR}:{S_PTR+1}]")
    a.label(P + "_END")
    a("s_endpgm")
    return a.text(), 256, 100, 256, LDS_K1

if __name__ == "__main__":
    import sys
    body, vg, sg, ac, lds = gen_k1(timing=True, dis=sys.argv[2] if len(sys.argv) > 2 else '', SC={'a': ' sc0 sc1', 'b': ' sc1', 'c': '', 'd': ' sc0'}[sys.argv[3] if len(sys.argv) > 3 else 'a'])
    open(sys.argv[1], "w").write(file_text([("k1_kernel", 256, 512, lds)], [("k1_kernel", body, vg, sg, ac)]))
```

```python
import itertools
SLOT_SRC = [('k',0),('k',1),('k',2),('k',3), ('k',4),('k',5),('k',6),('k',7), ('k',8),('k',9),('k',8),('k',9),
            ('v',0),('v',1),('v',0),('v',1), ('v',2),('v',3),('v',4),('v',5), ('v',6),('v',7),('v',8),('v',9),
            ('L',0),('L',1),('L',2),('L',3), ('L',4),('L',5),('L',6),('L',7)]
SLOT_A = {}
for s, c in enumerate(SLOT_SRC):
    if c[0] == 'k' and s in (10, 11): continue
    if c[0] == 'v' and s in (12, 13): continue
    SLOT_A[c] = s
def quad_of(sec, hp, hf, i):
    qi = 10 * hp + 5 * hf + i
    return ((sec, qi // 2), qi % 2)
def unit(q):
    c, hi = q
    return (SLOT_A[c] & 3, hi)
def solve(hp, lights):
    nt = 4 if hp == 0 else 3
    singles = [('k', i) for i in range(5)] + [('v', i) for i in range(5)]
    def units(lg):
        if lg[0] in 'kv':
            return [unit(quad_of(lg[0], hp, 0, lg[1])), unit(quad_of(lg[0], hp, 1, lg[1]))]
        j, e = lg[1], lg[2]
        return [unit((lights[j][0], e)), unit((lights[j][1], e))]
    items = [('P', j) for j in range(len(lights))] + singles
    tiles = [[None] * 4 for _ in range(nt)]
    used = [set() for _ in range(nt)]
    def place(idx):
        if idx == len(items): return True
        it = items[idx]
        for T in range(nt):
            if it[0] == 'P':
                j = it[1]
                us = units(('L', j, 0)) + units(('L', j, 1))
                if len(set(us)) < 4 or any(u in used[T] for u in us): continue
                for p in (0, 2):
                    if tiles[T][p] is None and tiles[T][p + 1] is None:
                        tiles[T][p], tiles[T][p + 1] = ('L', j, 0), ('L', j, 1)
                        used[T].update(us)
                        if place(idx + 1): return True
                        tiles[T][p] = tiles[T][p + 1] = None
                        used[T].difference_update(us)
                        break
            else:
                us = units(it)
                if us[0] == us[1] or any(u in used[T] for u in us): continue
                for p in range(4):
                    if tiles[T][p] is None:
                        tiles[T][p] = it; used[T].update(us)
                        if place(idx + 1): return True
                        tiles[T][p] = None; used[T].difference_update(us)
                        break
        return False
    return tiles if place(0) else None
def find():
    Ls = list(range(8))
    for perm in itertools.permutations(Ls):
        l0 = [(('L', perm[0]), ('L', perm[1])), (('L', perm[2]), ('L', perm[3])), (('L', perm[4]), ('L', perm[5]))]
        l1 = [(('L', perm[6]), ('L', perm[7]))]
        t1 = solve(1, l1)
        if t1 is None: continue
        t0 = solve(0, l0)
        if t0 is None: continue
        return (l0, t0), (l1, t1)
    return None
(_L0, _T0), (_L1, _T1) = find()
assert _T0[1][2:] == [('k',0),('k',4)] and _T1[0][2:] == [('k',0),('k',4)]
LIGHTS = {0: [_L0[_T0[1][0][1]], _L0[_T0[0][0][1]], _L0[_T0[0][2][1]]], 1: [_L1[0]]}
_base = [[('L',0,0),('L',0,1),('k',0),('k',4)], _T0[2], _T0[3]]
assert _T1[1] == _T0[2] and _T1[2] == _T0[3]
TILES = {0: _base + [[('L',1,0),('L',1,1),('L',2,0),('L',2,1)]], 1: _base}
def tile_quad(hp, T, pos, hf):
    lg = TILES[hp][T][pos]
    if lg[0] in 'kv': return quad_of(lg[0], hp, hf, lg[1])
    return (LIGHTS[hp][lg[1]][hf], lg[2])
def where(hp, lg):
    for T, t in enumerate(TILES[hp]):
        for p, x in enumerate(t):
            if x == lg: return T, p
    raise KeyError(lg)
if __name__ == "__main__":
    for hp in (0, 1):
        print(hp, LIGHTS[hp])
        for T, t in enumerate(TILES[hp]):
            print("  ", T, t, [[unit(tile_quad(hp, T, p, hf)) for p in range(4)] for hf in (0, 1)])
```

```python
from asmlib import *
from layout import *
from common import *

R = 4
STG = 36864
LDS_K2 = R * STG
PRIV = 3 * STG
PW = 6400
NSTG = 19

def gen_k2(timing=False, pfx="K2", producer=True, SC=" sc0 sc1"):
    a = Asm()
    P = pfx
    S_A, S_B, S_X, S_O, S_B2, S_G = 16, 20, 24, 28, 32, 36
    S_T = 40
    S_WV, S_MT, S_JN, S_W, S_HP, S_TT, S_PB = 48, 49, 50, 51, 52, 53, 54
    S_SA, S_SB, S_LB = 56, 57, 58
    S_T0 = 94
    V_L, V_T, V_G, V_T31, V_HF = 1, 2, 3, 4, 5
    V_A = 6
    V_B0, V_B1 = 10, 11
    V_XO, V_B2O, V_XO4, V_B2O4 = 12, 13, 14, 15
    V_LA, V_LB = 16, 17
    V_STAMP = 19
    V_TMP = 20
    V_X = 30; V_BB = 40
    V_ACC = 52
    V_FR = 72
    V_E = 120
    stamp_n = [0]
    def stamp(name):
        if not timing: return
        i = stamp_n[0]; stamp_n[0] += 1
        a(f"s_memtime s[{S_T0+2}:{S_T0+3}]")
        a("s_waitcnt lgkmcnt(0)")
        a(f"s_sub_u32 s{S_T0+2}, s{S_T0+2}, s{S_T0}")
        a(f"v_writelane_b32 v{V_STAMP}, s{S_T0+2}, {i}")
    a("s_cmp_ge_u32 s2, 256")
    a(f"s_cbranch_scc1 {P}_END")
    a("s_load_dwordx2 s[4:5], s[0:1], 0")
    a("s_load_dwordx2 s[6:7], s[0:1], 16")
    a("s_load_dwordx4 s[8:11], s[0:1], 64")
    a("s_load_dwordx4 s[12:15], s[0:1], 80")
    if timing: a(f"s_memtime s[{S_T0}:{S_T0+1}]")
    if timing: a("s_memrealtime s[98:99]")
    a(f"v_and_b32 v{V_L}, 63, v0")
    a(f"v_lshrrev_b32 v{V_TMP}, 6, v0")
    a(f"v_and_b32 v{V_T}, 15, v0")
    a(f"v_readfirstlane_b32 s{S_WV}, v{V_TMP}")
    a(f"v_bfe_u32 v{V_G}, v0, 4, 2")
    a(f"v_and_b32 v{V_T31}, 31, v0")
    a(f"v_bfe_u32 v{V_HF}, v0, 5, 1")
    a(f"s_and_b32 s{S_W}, s{S_WV}, 3")
    a("s_and_b32 s40, s2, 7")
    a("s_lshr_b32 s41, s2, 3")
    a("s_lshr_b32 s42, s40, 1")
    a("s_lshl_b32 s42, s42, 3")
    a("s_lshr_b32 s43, s41, 2")
    a(f"s_add_u32 s{S_MT}, s42, s43")
    a("s_and_b32 s40, s40, 1")
    a("s_lshl_b32 s40, s40, 2")
    a("s_and_b32 s41, s41, 3")
    a(f"s_add_u32 s{S_JN}, s40, s41")
    a(f"v_lshlrev_b32 v{V_B0}, 4, v{V_L}")
    a(f"v_add_u32 v{V_B1}, 4096, v{V_B0}")
    a("s_waitcnt lgkmcnt(0)")
    a(f"s_cmp_ge_u32 s{S_WV}, 4")
    a(f"s_cbranch_scc1 {P}_LOADER")
    if producer:
        a(f"s_lshr_b32 s{S_HP}, s{S_W}, 1")
        a(f"s_and_b32 s{S_TT}, s{S_W}, 1")
        a(f"s_lshl_b32 s41, s{S_JN}, 1")
        a(f"s_add_u32 s41, s41, s{S_HP}")
        a(f"s_mul_i32 s{S_PB}, s{S_W}, {PW}")
        a(f"s_add_u32 s{S_PB}, s{S_PB}, {PRIV}")
        a("s_mul_i32 s42, s41, 1600")
        a.srd_off(S_G, 6, 7, "s42", 1600)
        WP = V_E
        a(f"buffer_load_dwordx4 {vr(WP,4)}, v{V_B0}, s[{S_G}:{S_G+3}], 0 offen")
        a(f"buffer_load_dwordx4 {vr(WP+4,4)}, v{V_B0}, s[{S_G}:{S_G+3}], 0 offen offset:1024")
        a("s_mul_i32 s42, s41, 6720")
        a(f"s_add_u32 s42, s42, {KVS_OFF}")
        a("s_nop 3")
        a.srd_off(S_G, 14, 15, "s42", 6720)
        KV = V_E + 8
        for i in range(7):
            a(f"buffer_load_dwordx4 {vr(KV+4*i,4)}, v{V_B0 if i < 4 else V_B1}, s[{S_G}:{S_G+3}], 0 offen offset:{(i%4)*1024}")
        a(f"s_lshl_b32 s40, s{S_MT}, 1")
        a(f"s_add_u32 s40, s40, s{S_TT}")
        a("s_mul_i32 s40, s40, 80")
        a("s_mul_i32 s42, s41, 5")
        a("s_add_u32 s40, s40, s42")
        a("s_lshl_b32 s40, s40, 9")
        a(f"v_lshl_add_u32 v{V_TMP}, v{V_T31}, 4, s40")
        a(f"v_mul_u32_u24 v{V_TMP+1}, {3*512}, v{V_HF}")
        a(f"v_add_u32 v{V_TMP+1}, v{V_TMP+1}, v{V_TMP}")
        a("s_nop 3")
        a.srd_off(S_G, 14, 15, QBUF_OFF, QBUF_BYTES)
        QF = V_E + 36
        a(f"buffer_load_dwordx4 {vr(QF,4)}, v{V_TMP+1}, s[{S_G}:{S_G+3}], 0 offen")
        a(f"buffer_load_dwordx4 {vr(QF+4,4)}, v{V_TMP+1}, s[{S_G}:{S_G+3}], 0 offen offset:512")
        a(f"buffer_load_dwordx4 {vr(QF+8,4)}, v{V_TMP}, s[{S_G}:{S_G+3}], 0 offen offset:1024")
    a.srd(S_X, 4, 5, 2621440)
    a.srd(S_O, 10, 11, 2621440)
    a.srd(S_B2, 8, 9, 1280)
    a(f"s_lshl_b32 s40, s{S_MT}, 6")
    a(f"s_lshl_b32 s42, s{S_W}, 4")
    a("s_add_u32 s40, s40, s42")
    a(f"v_add_u32 v{V_TMP}, s40, v{V_T}")
    a(f"v_mul_u32_u24 v{V_XO}, 1280, v{V_TMP}")
    a(f"s_mul_i32 s42, s{S_JN}, 160")
    a(f"v_lshl_add_u32 v{V_B2O}, v{V_G}, 4, s42")
    a(f"v_add_u32 v{V_XO}, v{V_XO}, v{V_B2O}")
    a(f"v_lshlrev_b32 v{V_TMP}, 3, v{V_G}")
    a(f"v_sub_u32 v{V_XO4}, v{V_XO}, v{V_TMP}")
    a(f"v_sub_u32 v{V_B2O4}, v{V_B2O}, v{V_TMP}")
    a(f"buffer_load_dwordx4 {vr(V_X,4)}, v{V_XO}, s[{S_X}:{S_X+3}], 0 offen")
    a(f"buffer_load_dwordx4 {vr(V_X+4,4)}, v{V_XO}, s[{S_X}:{S_X+3}], 0 offen offset:64")
    a(f"buffer_load_dwordx2 {vr(V_X+8,2)}, v{V_XO4}, s[{S_X}:{S_X+3}], 0 offen offset:128")
    a(f"buffer_load_dwordx4 {vr(V_BB,4)}, v{V_B2O}, s[{S_B2}:{S_B2+3}], 0 offen")
    a(f"buffer_load_dwordx4 {vr(V_BB+4,4)}, v{V_B2O}, s[{S_B2}:{S_B2+3}], 0 offen offset:64")
    a(f"buffer_load_dwordx2 {vr(V_BB+8,2)}, v{V_B2O4}, s[{S_B2}:{S_B2+3}], 0 offen offset:128")
    for i in range(20): a(f"v_mov_b32 v{V_ACC+i}, 0")
    if producer:
        WPL, ZL, KVL = 0, 1600, 2880
        Z = V_E + 48
        for i in range(4): a(f"v_mov_b32 v{Z+i}, 0")
        a(f"v_add_u32 v{V_TMP+2}, s{S_PB}, v{V_B0}")
        a(f"ds_write_b128 v{V_TMP+2}, {vr(Z,4)} offset:{ZL}")
        a(f"ds_write_b128 v{V_TMP+2}, {vr(Z,4)} offset:{ZL+256}")
        T0 = V_TMP + 3
        a(f"v_bfe_u32 v{T0}, v{V_L}, 4, 1")
        a(f"v_lshlrev_b32 v{T0}, 2, v{T0}")
        a(f"v_and_b32 v{T0+1}, 3, v{V_L}")
        a(f"v_add_u32 v{T0}, v{T0}, v{T0+1}")
        a(f"v_and_b32 v{T0+1}, 1, v{T0}")
        a(f"v_lshrrev_b32 v{T0}, 1, v{T0}")
        a(f"v_bfe_u32 v{T0+2}, v{V_L}, 2, 2")
        a(f"v_mul_u32_u24 v{T0+2}, 40, v{T0+2}")
        a(f"v_lshl_add_u32 v{T0+2}, v{T0}, 3, v{T0+2}")
        a(f"v_mul_u32_u24 v{T0+3}, 960, v{T0+1}")
        a(f"v_add3_u32 v{T0+2}, v{T0+2}, v{T0+3}, s{S_PB}")
        AD01, AD20, AD21, AZ = V_E + 52, V_E + 53, V_E + 54, V_E + 55
        a(f"s_add_u32 s42, s{S_PB}, {ZL}")
        a(f"v_mov_b32 v{AZ}, s42")
        a(f"v_cmp_eq_u32 vcc, v{T0+1}, v{V_HF}")
        a(f"v_cmp_eq_u32 s[44:45], 0, v{T0+1}")
        a(f"v_add_u32 v{T0+3}, 640, v{T0+2}")
        a(f"v_subrev_u32 v{T0+4}, 160, v{T0+2}")
        a(f"v_cndmask_b32 v{AD01}, v{AZ}, v{T0+2}, vcc")
        a("s_and_b64 s[46:47], vcc, s[44:45]")
        a("s_andn2_b64 s[44:45], vcc, s[44:45]")
        a("s_nop 1")
        a(f"v_cndmask_b32 v{AD20}, v{AZ}, v{T0+3}, s[46:47]")
        a(f"v_cndmask_b32 v{AD21}, v{AZ}, v{T0+4}, s[44:45]")
        a(f"v_lshrrev_b32 v{T0}, 3, v{V_T31}")
        a(f"v_bfe_u32 v{T0+1}, v{V_T31}, 2, 1")
        a(f"v_and_b32 v{T0+2}, 3, v{V_T31}")
        a(f"v_lshl_add_u32 v{T0+3}, v{T0}, 2, v{T0+2}")
        a(f"v_mul_u32_u24 v{T0+3}, 80, v{T0+3}")
        a(f"v_mul_u32_u24 v{T0+4}, 1680, v{T0+1}")
        a(f"s_add_u32 s42, s{S_PB}, {KVL}")
        a(f"v_add3_u32 v{T0+3}, v{T0+3}, v{T0+4}, s42")
        AX3, AY3 = V_E + 56, V_E + 57
        a(f"v_cmp_eq_u32 vcc, v{T0+1}, v{V_HF}")
        a("s_nop 1")
        a(f"v_cndmask_b32 v{AX3}, v{AZ}, v{T0+3}, vcc")
        a(f"v_add_u32 v{T0+3}, 1280, v{T0+3}")
        a(f"v_lshl_add_u32 v{T0+5}, v{T0}, 2, v{T0+2}")
        a(f"v_cmp_ge_u32 s[44:45], 4, v{T0+5}")
        a("s_and_b64 vcc, vcc, s[44:45]")
        a("s_nop 1")
        a(f"v_cndmask_b32 v{AY3}, v{AZ}, v{T0+3}, vcc")
        a("s_waitcnt vmcnt(16)")
        a(f"ds_write_b128 v{V_TMP+2}, {vr(WP,4)} offset:{WPL}")
        a(f"v_cmp_gt_u32 vcc, 36, v{V_L}")
        a("s_and_saveexec_b64 s[44:45], vcc")
        a(f"ds_write_b128 v{V_TMP+2}, {vr(WP+4,4)} offset:{WPL+1024}")
        a("s_mov_b64 exec, s[44:45]")
        a(f"v_lshlrev_b32 v{V_TMP+1}, 3, v{V_L}")
        a(f"v_add_u32 v{V_TMP+1}, s{S_PB}, v{V_TMP+1}")
        a("s_waitcnt vmcnt(9)")
        KP = V_E + 60
        for i in range(7):
            a(f"v_cvt_pk_bf16_f32 v{KP+2*i}, v{KV+4*i}, v{KV+4*i+1}")
            a(f"v_cvt_pk_bf16_f32 v{KP+2*i+1}, v{KV+4*i+2}, v{KV+4*i+3}")
        for i in range(6):
            a(f"ds_write_b64 v{V_TMP+1}, {vr(KP+2*i,2)} offset:{KVL+i*512}")
        a(f"v_cmp_gt_u32 vcc, 36, v{V_L}")
        a("s_and_saveexec_b64 s[44:45], vcc")
        a(f"ds_write_b64 v{V_TMP+1}, {vr(KP+12,2)} offset:{KVL+6*512}")
        a("s_mov_b64 exec, s[44:45]")
        a("s_waitcnt lgkmcnt(0)")
        A2 = V_E + 76
        for xy in range(2):
            for s_ in range(3):
                for rd in range(2):
                    if s_ < 2: a(f"ds_read_b64_tr_b16 {vr(A2+(xy*3+s_)*4+2*rd,2)}, v{AD01} offset:{s_*320+rd*160+xy*32}")
                    else: a(f"ds_read_b64_tr_b16 {vr(A2+(xy*3+s_)*4+2*rd,2)}, v{AD20 if rd == 0 else AD21} offset:{xy*32}")
        PX, PY = V_E, V_E + 16
        a("s_waitcnt vmcnt(6) lgkmcnt(0)")
        for xy, PP in ((0, PX), (1, PY)):
            for s_ in range(3):
                c = "0" if s_ == 0 else vr(PP, 16)
                a(f"v_mfma_f32_32x32x16_bf16 {vr(PP,16)}, {vr(A2+(xy*3+s_)*4,4)}, {vr(QF+4*s_,4)}, {c}")
        A3 = V_FR
        for xy, AD in ((0, AX3), (1, AY3)):
            for s3 in range(5):
                a(f"ds_read_b128 {vr(A3+(xy*5+s3)*4,4)}, v{AD} offset:{s3*16}")
        VC = V_TMP + 9
        a(f"v_mov_b32 v{VC}, {hex(LOG2E)}")
        a("s_nop 7"); a("s_nop 3")
        stamp("before softmax")
        p_ = [PX + i for i in range(16)] + [PY + i for i in range(4)]
        EP, EM, PH = V_E + 32, V_E + 52, V_E + 76 + 24
        softmax20(a, p_, VC, EP, EM, PH, V_TMP + 3)
        X3, Y3 = V_E, V_E + 16
        a("s_waitcnt lgkmcnt(0)")
        for xy, PP in ((0, X3), (1, Y3)):
            for s3 in range(5):
                c = "0" if s3 == 0 else vr(PP, 16)
                a(f"v_mfma_f32_32x32x16_bf16 {vr(PP,16)}, {vr(A3+(xy*5+s3)*4,4)}, {vr(PH+4*s3,4)}, {c}")
        a(f"s_lshl_b32 s41, s{S_JN}, 1")
        a(f"s_add_u32 s41, s41, s{S_HP}")
        a("s_mul_i32 s41, s41, 5")
        a("s_add_u32 s41, s41, 216")
        a(f"s_lshl_b32 s40, s{S_MT}, 2")
        a(f"s_lshl_b32 s42, s{S_TT}, 1")
        a("s_add_u32 s40, s40, s42")
        a(f"v_lshrrev_b32 v{T0}, 4, v{V_T31}")
        a(f"v_add_u32 v{T0}, s40, v{T0}")
        a(f"v_mul_u32_u24 v{T0}, {KS*1024}, v{T0}")
        a(f"v_and_b32 v{T0+1}, 15, v{V_T31}")
        a(f"v_lshl_add_u32 v{T0}, v{T0+1}, 4, v{T0}")
        def caddr(dst, cexpr_reg):
            a(f"v_lshrrev_b32 v{T0+2}, 2, v{cexpr_reg}")
            a(f"v_and_b32 v{T0+3}, 3, v{cexpr_reg}")
            a(f"v_lshl_add_u32 v{dst}, v{T0+2}, 10, v{T0}")
            a(f"v_lshl_add_u32 v{dst}, v{T0+3}, 8, v{dst}")
        SA0, SA1, SA2 = V_E + 32, V_E + 33, V_E + 34
        a(f"v_lshl_add_u32 v{T0+4}, v{V_HF}, 1, s41")
        caddr(SA0, T0 + 4)
        a(f"v_add_u32 v{T0+4}, 1, v{T0+4}")
        caddr(SA1, T0 + 4)
        a(f"s_add_u32 s41, s41, 4")
        a(f"v_mov_b32 v{T0+4}, s41")
        caddr(SA2, T0 + 4)
        a.srd_off(S_G, 14, 15, ABUF_OFF, ABUF_BYTES)
        a("s_nop 7"); a("s_nop 7")
        a(f"v_add_f32 v{T0}, 0x358637bd, v{Y3+4}")
        a(f"v_rcp_f32 v{T0}, v{T0}")
        a("s_nop 0")
        OP = V_E + 36
        C4 = V_E + 44
        for i in range(16): a(f"v_mul_f32 v{X3+i}, v{X3+i}, v{T0}")
        for i in range(4): a(f"v_mul_f32 v{Y3+i}, v{Y3+i}, v{T0}")
        for p in range(8): a(f"v_cvt_pk_bf16_f32 v{OP+p}, v{X3+2*p}, v{X3+2*p+1}")
        for p in range(2):
            a(f"v_cvt_pk_bf16_f32 v{C4+p}, v{Y3+2*p}, v{Y3+2*p+1}")
            a(f"v_cvt_pk_bf16_f32 v{C4+2+p}, v{Y3+2*p}, v{Y3+2*p+1}")
        a(f"buffer_store_dwordx4 {vr(OP,4)}, v{SA0}, s[{S_G}:{S_G+3}], 0 offen{SC}")
        a(f"buffer_store_dwordx4 {vr(OP+4,4)}, v{SA1}, s[{S_G}:{S_G+3}], 0 offen{SC}")
        a(f"v_permlane32_swap_b32 v{C4}, v{C4+2}")
        a(f"v_permlane32_swap_b32 v{C4+1}, v{C4+3}")
        a("s_mov_b64 s[44:45], exec")
        a("s_mov_b32 exec_hi, 0")
        a(f"buffer_store_dwordx4 {vr(C4,4)}, v{SA2}, s[{S_G}:{S_G+3}], 0 offen{SC}")
        a("s_mov_b64 exec, s[44:45]")
        stamp("o stored")
    a(f"s_lshl_b32 s40, s{S_W}, 10")
    a("s_add_u32 s40, s40, 5120")
    a(f"v_add_u32 v{V_LA}, s40, v{V_B0}")
    a(f"v_add_u32 v{V_LA+2}, 0x10000, v{V_LA}")
    a(f"v_add_u32 v{V_E+100}, 0x20000, v{V_LA}")
    a(f"v_add_u32 v{V_E+101}, 0x10000, v{V_B0}")
    a(f"v_add_u32 v{V_E+102}, 0x20000, v{V_B0}")
    LA = [V_LA, V_LA + 2, V_E + 100]; LB = [V_B0, V_E + 101, V_E + 102]
    def fr(buf, k): return V_FR + buf * 24 + k * 4
    def reads(i, j, buf):
        base = (i % R) * STG + j * 9216
        L = []
        off = base
        L.append(f"ds_read_b128 {vr(fr(buf,0),4)}, v{LA[off >> 16]} offset:{off & 0xffff}" if ((off & 0xffff) + 0) < 65536 else None)
        for nt in range(5):
            o = base + nt * 1024
            L.append(f"ds_read_b128 {vr(fr(buf,1+nt),4)}, v{LB[o >> 16]} offset:{o & 0xffff}")
        return L
    if producer:
        a("s_waitcnt vmcnt(0)")
        stamp("o drained")
    a("s_waitcnt lgkmcnt(0)")
    a("s_barrier")
    stamp("B0")
    if producer:
        L = P + "_NOARR"
        a(f"s_cmp_lg_u32 s{S_WV}, 0")
        a(f"s_cbranch_scc1 {L}")
        a(f"s_lshl_b32 s40, s{S_MT}, 3")
        a(f"v_mov_b32 v{V_TMP}, s40")
        a(f"v_mov_b32 v{V_TMP+1}, 1")
        a("s_mov_b64 s[44:45], exec")
        a("s_mov_b64 exec, 1")
        a(f"global_atomic_add v{V_TMP}, v{V_TMP+1}, s[12:13] sc1")
        a("s_mov_b64 exec, s[44:45]")
        a.label(L)
    NB = 4
    for jj in range(3):
        for x in reads(0, jj, jj): a(x)
    NK = NSTG * 4
    for n in range(NK):
        i, j = divmod(n, 4)
        buf = n % NB
        m = n + 3
        if j == 1 and i < NSTG - 1:
            a("s_waitcnt lgkmcnt(0)")
            a("s_barrier")
            if timing:
                a(f"s_memtime s[{S_T0+2}:{S_T0+3}]")
                a("s_waitcnt lgkmcnt(0)")
                a(f"s_sub_u32 s{S_T0+2}, s{S_T0+2}, s{S_T0}")
                a(f"v_writelane_b32 v{V_STAMP}, s{S_T0+2}, {16+i}")
        else:
            outstanding = min(2, NK - 1 - n)
            a(f"s_waitcnt lgkmcnt({6*outstanding})")
        rl = reads(m // 4, m % 4, m % NB) if m < NK else []
        for nt in range(5):
            a(f"v_mfma_f32_16x16x32_bf16 {vr(V_ACC+4*nt,4)}, {vr(fr(buf,1+nt),4)}, {vr(fr(buf,0),4)}, {vr(V_ACC+4*nt,4)}")
            if nt == 0:
                for x in rl[:3]: a(x)
            if nt == 1:
                for x in rl[3:]: a(x)
    stamp("main end")
    Rr = V_ACC
    T = V_TMP
    def add_bf16(base_reg, dst_list):
        for p in range(len(dst_list) // 2):
            a(f"v_lshlrev_b32 v{T}, 16, v{base_reg+p}")
            a(f"v_and_b32 v{T+1}, 0xffff0000, v{base_reg+p}")
            a(f"v_add_f32 v{dst_list[2*p]}, v{dst_list[2*p]}, v{T}")
            a(f"v_add_f32 v{dst_list[2*p+1]}, v{dst_list[2*p+1]}, v{T+1}")
    a("s_waitcnt vmcnt(0)")
    SB_ = V_E
    for p in range(10):
        a(f"v_lshlrev_b32 v{T}, 16, v{V_X+p}")
        a(f"v_and_b32 v{T+1}, 0xffff0000, v{V_X+p}")
        a(f"v_lshlrev_b32 v{T+2}, 16, v{V_BB+p}")
        a(f"v_and_b32 v{T+3}, 0xffff0000, v{V_BB+p}")
        a(f"v_add_f32 v{SB_+2*p}, v{T}, v{T+2}")
        a(f"v_add_f32 v{SB_+2*p+1}, v{T+1}, v{T+3}")
    for i in range(20): a(f"v_add_f32 v{Rr+i}, v{Rr+i}, v{SB_+i}")
    O = V_E + 24
    for p in range(10): a(f"v_cvt_pk_bf16_f32 v{O+p}, v{Rr+2*p}, v{Rr+2*p+1}")
    a(f"buffer_store_dwordx4 {vr(O,4)}, v{V_XO}, s[{S_O}:{S_O+3}], 0 offen")
    a(f"buffer_store_dwordx4 {vr(O+4,4)}, v{V_XO}, s[{S_O}:{S_O+3}], 0 offen offset:64")
    a(f"buffer_store_dwordx2 {vr(O+8,2)}, v{V_XO4}, s[{S_O}:{S_O+3}], 0 offen offset:128")
    if timing:
        a("s_waitcnt vmcnt(0)")
        stamp_n[0] = 15
        stamp("end")
        a("s_memrealtime s[44:45]")
        a("s_waitcnt lgkmcnt(0)")
        a("s_lshl_b32 s46, s2, 7")
        a(f"s_lshl_b32 s47, s{S_WV}, 4")
        a("s_add_u32 s46, s46, s47")
        a(f"s_add_u32 s46, s46, {0x1330000}")
        a("v_mov_b32 v12, s46"); a("v_mov_b32 v14, s98"); a("v_mov_b32 v15, s44")
        a("s_mov_b64 s[44:45], exec"); a("s_mov_b64 exec, 1")
        a(f"global_store_dwordx2 v12, v[14:15], s[14:15]")
        a("s_mov_b64 exec, s[44:45]")
        a("s_cmp_lg_u32 s2, 5")
        a(f"s_cbranch_scc1 {P}_END")
        a(f"s_cmp_lg_u32 s{S_WV}, 0")
        a(f"s_cbranch_scc1 {P}_END")
        a(f"v_lshlrev_b32 v13, 2, v{V_L}")
        a(f"v_add_u32 v13, {0x1310000}, v13")
        a(f"global_store_dword v13, v{V_STAMP}, s[14:15]")
    a("s_endpgm")
    a.label(P + "_LOADER")
    a(f"v_mov_b32 v{V_A}, v{V_B0}")
    for mt in range(1, 4):
        a(f"v_add_u32 v{V_A+mt}, {mt*KS*1024}, v{V_B0}")
    a(f"s_mul_i32 s40, s{S_MT}, {4*KS*1024}")
    a.srd_off(S_A, 14, 15, "s40", 4*KS*1024)
    a(f"s_mul_i32 s40, s{S_JN}, 5120")
    a(f"s_add_u32 s41, s40, {BBUF_OFF}")
    a.srd_off(S_B, 14, 15, "s41", 0)
    a(f"s_sub_u32 s{S_B+2}, {BBUF_BYTES}, s40")
    a(f"s_lshl_b32 s{S_SA}, s{S_W}, 10")
    a(f"s_mul_i32 s{S_SB}, s{S_W}, 40960")
    a(f"s_mul_i32 s{S_LB}, s{S_W}, 9216")
    def set_off(i):
        if i == 0: return
        if i < 13 or i > 14:
            a(f"s_add_u32 s{S_SA}, s{S_SA}, 4096"); a(f"s_add_u32 s{S_SB}, s{S_SB}, 163840")
        elif i == 13:
            a(f"s_add_u32 s{S_SA}, s{S_SA}, 4096"); a(f"s_add_u32 s{S_SB}, s{S_SB}, 163840")
            a(f"s_cmp_lt_u32 s{S_W}, 2")
            a(f"s_cselect_b32 s{S_SA}, s{S_SA}, 0x7f000000")
            a(f"s_cselect_b32 s{S_SB}, s{S_SB}, 0x7f000000")
        else:
            a(f"s_lshl_b32 s{S_SA}, s{S_W}, 10"); a(f"s_add_u32 s{S_SA}, s{S_SA}, {54*1024}")
            a(f"s_mul_i32 s{S_SB}, s{S_W}, 40960"); a(f"s_add_u32 s{S_SB}, s{S_SB}, {54*40960}")
    def issue(i):
        set_off(i)
        base = (i % R) * STG
        fl = " sc1" if (i >= 14 and producer) else ""
        a(f"s_add_u32 m0, s{S_LB}, {base}")
        a("s_nop 0")
        for nt in range(4):
            a(f"buffer_load_dwordx4 v{V_B0}, s[{S_B}:{S_B+3}], s{S_SB} offen offset:{nt*1024} lds")
        a(f"s_add_u32 m0, s{S_LB}, {base + 4096}")
        a("s_nop 0")
        a(f"buffer_load_dwordx4 v{V_B1}, s[{S_B}:{S_B+3}], s{S_SB} offen lds")
        for mt in range(4):
            a(f"s_add_u32 m0, s{S_LB}, {base + 5120 + mt*1024}")
            a("s_nop 0")
            a(f"buffer_load_dwordx4 v{V_A+mt}, s[{S_A}:{S_A+3}], s{S_SA} offen{fl} lds")
    def poll():
        Lp = P + "_POLL"
        a(f"s_lshl_b32 s40, s{S_MT}, 3")
        a(f"v_mov_b32 v{V_TMP}, s40")
        a("s_mov_b32 s42, 0")
        a.label(Lp)
        a(f"global_load_dword v{V_TMP+1}, v{V_TMP}, s[12:13] sc1")
        a("s_waitcnt vmcnt(0)")
        a(f"v_readfirstlane_b32 s41, v{V_TMP+1}")
        a("s_add_u32 s42, s42, 1")
        a("s_cmp_gt_u32 s42, 4000")
        a(f"s_cbranch_scc1 {Lp}_OK")
        a("s_cmp_ge_u32 s41, 8")
        a(f"s_cbranch_scc1 {Lp}_OK")
        a("s_sleep 2")
        a(f"s_branch {Lp}")
        a.label(Lp + "_OK")
    for i in range(3): issue(i)
    a("s_waitcnt vmcnt(18)")
    a("s_barrier")
    issue(3)
    for i in range(NSTG - 1):
        after = min(2, NSTG - 1 - (i + 1))
        if not (producer and i + 4 > 14 and i + 4 - 3 <= 14 and False):
            a(f"s_waitcnt vmcnt({9*after})")
        a("s_barrier")
        if i + 4 < NSTG:
            if i + 4 == 14 and producer:
                poll()
            issue(i + 4)
    a.label(P + "_END")
    a("s_endpgm")
    return a.text(), 256, 100, 256, LDS_K2

if __name__ == "__main__":
    import sys
    body, vg, sg, ac, lds = gen_k2(timing=True, producer=(len(sys.argv) < 3))
    open(sys.argv[1], "w").write(file_text([("k2_kernel", 256, 512, lds)], [("k2_kernel", body, vg, sg, ac)]))
```

```python
S, D, F, H, DH = 2048, 640, 1728, 32, 20
KS_H = 54
KS_O = 20
KS = KS_H + KS_O
ABUF_OFF = 0
ABUF_BYTES = 128 * KS * 1024
BBUF_OFF = 0xA00000
BBUF_BYTES = KS * 40 * 1024
QBUF_OFF = 0xE00000
QBUF_BYTES = 64 * 80 * 512
KVS_OFF = 0x1200000
KVS_BYTES = 32 * 21 * 40 * 4

def o_chunk_channels(c):
    P, i = divmod(c, 5)
    a, b = 40 * P, 40 * P + 20
    if i == 0: return list(range(a, a + 8))
    if i == 1: return list(range(a + 8, a + 16))
    if i == 2: return list(range(b, b + 8))
    if i == 3: return list(range(b + 8, b + 16))
    return list(range(a + 16, a + 20)) + list(range(b + 16, b + 20))

def k2_col_map(nt, i):
    g, r = divmod(i, 4)
    if nt < 4:
        return 32 * (nt // 2) + 8 * g + 4 * (nt % 2) + r
    return 64 + i
STATG_OFF = 0x1240000
STATG_BYTES = 2048 * 8
CSG_OFF = 0x1250000
CSG_BYTES = 16 * 10 * 1024
```

```python
import sys
from asmlib import *
import k1, k2c
def build(path, timing=False, OSC=''):
    b1, v1, s1, a1, l1 = k1.gen_k1(timing=timing, OSC=OSC)
    b2, v2, s2, a2, l2 = k2c.gen_k2(timing=timing)
    txt = file_text([("k1_kernel", 256, 512, l1), ("k2_kernel", 256, 512, l2)], [("k1_kernel", b1, v1, s1, a1), ("k2_kernel", b2, v2, s2, a2)])
    open(path, "w").write(txt)
if __name__ == "__main__":
    build(sys.argv[1], timing=(len(sys.argv) > 2 and sys.argv[2] == 't'), OSC={'': '', 'a': ' sc0 sc1', 'b': ' sc1', 'n': ' nt'}[sys.argv[3] if len(sys.argv) > 3 else ''])
```

```python
from asmlib import *
from layout import *
from k1tables import SLOT_A, TILES, LIGHTS, tile_quad, where

CS = 0
WPHI = 1024
ZERO = WPHI + 3200
CSP = 6144
XOFF = 10240; XSTG = 16384
WOFF = XOFF + 3 * XSTG; WSTG = 32768
LDS_K1 = WOFF + 3 * WSTG
PHI = XOFF
VP = PHI + 40960
PREP = VP + 24576
LOG2E = 0x3fb8aa3b
ONES2 = 0x3f803f80

def gen_k1(timing=False, dis='', pfx="K1", SC=' sc0 sc1', OSC=''):
    a = Asm()
    S_X, S_W0 = 16, 20
    S_WS = 36
    S_T = 40
    S_WV, S_MT, S_GI, S_HP, S_TQ = 48, 49, 50, 51, 52
    S_XRD, S_WRD = 53, 54
    S_XSO = 55
    S_WSO = 56
    S_WSTEP = 60
    S_I = 64; S_M0X, S_M0W = 65, 66; S_SIG = 67
    S_PTR = 68
    S_M2 = 80
    S_ROLE = 86; S_CSK = 87
    S_ZFW = 91; S_RSO = 92; S_ZW = 93
    S_N, S_CNT, S_B = S_M2 + 3, S_M2 + 4, S_M2 + 5
    S_CSPUB, S_C2W, S_NM = 88, 89, 90
    S_T0 = 94
    V_L = 1; V_T31 = 2; V_HF = 3
    V_XV = 4; V_WV = 5
    V_XA = 9
    V_WB = 11; V_WC = 15
    V_STAMP = 19
    V_TMP = 20
    V_XF = 30; V_WF = 54
    V_ONES = 102
    V_ACC = 104
    V_E = 168
    V_NON = 168 + 75
    V_M = 248
    V_MN0, V_RS0, V_MN1, V_RS1 = 248, 249, 250, 251
    P = pfx

    stamp_n = [0]
    def stamp(name):
        if not timing: return
        i = stamp_n[0]; stamp_n[0] += 1
        a(f"s_memtime s[{S_T0+2}:{S_T0+3}]")
        a("s_waitcnt lgkmcnt(0)")
        a(f"s_sub_u32 s{S_T0+2}, s{S_T0+2}, s{S_T0}")
        a(f"v_writelane_b32 v{V_STAMP}, s{S_T0+2}, {i}")
    def pst(lane):
        if timing and 'P' in dis:
            a(f"s_memtime s[{S_T0+2}:{S_T0+3}]")
            a("s_waitcnt lgkmcnt(0)")
            a(f"s_sub_u32 s{S_T0+2}, s{S_T0+2}, s{S_T0}")
            a(f"v_writelane_b32 v{V_STAMP}, s{S_T0+2}, {lane}")
    def xf(buf, tt): return V_XF + buf * 8 + tt * 4
    def wf(buf, T): return V_WF + buf * 16 + T * 4
    def acc(i): return V_ACC + 16 * i
    def flag_add(kind):
        if kind == 'x': a(f"s_lshl_b32 s{S_T+4}, s{S_MT}, 2")
        elif kind == 'c':
            a(f"s_lshl_b32 s{S_T+4}, s{S_ROLE}, 2"); a(f"s_add_u32 s{S_T+4}, s{S_T+4}, 64")
        else: a(f"s_mov_b32 s{S_T+4}, 128")
        a(f"v_mov_b32 v{V_TMP+8}, s{S_T+4}")
        a(f"v_mov_b32 v{V_TMP+9}, 1")
        a(f"s_mov_b64 s[{S_T+6}:{S_T+7}], exec")
        a("s_mov_b64 exec, 1")
        a(f"global_atomic_add v{V_TMP+8}, v{V_TMP+9}, s[{S_PTR+2}:{S_PTR+3}] sc1")
        a(f"s_mov_b64 exec, s[{S_T+6}:{S_T+7}]")

    def advance_slot():
        a(f"s_add_u32 s{S_XRD}, s{S_XRD}, {XSTG}")
        a(f"s_add_u32 s{S_WRD}, s{S_WRD}, {WSTG}")
        a(f"s_cmp_eq_u32 s{S_XRD}, {XOFF+3*XSTG}")
        a(f"s_cselect_b32 s{S_XRD}, {XOFF}, s{S_XRD}")
        a(f"s_cselect_b32 s{S_WRD}, 0, s{S_WRD}")
    def dma_stage(sx, sw):
        a(f"s_add_u32 m0, s{S_M0X}, s{sx}")
        a(f"s_add_u32 s{S_T}, s{S_XSO}, 81920")
        a(f"buffer_load_dwordx4 v{V_XV}, s[{S_X}:{S_X+3}], s{S_XSO} offen lds")
        a(f"s_add_u32 m0, m0, 8192")
        a(f"s_add_u32 s{S_T+1}, s{S_M0W}, s{sw}")
        a(f"buffer_load_dwordx4 v{V_XV}, s[{S_X}:{S_X+3}], s{S_T} offen lds")
        for p in range(4):
            a(f"s_add_u32 m0, s{S_T+1}, {p*8192}")
            a("s_nop 0")
            a(f"buffer_load_dwordx4 v{V_WV+p}, s[{S_W0+4*p}:{S_W0+4*p+3}], s{S_WSO+p} offen lds")
        next_sigma()
    def next_sigma(xonly=False, wonly=False):
        if not wonly: a(f"s_add_u32 s{S_XSO}, s{S_XSO}, 128")
        if not xonly:
            for p in range(4): a(f"s_add_u32 s{S_WSO+p}, s{S_WSO+p}, s{S_WSTEP+p}")
        if xonly:
            a(f"s_cmp_eq_u32 s{S_XSO}, 1280"); a(f"s_cselect_b32 s{S_XSO}, 0, s{S_XSO}")
            return
        a(f"s_add_u32 s{S_SIG}, s{S_SIG}, 1")
        a(f"s_cmp_eq_u32 s{S_SIG}, 10")
        a(f"s_cselect_b32 s{S_SIG}, 0, s{S_SIG}")
        if not wonly: a(f"s_cselect_b32 s{S_XSO}, 0, s{S_XSO}")
        for p in range(4): a(f"s_cselect_b32 s{S_WSO+p}, 0, s{S_WSO+p}")
    def dma_x_now(st):
        a(f"s_add_u32 m0, s{S_M0X}, {XOFF + st*XSTG}")
        a(f"s_add_u32 s{S_T}, s{S_XSO}, 81920")
        a(f"buffer_load_dwordx4 v{V_XV}, s[{S_X}:{S_X+3}], s{S_XSO} offen lds")
        a(f"s_add_u32 m0, m0, 8192")
        a("s_nop 0")
        a(f"buffer_load_dwordx4 v{V_XV}, s[{S_X}:{S_X+3}], s{S_T} offen lds")
    def dma_w_now(st):
        for p in range(4):
            a(f"s_add_u32 m0, s{S_M0W}, {st*WSTG + p*8192}")
            a("s_nop 0")
            a(f"buffer_load_dwordx4 v{V_WV+p}, s[{S_W0+4*p}:{S_W0+4*p+3}], s{S_WSO+p} offen lds")
    def prologue_w():
        for p in range(4): a(f"s_mul_i32 s{S_WSO+p}, s{S_SIG}, s{S_WSTEP+p}")
        dma_w_now(0)
        next_sigma()
    def prologue_w2():
        a(f"buffer_load_dwordx4 {vr(V_E+64,4)}, v{V_M+6}, s[{S_X}:{S_X+3}], s{S_RSO} offen")
        a(f"buffer_load_dwordx4 {vr(V_E+68,4)}, v{V_M+7}, s[{S_X}:{S_X+3}], s{S_RSO} offen")
        dma_x_now(1); dma_w_now(1)
        next_sigma()

    def xrow_stats():
        R = V_E + 64
        S1, S2, ON = V_TMP + 2, V_TMP + 3, V_TMP + 4
        a(f"v_mov_b32 v{ON}, {hex(ONES2)}")
        a(f"v_mov_b32 v{S1}, 0"); a(f"v_mov_b32 v{S2}, 0")
        for i in range(8):
            a(f"v_dot2_f32_bf16 v{S1}, v{R+i}, v{ON}, v{S1}")
            a(f"v_dot2_f32_bf16 v{S2}, v{R+i}, v{R+i}, v{S2}")
        for dpp in ("row_shr:1", "row_shr:2", "row_shr:4", "row_shr:8", "row_bcast:15 row_mask:0xa", "row_bcast:31 row_mask:0xc"):
            a("s_nop 1")
            a(f"v_add_f32_dpp v{S1}, v{S1}, v{S1} {dpp}" + (" row_mask:0xf" if "mask" not in dpp else "") + " bank_mask:0xf")
            a(f"v_add_f32_dpp v{S2}, v{S2}, v{S2} {dpp}" + (" row_mask:0xf" if "mask" not in dpp else "") + " bank_mask:0xf")
        a(f"v_mul_f32 v{V_E+72}, 0xbacccccd, v{S1}")
        a(f"v_mul_f32 v{S2}, 0x3acccccd, v{S2}")
        a(f"v_fma_f32 v{S2}, -v{V_E+72}, v{V_E+72}, v{S2}")
        a(f"v_max_f32 v{S2}, 0, v{S2}")
        a(f"v_add_f32 v{S2}, 0x3727c5ac, v{S2}")
        a(f"v_rsq_f32 v{V_E+73}, v{S2}")
        a(f"s_lshl_b32 s{S_T}, s{S_MT}, 7")
        a(f"s_lshl_b32 s{S_T+1}, s{S_ROLE}, 3")
        a(f"s_add_u32 s{S_T}, s{S_T}, s{S_T+1}")
        a(f"s_add_u32 s{S_T}, s{S_T}, s{S_WV}")
        a(f"s_lshl_b32 s{S_T}, s{S_T}, 4")
        a(f"s_add_u32 s{S_RSO}, s{S_T}, {STATG_OFF}")
    def xrow_store():
        a(f"v_mov_b32 v{V_E+74}, v{V_NON}")
        a(f"v_mov_b32 v{V_TMP+8}, s{S_RSO}")
        a(f"s_mov_b64 s[{S_T+6}:{S_T+7}], exec")
        a("s_mov_b32 exec_lo, 0"); a("s_mov_b32 exec_hi, 0x80000000")
        a(f"global_store_dwordx4 v{V_TMP+8}, {vr(V_E+72,4)}, s[{S_PTR}:{S_PTR+1}]{SC}")
        a(f"s_mov_b64 exec, s[{S_T+6}:{S_T+7}]")

    def dma_pieces(sx, sw):
        G = []
        G.append([f"s_add_u32 m0, s{S_M0X}, s{sx}", f"s_add_u32 s{S_T}, s{S_XSO}, 81920",
                  f"buffer_load_dwordx4 v{V_XV}, s[{S_X}:{S_X+3}], s{S_XSO} offen lds"])
        G.append([f"s_add_u32 m0, s{S_M0X}, s{sx}", f"s_add_u32 m0, m0, 8192", f"s_add_u32 s{S_T}, s{S_XSO}, 81920",
                  f"buffer_load_dwordx4 v{V_XV}, s[{S_X}:{S_X+3}], s{S_T} offen lds"])
        for p in range(4):
            G.append([f"s_add_u32 s{S_T+1}, s{S_M0W}, s{sw}", f"s_add_u32 m0, s{S_T+1}, {p*8192}", "s_nop 0",
                      f"buffer_load_dwordx4 v{V_WV+p}, s[{S_W0+4*p}:{S_W0+4*p+3}], s{S_WSO+p} offen lds"])
        return G
    def run_main(typ, ntile, lab, trail):
        nTT = 1 if typ == 'A' else 2
        ACS = V_E
        ool = []
        def read_list(ks, buf):
            L = []
            for tt in range(nTT):
                L.append(f"v_xad_u32 v{V_TMP+tt}, v{V_XA+tt}, {ks*16}, s{S_XRD}")
                L.append(f"ds_read_b128 {vr(xf(buf,tt),4)}, v{V_TMP+tt}")
            for T in range(ntile):
                for rd in range(2):
                    L.append(f"ds_read_b64_tr_b16 {vr(wf(buf,T)+2*rd,2)}, v{V_WC+T} offset:{ks*2048+rd*512}")
            return [] if 'r' in dis else L
        nreads = nTT + 2 * ntile
        def upd_w():
            for T in range(ntile): a(f"v_add_u32 v{V_WC+T}, s{S_WRD}, v{V_WB+T}")
        def side(name, tests, fn, else_fn=None):
            if 'S' in dis:
                if else_fn: else_fn()
                return
            L = a.newlabel(lab + "_" + name)
            a(f"s_cmp_lg_u32 s{tests[0][0]}, {tests[0][1]}")
            a(f"s_cbranch_scc1 {L}e")
            fn()
            if else_fn:
                a(f"s_branch {L}x")
            a.label(L + "e")
            if else_fn:
                else_fn()
                a.label(L + "x")
        def dummy():
            a(f"buffer_load_dword v{V_ONES}, v{V_ONES+1}, s[{S_X}:{S_X+3}], 0 offen")
        pend = []
        def kstep(i, ks):
            n = i * 4 + ks
            buf = n % 3; nb = (n + 2) % 3
            nks = (ks + 2) & 3
            last_reads = (n + 2) >= 40
            if ks == 2:
                assert not pend
                a("s_waitcnt lgkmcnt(0)")
                if i < 9:
                    def st(lane):
                        if timing and 'W' in dis:
                            a(f"s_memtime s[{S_T0+2}:{S_T0+3}]")
                            a("s_waitcnt lgkmcnt(0)")
                            a(f"s_sub_u32 s{S_T0+2}, s{S_T0+2}, s{S_T0}")
                            a(f"v_writelane_b32 v{V_STAMP}, s{S_T0+2}, {lane}")
                    st(32 + 3 * i)
                    a(f"s_waitcnt vmcnt({[7, 8, 8, 8, 8, 8, 8, 8, 1][i]})")
                    st(33 + 3 * i)
                    a("s_barrier")
                    st(34 + 3 * i)
                    if i == 3: nonce_check()
                    a(f"s_mov_b32 s{S_M2+1}, s{S_XRD}"); a(f"s_mov_b32 s{S_M2+2}, s{S_WRD}")
                    advance_slot()
                    upd_w()
                    if i <= 6 and 'd' not in dis:
                        for g in dma_pieces(S_M2 + 1, S_M2 + 2): pend.append(g)
                        pend.append(next_sigma)
                        if i == 0:
                            pend.append(nonce_load)
                        elif i == 1 and typ == 'B':
                            pend.append(lambda: side("zs", [(S_ZW, 1)], zstore, dummy))
                        elif i == 3:
                            pend.append(xrow_store)
                        elif i == 4:
                            pend.append(lambda: side("c2", [(S_C2W, 1)], c2, dummy))
                        elif i == 5 and typ == 'B':
                            pend.append(lambda: side("zf", [(S_ZFW, 1)], lambda: flag_add('z'), dummy))
                        else:
                            pend.append(dummy)
            else:
                a(f"s_waitcnt lgkmcnt({0 if n == 39 else nreads})")
            rl = [] if last_reads else read_list(nks, nb)
            mf = []
            for T in range(ntile):
                for tt in range(nTT):
                    j = T * nTT + tt
                    if 'm' not in dis:
                        mf.append(f"v_mfma_f32_32x32x16_bf16 {vr(acc(j),16)}, {vr(wf(buf,T),4)}, {vr(xf(buf,tt),4)}, {'0' if n == 0 else vr(acc(j),16)}")
            half = (len(rl) + 1) // 2
            groups = [rl[:half], rl[half:]] + [[] for _ in range(8)]
            nm = max(2, len(mf))
            for j in range(nm):
                if j < len(mf): a(mf[j])
                for x in groups[j]: a(x)
                npop = 0
                if n < 2: npop = 2 if nm < 4 else 1
                elif j >= nm - 2: npop = 1
                if n == 1 and j == nm - 1: npop = 99
                for _ in range(npop):
                    if not pend: break
                    g = pend.pop(0)
                    if callable(g): g()
                    else:
                        for x in g: a(x)
                    if pend and callable(pend[0]) and pend[0] is next_sigma:
                        pend.pop(0)()
            if i == 0:
                def cs(buf=buf):
                    for T in range(ntile):
                        c = vr(ACS + 16 * T, 16)
                        a(f"v_mfma_f32_32x32x16_bf16 {c}, {vr(V_M+4,4)}, {vr(wf(buf,T),4)}, {'0' if (typ == 'A' or ks < 2) else c}")
                if typ == 'A':
                    side("cs", [(S_CSK, ks)], cs)
                else:
                    side("cs", [(S_CSK, ks & 1)], cs)
            if i == 0 and ks == 3:
                xrow_stats()
            if i == 1 and ks == 0:
                def cw():
                    nT_ = 4 if typ == 'A' else 2
                    a(f"s_mul_i32 s{S_T}, s{S_HP}, {nT_*128}")
                    a(f"s_lshl_b32 s{S_T+1}, s{S_TQ}, 10")
                    a(f"s_add_u32 s{S_T}, s{S_T}, s{S_T+1}")
                    a(f"v_lshlrev_b32 v{V_TMP+8}, 7, v{V_HF}")
                    a(f"v_lshl_add_u32 v{V_TMP+8}, v{V_T31}, 2, v{V_TMP+8}")
                    a(f"v_add_u32 v{V_TMP+8}, s{S_T}, v{V_TMP+8}")
                    a(f"v_cmp_eq_u32 vcc, 1, v{V_HF}")
                    a("s_nop 1")
                    for T in range(0, nT_, 2):
                        hi = ACS + 16 * (T + 1) if T + 1 < ntile else ACS + 16 * T
                        a(f"v_cndmask_b32 v{V_TMP+9}, v{ACS+16*T}, v{hi}, vcc")
                        a(f"ds_write_b32 v{V_TMP+8}, v{V_TMP+9} offset:{CSP+T*128}")
                side("cw", [(S_CSPUB, 1)], cw)
            if i == 8 and ks == 2:
                gran_issue(typ)
        def zstore():
            a.srd_off(S_WS, S_PTR, S_PTR + 1, KVS_OFF, KVS_BYTES)
            a(f"s_lshl_b32 s{S_T}, s{S_B}, 3")
            a(f"s_add_u32 s{S_T}, s{S_T}, s{S_WV}")
            a(f"s_lshl_b32 s{S_T}, s{S_T}, 10")
            a(f"v_lshlrev_b32 v{V_TMP+8}, 4, v{V_L}")
            for e in range(4): a(f"v_mov_b32 v{V_TMP+4+e}, 0")
            a(f"buffer_store_dwordx4 {vr(V_TMP+4,4)}, v{V_TMP+8}, s[{S_WS}:{S_WS+3}], s{S_T} offen{SC}")
        def c2():
            ncon = 4 if typ == 'A' else 2
            a(f"v_lshlrev_b32 v{V_TMP+8}, 2, v0")
            for c in range(ncon):
                a(f"ds_read_b32 v{ACS+c}, v{V_TMP+8} offset:{CSP+c*1024}")
            a(f"s_mul_i32 s{S_T}, s{S_ROLE}, 20480")
            a(f"s_lshl_b32 s{S_T+1}, s{S_MT}, 11")
            a(f"s_add_u32 s{S_T}, s{S_T}, s{S_T+1}")
            a(f"s_add_u32 s{S_T}, s{S_T}, {CSG_OFF}")
            a(f"v_lshl_add_u32 v{V_TMP+8}, v0, 3, s{S_T}")
            a("s_waitcnt lgkmcnt(0)")
            for c in range(1, ncon): a(f"v_add_f32 v{ACS}, v{ACS}, v{ACS+c}")
            a(f"v_mov_b32 v{ACS+1}, v{V_NON}")
            a(f"global_store_dwordx2 v{V_TMP+8}, {vr(ACS,2)}, s[{S_PTR}:{S_PTR+1}]{SC}")
        def nonce_load():
            a(f"global_load_dword v{V_NON}, v{V_ONES+1}, s[{S_PTR+2}:{S_PTR+3}] sc1")
        def nonce_check():
            L = a.newlabel(lab + "_nc")
            a(f"v_readfirstlane_b32 s{S_T}, v{V_NON}")
            a(f"s_cmp_lg_u32 s{S_T}, 0")
            a(f"s_cbranch_scc1 {L}ok")
            a(f"s_mov_b32 s{S_T+2}, 0")
            a.label(L)
            a("s_sleep 4")
            nonce_load()
            a("s_waitcnt vmcnt(0)")
            a(f"v_readfirstlane_b32 s{S_T}, v{V_NON}")
            a(f"s_add_u32 s{S_T+2}, s{S_T+2}, 1")
            a(f"s_cmp_gt_u32 s{S_T+2}, 4000")
            a(f"s_cbranch_scc1 {L}ok")
            a(f"s_cmp_eq_u32 s{S_T}, 0")
            a(f"s_cbranch_scc1 {L}")
            a.label(L + "ok")
        a("s_waitcnt lgkmcnt(0)")
        a("s_barrier")
        stamp(typ + " first barrier")
        a(f"s_mov_b32 s{S_M2+1}, {XOFF + 2*XSTG}"); a(f"s_mov_b32 s{S_M2+2}, {2*WSTG}")
        for g in dma_pieces(S_M2 + 1, S_M2 + 2): pend.append(g)
        pend.append(next_sigma)
        pend.append(trail)
        upd_w()
        for x in read_list(0, 0): a(x)
        for x in read_list(1, 1): a(x)
        for i in range(10):
            if timing and 'T' in dis:
                a(f"s_memtime s[{S_T0+2}:{S_T0+3}]")
                a("s_waitcnt lgkmcnt(0)")
                a(f"s_sub_u32 s{S_T0+2}, s{S_T0+2}, s{S_T0}")
                a(f"v_writelane_b32 v{V_STAMP}, s{S_T0+2}, {16+i}")
            for ks in range(4): kstep(i, ks)
        a(f"s_branch {lab}_EXIT")
        k = 0
        while k < len(ool):
            L, fn = ool[k]; k += 1
            a.label(L); fn(); a(f"s_branch {L}r")
        a.label(lab + "_EXIT")

    V_FL = V_M + 2
    def gran_issue(typ):
        for tt in range(1 if typ == 'A' else 2):
            a(f"v_lshrrev_b32 v{V_TMP+8}, 7, v{V_XA+tt}")
            a(f"s_lshl_b32 s{S_T}, s{S_MT}, 7")
            a(f"v_add_u32 v{V_TMP+8}, s{S_T}, v{V_TMP+8}")
            a(f"v_lshlrev_b32 v{V_TMP+8}, 4, v{V_TMP+8}")
            a(f"v_add_u32 v{V_TMP+8}, {STATG_OFF}, v{V_TMP+8}")
            a(f"global_load_dwordx4 {vr(V_E+24+4*tt,4)}, v{V_TMP+8}, s[{S_PTR}:{S_PTR+1}] sc1")
        L = a.newlabel(P + "_csl")
        a(f"s_cmp_ge_u32 s{S_WV}, 4"); a(f"s_cbranch_scc1 {L}")
        a(f"s_mul_i32 s{S_T}, s{S_ROLE}, 20480")
        a(f"s_add_u32 s{S_T}, s{S_T}, {CSG_OFF}")
        a(f"v_lshl_add_u32 v{V_TMP+8}, v0, 3, s{S_T}")
        for j in range(10):
            if j % 2 == 0 and j: a(f"v_add_u32 v{V_TMP+8}, 4096, v{V_TMP+8}")
            a(f"global_load_dwordx2 {vr(V_E+32+2*j,2)}, v{V_TMP+8}, s[{S_PTR}:{S_PTR+1}] offset:{(j%2)*2048} sc1")
        a.label(L)
    def gran_check(typ):
        Lp = a.newlabel(P + "_gr"); Lok = Lp + "ok"
        a(f"s_mov_b32 s{S_T+2}, 0")
        a.label(Lp)
        a("s_waitcnt vmcnt(0)")
        a(f"v_cmp_ne_u32 vcc, v{V_E+24+2}, v{V_NON}")
        if typ == 'B':
            a(f"v_cmp_ne_u32 s[{S_T}:{S_T+1}], v{V_E+28+2}, v{V_NON}")
            a(f"s_or_b64 vcc, vcc, s[{S_T}:{S_T+1}]")
        L = a.newlabel(P + "_grc")
        a(f"s_cmp_ge_u32 s{S_WV}, 4"); a(f"s_cbranch_scc1 {L}")
        for j in range(10):
            a(f"v_cmp_ne_u32 s[{S_T}:{S_T+1}], v{V_E+32+2*j+1}, v{V_NON}")
            a(f"s_or_b64 vcc, vcc, s[{S_T}:{S_T+1}]")
        a.label(L)
        a(f"s_add_u32 s{S_T+2}, s{S_T+2}, 1")
        a(f"s_cmp_gt_u32 s{S_T+2}, 4000")
        a(f"s_cbranch_scc1 {Lok}")
        a(f"s_cbranch_vccz {Lok}")
        a("s_sleep 4")
        gran_issue(typ)
        a(f"s_branch {Lp}")
        a.label(Lok)
        for tt in range(1 if typ == 'A' else 2):
            a(f"v_mov_b32 v{V_M+2*tt}, v{V_E+24+4*tt}")
            a(f"v_mov_b32 v{V_M+2*tt+1}, v{V_E+24+4*tt+1}")
    def finish_stats(typ):
        a("s_waitcnt lgkmcnt(0)")
        stamp(typ + " main loop end")
        if 'S' not in dis: gran_check(typ)
        L = a.newlabel(P + "_cs2")
        a(f"s_cmp_ge_u32 s{S_WV}, 4"); a(f"s_cbranch_scc1 {L}")
        for j in range(1, 10):
            a(f"v_add_f32 v{V_E+32}, v{V_E+32}, v{V_E+32+2*j}")
        a(f"v_lshlrev_b32 v{V_TMP}, 2, v0")
        a(f"ds_write_b32 v{V_TMP}, v{V_E+32} offset:{CS}")
        a("s_waitcnt lgkmcnt(0)")
        a.label(L)
        a("s_barrier")
        stamp(typ + " stats barrier")

    a("s_cmp_ge_u32 s2, 256")
    a(f"s_cbranch_scc1 {P}_END")
    a("s_load_dwordx4 s[4:7], s[0:1], 0")
    a("s_load_dwordx4 s[8:11], s[0:1], 16")
    a("s_load_dwordx4 s[12:15], s[0:1], 40")
    a(f"s_load_dwordx2 s[{S_PTR+8}:{S_PTR+9}], s[0:1], 56")
    a(f"s_load_dwordx4 s[{S_T}:{S_T+3}], s[0:1], 80")
    if timing: a(f"s_memtime s[{S_T0}:{S_T0+1}]")
    if timing: a("s_memrealtime s[98:99]")
    a(f"v_and_b32 v{V_L}, 63, v0")
    a(f"v_lshrrev_b32 v{V_TMP}, 6, v0")
    a(f"v_and_b32 v{V_T31}, 31, v0")
    a(f"v_readfirstlane_b32 s{S_WV}, v{V_TMP}")
    a(f"v_bfe_u32 v{V_HF}, v0, 5, 1")
    a(f"s_and_b32 s{S_T+4}, s2, 7")
    a(f"s_lshr_b32 s{S_T+5}, s2, 3")
    a(f"s_and_b32 s{S_T+6}, s{S_T+4}, 1")
    a(f"s_lshl_b32 s{S_T+6}, s{S_T+6}, 3")
    a(f"s_and_b32 s{S_T+7}, s{S_T+5}, 7")
    a(f"s_add_u32 s{S_MT}, s{S_T+6}, s{S_T+7}")
    a(f"s_lshr_b32 s{S_T+4}, s{S_T+4}, 1")
    a(f"s_lshl_b32 s{S_T+4}, s{S_T+4}, 2")
    a(f"s_lshr_b32 s{S_T+5}, s{S_T+5}, 3")
    a(f"s_add_u32 s{S_ROLE}, s{S_T+4}, s{S_T+5}")
    a(f"s_lshr_b32 s{S_GI}, s{S_ROLE}, 1")
    a(f"s_and_b32 s{S_M2}, s{S_ROLE}, 1")
    a(f"s_sub_u32 s{S_SIG}, s{S_MT}, 10")
    a(f"s_cmp_lt_u32 s{S_MT}, 10")
    a(f"s_cselect_b32 s{S_SIG}, s{S_MT}, s{S_SIG}")
    if 'R' in dis: a(f"s_mov_b32 s{S_SIG}, 0")
    if 'H' in dis:
        a(f"s_and_b32 s{S_SIG}, s{S_MT}, 1"); a(f"s_mul_i32 s{S_SIG}, s{S_SIG}, 5")
    a(f"s_lshl_b32 s{S_XSO}, s{S_SIG}, 7")
    V_ROW, V_S8 = V_TMP + 1, V_TMP + 4
    a(f"v_lshrrev_b32 v{V_TMP}, 3, v{V_L}")
    a(f"s_lshl_b32 s{S_T+4}, s{S_WV}, 3")
    a(f"v_add_u32 v{V_ROW}, s{S_T+4}, v{V_TMP}")
    a(f"v_bfe_u32 v{V_TMP+2}, v{V_ROW}, 1, 3")
    a(f"v_and_b32 v{V_TMP+3}, 7, v{V_L}")
    a(f"v_xor_b32 v{V_TMP+2}, v{V_TMP+2}, v{V_TMP+3}")
    a(f"v_and_b32 v{V_TMP+8}, 3, v{V_TMP+2}")
    a(f"v_lshrrev_b32 v{V_TMP+2}, 2, v{V_TMP+2}")
    a(f"v_lshl_add_u32 v{V_TMP+2}, v{V_TMP+8}, 1, v{V_TMP+2}")
    a(f"v_mul_u32_u24 v{V_XV}, 1280, v{V_ROW}")
    a(f"v_lshl_add_u32 v{V_XV}, v{V_TMP+2}, 4, v{V_XV}")
    a(f"v_bfe_u32 v{V_S8}, v{V_L}, 4, 1")
    a(f"v_lshlrev_b32 v{V_S8}, 2, v{V_S8}")
    a(f"v_xor_b32 v{V_S8}, v{V_S8}, v{V_TMP+3}")
    a(f"s_lshl_b32 s{S_M0X}, s{S_WV}, 10")
    a(f"s_add_u32 s{S_M0W}, s{S_M0X}, {WOFF}")
    a(f"s_mov_b32 s{S_XRD}, {XOFF}"); a(f"s_mov_b32 s{S_WRD}, 0")
    a(f"s_mul_i32 s{S_T+4}, s{S_MT}, 163840")
    a(f"s_lshl_b32 s{S_T+5}, s{S_ROLE}, 3")
    a(f"s_add_u32 s{S_T+5}, s{S_T+5}, s{S_WV}")
    a(f"s_mul_i32 s{S_T+5}, s{S_T+5}, 1280")
    a(f"v_lshlrev_b32 v{V_M+6}, 4, v{V_L}")
    a(f"v_add_u32 v{V_TMP+8}, 1024, v{V_M+6}")
    a(f"v_cmp_gt_u32 vcc, 16, v{V_L}")
    a(f"v_mov_b32 v{V_TMP+7}, 0x7f000000")
    a("s_waitcnt lgkmcnt(0)")
    pst(32)
    a.srd_off(S_X, 4, 5, f"s{S_T+4}", 163840)
    a(f"v_cndmask_b32 v{V_M+7}, v{V_TMP+7}, v{V_TMP+8}, vcc")
    a(f"s_mov_b64 s[{S_PTR}:{S_PTR+1}], s[{S_T+2}:{S_T+3}]")
    a(f"s_mov_b64 s[{S_PTR+2}:{S_PTR+3}], s[{S_T}:{S_T+1}]")
    a(f"s_mov_b32 s{S_RSO}, s{S_T+5}")
    a(f"s_cmp_eq_u32 s2, 70"); a(f"s_cselect_b32 s{S_NM}, 1, 0")
    a(f"s_cmp_eq_u32 s{S_WV}, 7"); a(f"s_cselect_b32 s{S_NM}, s{S_NM}, 0")
    a(f"s_cmp_eq_u32 s{S_NM}, 0")
    a(f"s_cbranch_scc1 {P}_NM0")
    a(f"v_mov_b32 v{V_TMP+8}, {EPOCH_OFF}")
    a(f"global_load_dword v{V_NON}, v{V_TMP+8}, s[{S_PTR}:{S_PTR+1}] sc1")
    a.label(P + "_NM0")
    dma_x_now(0)
    pst(33)
    a(f"s_mov_b64 s[{S_PTR+4}:{S_PTR+5}], s[8:9]")
    a(f"s_mov_b64 s[{S_PTR+6}:{S_PTR+7}], s[14:15]")
    a(f"s_mov_b64 s[{S_PTR+10}:{S_PTR+11}], s[10:11]")
    a(f"s_cmp_eq_u32 s{S_M2}, 1")
    a(f"s_cbranch_scc1 {P}_B")

    V_U, V_ROW0, V_RSW = V_M + 0, V_M + 1, V_M + 2
    def common_setup():
        a(f"v_bfe_u32 v{V_U}, v{V_L}, 4, 1")
        a(f"v_lshlrev_b32 v{V_U}, 2, v{V_U}")
        a(f"v_and_b32 v{V_TMP+8}, 3, v{V_L}")
        a(f"v_add_u32 v{V_U}, v{V_U}, v{V_TMP+8}")
        a(f"v_bfe_u32 v{V_ROW0}, v{V_L}, 2, 2")
        a(f"v_bfe_u32 v{V_RSW}, v{V_L}, 3, 1")
        a(f"v_lshlrev_b32 v{V_RSW}, 2, v{V_RSW}")
        a(f"v_lshl_add_u32 v{V_ROW0}, v{V_HF}, 3, v{V_ROW0}")
    def cs_roles():
        a(f"s_cmp_lt_u32 s{S_MT}, 10")
        a(f"s_cselect_b32 s{S_CSK}, s{S_TQ}, 99")
        a(f"s_cselect_b32 s{S_CSPUB}, 1, 0")
        a(f"s_cselect_b32 s{S_C2W}, 1, 0")
        a(f"s_cmp_lt_u32 s{S_WV}, 4"); a(f"s_cselect_b32 s{S_C2W}, s{S_C2W}, 0")
        a(f"v_mov_b32 v{V_ONES+1}, 0")
    def after_setup():
        pst(35)
        prologue_w2()
        for i in range(4): a(f"v_mov_b32 v{V_M+4+i}, {hex(ONES2)}")
        pst(36)
        a("s_waitcnt vmcnt(8)")
        pst(37)
        L = a.newlabel(P + "_nm")
        a(f"s_cmp_eq_u32 s{S_NM}, 0")
        a(f"s_cbranch_scc1 {L}")
        a(f"v_add_u32 v{V_NON}, 1, v{V_NON}")
        a(f"v_max_u32 v{V_NON}, 1, v{V_NON}")
        a(f"v_mov_b32 v{V_TMP+7}, 0")
        a(f"v_mov_b32 v{V_TMP+8}, {EPOCH_OFF}")
        a("s_mov_b64 exec, 1")
        a(f"global_store_dword v{V_TMP+7}, v{V_NON}, s[{S_PTR+2}:{S_PTR+3}] sc0 sc1")
        a(f"global_store_dword v{V_TMP+8}, v{V_NON}, s[{S_PTR}:{S_PTR+1}] sc0 sc1")
        a("s_mov_b64 exec, -1")
        a.label(L)

    a(f"s_lshr_b32 s{S_HP}, s{S_WV}, 2")
    a(f"s_and_b32 s{S_TQ}, s{S_WV}, 3")
    for p in range(4):
        a.srd(S_W0 + 4 * p, 6, 7, 640 * 3840)
        a(f"s_mov_b32 s{S_WSTEP+p}, {64*3840}")
    a(f"s_mul_i32 s{S_T}, s{S_GI}, 160")
    a(f"s_lshl_b32 s{S_T+1}, s{S_GI}, 7")
    a(f"v_mul_u32_u24 v{V_TMP+5}, 3840, v{V_ROW}")
    a(f"v_lshl_add_u32 v{V_TMP+6}, v{V_S8}, 4, v{V_TMP+5}")
    a(f"s_add_u32 s{S_T+2}, s{S_T}, 1280")
    a(f"v_add_u32 v{V_WV}, s{S_T+2}, v{V_TMP+6}")
    a(f"s_add_u32 s{S_T+2}, s{S_T}, {2560+32}")
    a(f"v_add_u32 v{V_WV+2}, s{S_T+2}, v{V_TMP+6}")
    a(f"v_add_u32 v{V_WV+3}, s{S_T+1}, v{V_TMP+6}")
    a(f"v_and_b32 v{V_TMP+7}, 1, v{V_S8}")
    a(f"v_lshl_add_u32 v{V_TMP+7}, v{V_TMP+7}, 4, v{V_TMP+5}")
    a(f"v_mov_b32 v{V_TMP+8}, 2560")
    a(f"v_mov_b32 v{V_TMP+9}, {1280+128}")
    a(f"v_cmp_gt_u32 vcc, 4, v{V_S8}")
    a("s_nop 1")
    a(f"v_cndmask_b32 v{V_TMP+8}, v{V_TMP+8}, v{V_TMP+9}, vcc")
    a(f"v_add3_u32 v{V_WV+1}, v{V_TMP+7}, v{V_TMP+8}, s{S_T}")
    prologue_w()
    pst(34)
    a(f"s_mul_i32 s{S_T}, s{S_GI}, 3200")
    a.srd_off(S_WS, S_PTR + 4, S_PTR + 5, f"s{S_T}", 3200)
    common_setup()
    a(f"v_and_b32 v{V_TMP+1}, 3, v{V_U}")
    a(f"v_lshlrev_b32 v{V_TMP+1}, 3, v{V_TMP+1}")
    a(f"v_cmp_lt_u32 vcc, 3, v{V_U}")
    for T in range(4):
        cs = []
        for hp in (0, 1):
            TT = T if T < len(TILES[hp]) else 0
            ent = []
            for u in range(8):
                q, hf = u >> 1, u & 1
                c, hi = tile_quad(hp, TT, q, hf)
                ent.append((SLOT_A[c] << 1) | hi)
            cs.append((sum(ent[s] << (8 * s) for s in range(4)), sum(ent[4 + s] << (8 * s) for s in range(4))))
        a(f"s_cmp_eq_u32 s{S_HP}, 0")
        a(f"s_mov_b32 s{S_T+2}, {hex(cs[1][0])}")
        a(f"s_cselect_b32 s{S_T+2}, {hex(cs[0][0])}, s{S_T+2}")
        a(f"s_mov_b32 s{S_T+3}, {hex(cs[1][1])}")
        a(f"s_cselect_b32 s{S_T+3}, {hex(cs[0][1])}, s{S_T+3}")
        a(f"v_mov_b32 v{V_TMP+2}, s{S_T+2}")
        a(f"v_mov_b32 v{V_TMP+3}, s{S_T+3}")
        a(f"v_cndmask_b32 v{V_TMP+2}, v{V_TMP+2}, v{V_TMP+3}, vcc")
        a(f"v_lshrrev_b32 v{V_TMP+2}, v{V_TMP+1}, v{V_TMP+2}")
        a(f"v_and_b32 v{V_TMP+3}, 1, v{V_TMP+2}")
        a(f"v_bfe_u32 v{V_TMP+4}, v{V_TMP+2}, 1, 3")
        a(f"v_bfe_u32 v{V_TMP+5}, v{V_TMP+2}, 4, 2")
        a(f"v_xor_b32 v{V_TMP+4}, v{V_TMP+4}, v{V_RSW}")
        a(f"v_lshlrev_b32 v{V_TMP+4}, 4, v{V_TMP+4}")
        a(f"v_lshl_add_u32 v{V_TMP+4}, v{V_TMP+3}, 3, v{V_TMP+4}")
        a(f"v_lshl_add_u32 v{V_TMP+4}, v{V_TMP+5}, 13, v{V_TMP+4}")
        a(f"v_lshl_add_u32 v{V_TMP+4}, v{V_ROW0}, 7, v{V_TMP+4}")
        a(f"v_add_u32 v{V_WB+T}, {WOFF}, v{V_TMP+4}")
    def x_addr(tts, rowbase_sgpr_shift, sg):
        a(f"v_bfe_u32 v{V_TMP+1}, v{V_T31}, 1, 3")
        a(f"v_lshlrev_b32 v{V_TMP+2}, 2, v{V_HF}")
        a(f"v_xor_b32 v{V_TMP+1}, v{V_TMP+1}, v{V_TMP+2}")
        a(f"s_lshl_b32 s{S_T}, s{sg}, {rowbase_sgpr_shift}")
        for tt in range(tts):
            a(f"v_add_u32 v{V_TMP+2}, s{S_T}, v{V_T31}")
            if tt: a(f"v_add_u32 v{V_TMP+2}, {32*tt}, v{V_TMP+2}")
            a(f"v_lshlrev_b32 v{V_TMP+2}, 7, v{V_TMP+2}")
            a(f"v_lshl_add_u32 v{V_XA+tt}, v{V_TMP+1}, 4, v{V_TMP+2}")
    x_addr(1, 5, S_TQ)
    cs_roles()
    a(f"v_lshlrev_b32 v{V_TMP+1}, 2, v0")
    a(f"v_mov_b32 v{V_TMP+2}, 0")
    a(f"v_cmp_gt_u32 vcc, 320, v0")
    a(f"s_and_saveexec_b64 s[{S_T+6}:{S_T+7}], vcc")
    a(f"ds_write_b32 v{V_TMP+1}, v{V_TMP+2} offset:{ZERO}")
    a(f"s_mov_b64 exec, s[{S_T+6}:{S_T+7}]")
    after_setup()
    def trailA():
        a(f"v_lshlrev_b32 v{V_TMP+8}, 4, v0")
        a(f"buffer_load_dwordx4 {vr(V_E+76,4)}, v{V_TMP+8}, s[{S_WS}:{S_WS+3}], 0 offen")
    a(f"s_cmp_lg_u32 s{S_HP}, 0")
    a(f"s_cbranch_scc1 {P}A_H1")
    run_main('A', 4, P + "A0", trailA)
    a(f"s_branch {P}A_EPI")
    a.label(P + "A_H1")
    run_main('A', 3, P + "A1", trailA)
    a.label(P + "A_EPI")
    a(f"v_lshlrev_b32 v{V_TMP}, 4, v0")
    a(f"v_cmp_gt_u32 vcc, 200, v0")
    a(f"s_and_saveexec_b64 s[{S_T+6}:{S_T+7}], vcc")
    a(f"ds_write_b128 v{V_TMP}, {vr(V_E+76,4)} offset:{WPHI}")
    a(f"s_mov_b64 exec, s[{S_T+6}:{S_T+7}]")
    finish_stats('A')
    V_MN, V_RS, V_C = V_MN0, V_RS0, V_M + 2
    CSR = V_XF
    a(f"s_mul_i32 s{S_T}, s{S_HP}, 512")
    a(f"v_lshl_add_u32 v{V_TMP+4}, v{V_HF}, 4, s{S_T}")
    for T in range(3):
        for q in range(4):
            a(f"ds_read_b128 {vr(CSR+16*T+4*q,4)}, v{V_TMP+4} offset:{CS+T*128+q*32}")
    A2 = V_E
    a(f"v_bfe_u32 v{V_TMP}, v{V_L}, 4, 1")
    a(f"v_lshlrev_b32 v{V_TMP}, 2, v{V_TMP}")
    a(f"v_and_b32 v{V_TMP+1}, 3, v{V_L}")
    a(f"v_add_u32 v{V_TMP}, v{V_TMP}, v{V_TMP+1}")
    a(f"v_and_b32 v{V_TMP+1}, 1, v{V_TMP}")
    a(f"v_lshrrev_b32 v{V_TMP}, 1, v{V_TMP}")
    a(f"v_bfe_u32 v{V_TMP+2}, v{V_L}, 2, 2")
    a(f"v_mul_u32_u24 v{V_TMP+2}, 40, v{V_TMP+2}")
    a(f"v_lshl_add_u32 v{V_TMP+2}, v{V_TMP}, 3, v{V_TMP+2}")
    a(f"s_mul_i32 s{S_T}, s{S_HP}, 1600")
    a(f"v_mul_u32_u24 v{V_TMP+3}, 800, v{V_TMP+1}")
    a(f"v_add3_u32 v{V_TMP+2}, v{V_TMP+2}, v{V_TMP+3}, s{S_T}")
    a(f"v_add_u32 v{V_TMP+2}, {WPHI}, v{V_TMP+2}")
    a(f"v_mov_b32 v{V_TMP+3}, {ZERO}")
    a(f"v_cmp_eq_u32 vcc, v{V_TMP+1}, v{V_HF}")
    a("s_nop 1")
    a(f"v_cndmask_b32 v{V_TMP+2}, v{V_TMP+3}, v{V_TMP+2}, vcc")
    for xy in range(2):
        for s_ in range(3):
            for rd in range(2):
                a(f"ds_read_b64_tr_b16 {vr(A2+(xy*3+s_)*4+2*rd,2)}, v{V_TMP+2} offset:{s_*320+rd*160+xy*32}")
    def qregs(lg):
        T, p = where(0, lg)
        return [acc(T) + 4 * p + r for r in range(4)]
    def cs_of(r): return CSR + (r - V_ACC)
    kv_ = sum([qregs(('k', i)) for i in range(5)], [])
    vv = sum([qregs(('v', i)) for i in range(5)], [])
    a("s_waitcnt lgkmcnt(12)")
    for r in kv_: a(f"v_fmac_f32 v{r}, v{cs_of(r)}, v{V_MN}")
    KF = V_E + 24
    for p in range(10):
        a(f"v_cvt_pk_bf16_f32 v{KF+p}, v{kv_[2*p]}, v{kv_[2*p+1]}")
    a(f"v_mov_b32 v{KF+10}, 0"); a(f"v_mov_b32 v{KF+11}, 0")
    a(f"v_mul_f32 v{V_C}, {hex(LOG2E)}, v{V_RS}")
    PX, PY = V_E + 48, V_E + 64
    a("s_waitcnt lgkmcnt(0)")
    for xy, PP in ((0, PX), (1, PY)):
        for s_ in range(3):
            c = "0" if s_ == 0 else vr(PP, 16)
            a(f"v_mfma_f32_32x32x16_bf16 {vr(PP,16)}, {vr(A2+(xy*3+s_)*4,4)}, {vr(KF+4*s_,4)}, {c}")
    VPK = V_E + 36
    for p in range(10):
        for e in range(2):
            r = vv[2 * p + e]
            a(f"v_fmac_f32 v{r}, v{cs_of(r)}, v{V_MN}")
            a(f"v_mul_f32 v{r}, v{r}, v{V_RS}")
        a(f"v_cvt_pk_bf16_f32 v{VPK+p}, v{vv[2*p]}, v{vv[2*p+1]}")
    a(f"v_mov_b32 v{VPK+10}, 0x3f80")
    a(f"v_mov_b32 v{VPK+11}, 0")
    V_HL, V_VPA, V_PHA, V_QA = V_M + 3, V_M + 4, V_M + 5, V_M + 6
    a(f"v_lshrrev_b32 v{V_TMP}, 7, v{V_XA}")
    a(f"s_lshl_b32 s{S_T}, s{S_HP}, 1")
    a(f"v_add_u32 v{V_HL}, s{S_T}, v{V_HF}")
    a(f"v_mul_u32_u24 v{V_VPA}, 192, v{V_TMP}")
    a(f"v_mad_u32_u24 v{V_VPA}, v{V_HL}, 48, v{V_VPA}")
    a(f"v_add_u32 v{V_VPA}, {VP}, v{V_VPA}")
    a(f"v_mul_u32_u24 v{V_PHA}, 320, v{V_TMP}")
    a(f"v_mul_u32_u24 v{V_TMP+1}, 80, v{V_HL}")
    a(f"v_add_u32 v{V_PHA}, v{V_PHA}, v{V_TMP+1}")
    for j in range(3):
        a(f"ds_write_b128 v{V_VPA}, {vr(VPK+4*j,4)} offset:{16*j}")
    a.srd_off(S_WS, S_PTR, S_PTR + 1, QBUF_OFF, QBUF_BYTES)
    a(f"s_lshl_b32 s{S_T}, s{S_MT}, 2")
    a(f"s_add_u32 s{S_T}, s{S_T}, s{S_TQ}")
    a(f"s_mul_i32 s{S_T}, s{S_T}, 80")
    a(f"s_lshl_b32 s{S_T+1}, s{S_GI}, 3")
    a(f"s_add_u32 s{S_T}, s{S_T}, s{S_T+1}")
    a(f"s_lshl_b32 s{S_T}, s{S_T}, 9")
    a(f"v_lshl_add_u32 v{V_QA}, v{V_T31}, 4, s{S_T}")
    def store_light(src, csr, addr, pk):
        for p in range(4):
            for e in range(2):
                r = src + 2 * p + e
                a(f"v_fmac_f32 v{r}, v{csr+2*p+e}, v{V_MN}")
                a(f"v_mul_f32 v{r}, v{r}, v{V_RS}")
            a(f"v_cvt_pk_bf16_f32 v{pk+p}, v{src+2*p}, v{src+2*p+1}")
        a(f"buffer_store_dwordx4 {vr(pk,4)}, v{addr}, s[{S_WS}:{S_WS+3}], 0 offen{OSC}")
    l00, l01 = LIGHTS[0][0][0][1], LIGHTS[0][0][1][1]; l10, l11 = LIGHTS[1][0][0][1], LIGHTS[1][0][1][1]
    assert l01 - l00 == l11 - l10
    a(f"s_cmp_eq_u32 s{S_HP}, 0")
    a(f"s_mov_b32 s{S_T}, {l10*512}")
    a(f"s_cselect_b32 s{S_T}, {l00*512}, s{S_T}")
    a(f"v_mul_u32_u24 v{V_TMP+5}, {(l01-l00)*512}, v{V_HF}")
    a(f"v_add3_u32 v{V_TMP+5}, v{V_TMP+5}, v{V_QA}, s{S_T}")
    store_light(acc(0), cs_of(acc(0)), V_TMP + 5, A2)
    a(f"s_cmp_lg_u32 s{S_HP}, 0")
    a(f"s_cbranch_scc1 {P}A_noT3")
    for q in range(4):
        a(f"ds_read_b128 {vr(CSR+48+4*q,4)}, v{V_TMP+4} offset:{CS+3*128+q*32}")
    (m0, m1), (n0, n1) = LIGHTS[0][1], LIGHTS[0][2]
    a(f"v_mul_u32_u24 v{V_TMP+5}, {(m1[1]-m0[1])*512}, v{V_HF}")
    a(f"v_add_u32 v{V_TMP+5}, v{V_TMP+5}, v{V_QA}")
    a(f"v_add_u32 v{V_TMP+6}, {n0[1]*512}, v{V_TMP+5}")
    assert n1[1] - n0[1] == m1[1] - m0[1]
    if m0[1]: a(f"v_add_u32 v{V_TMP+5}, {m0[1]*512}, v{V_TMP+5}")
    a("s_waitcnt lgkmcnt(0)")
    store_light(acc(3), CSR + 48, V_TMP + 5, A2 + 4)
    store_light(acc(3) + 8, CSR + 56, V_TMP + 6, A2 + 8)
    a.label(P + "A_noT3")
    stamp("A before softmax")
    p_ = [PX + i for i in range(16)] + [PY + i for i in range(4)]
    MX, MNn = V_TMP, V_TMP + 1
    a("s_nop 3")
    a(f"v_max3_f32 v{MX}, v{p_[0]}, v{p_[1]}, v{p_[2]}")
    a(f"v_min3_f32 v{MNn}, v{p_[0]}, v{p_[1]}, v{p_[2]}")
    for i in range(3, 19, 2):
        a(f"v_max3_f32 v{MX}, v{MX}, v{p_[i]}, v{p_[i+1]}")
        a(f"v_min3_f32 v{MNn}, v{MNn}, v{p_[i]}, v{p_[i+1]}")
    a(f"v_max_f32 v{MX}, v{MX}, v{p_[19]}")
    a(f"v_min_f32 v{MNn}, v{MNn}, v{p_[19]}")
    a(f"v_mul_f32 v{MX}, v{MX}, v{V_C}")
    a(f"v_mul_f32 v{MNn}, v{MNn}, v{V_C}")
    EP = CSR; EM = CSR + 20
    for i in range(20):
        a(f"v_fma_f32 v{EP+i}, v{p_[i]}, v{V_C}, -v{MX}")
        a(f"v_fma_f32 v{EM+i}, -v{p_[i]}, v{V_C}, v{MNn}")
    for i in range(20):
        a(f"v_exp_f32 v{EP+i}, v{EP+i}")
        a(f"v_exp_f32 v{EM+i}, v{EM+i}")
    SP, SM = V_TMP + 2, V_TMP + 3
    a(f"v_add_f32 v{SP}, v{EP}, v{EP+1}")
    a(f"v_add_f32 v{SM}, v{EM}, v{EM+1}")
    for i in range(2, 20):
        a(f"v_add_f32 v{SP}, v{SP}, v{EP+i}")
        a(f"v_add_f32 v{SM}, v{SM}, v{EM+i}")
    a(f"v_rcp_f32 v{SP}, v{SP}")
    a(f"v_rcp_f32 v{SM}, v{SM}")
    a("s_nop 0")
    PH = V_ACC
    for p in range(10):
        a(f"v_mul_f32 v{EP+2*p}, v{EP+2*p}, v{SP}")
        a(f"v_mul_f32 v{EP+2*p+1}, v{EP+2*p+1}, v{SP}")
        a(f"v_cvt_pk_bf16_f32 v{PH+p}, v{EP+2*p}, v{EP+2*p+1}")
    for p in range(10):
        a(f"v_mul_f32 v{EM+2*p}, v{EM+2*p}, v{SM}")
        a(f"v_mul_f32 v{EM+2*p+1}, v{EM+2*p+1}, v{SM}")
        a(f"v_cvt_pk_bf16_f32 v{PH+10+p}, v{EM+2*p}, v{EM+2*p+1}")
    for j in range(5):
        a(f"ds_write_b128 v{V_PHA}, {vr(PH+4*j,4)} offset:{PHI+16*j}")
    stamp("A after softmax")
    a(f"v_mov_b32 v{V_TMP+4}, 0")
    a(f"global_load_dword v{V_TMP+5}, v{V_TMP+4}, s[{S_PTR+2}:{S_PTR+3}] offset:128 sc1")
    a(f"s_lshr_b32 s{S_T}, s{S_WV}, 1")
    a(f"s_and_b32 s{S_T+1}, s{S_WV}, 1")
    W0 = V_M
    a(f"v_bfe_u32 v{W0}, v{V_L}, 2, 2")
    a(f"v_lshl_add_u32 v{W0}, v{V_HF}, 3, v{W0}")
    a(f"v_bfe_u32 v{W0+1}, v{V_L}, 4, 1")
    a(f"v_lshlrev_b32 v{W0+1}, 2, v{W0+1}")
    a(f"v_and_b32 v{W0+2}, 3, v{V_L}")
    a(f"v_add_u32 v{W0+1}, v{W0+1}, v{W0+2}")
    a(f"s_mul_i32 s{S_T+2}, s{S_T}, 48")
    a(f"s_add_u32 s{S_T+2}, s{S_T+2}, {VP}")
    a(f"v_mul_u32_u24 v{W0+2}, 192, v{W0}")
    a(f"v_lshl_add_u32 v{W0+2}, v{W0+1}, 3, v{W0+2}")
    a(f"v_add_u32 v{W0+2}, s{S_T+2}, v{W0+2}")
    a(f"s_mul_i32 s{S_T+2}, s{S_T}, 80")
    a(f"s_lshl_b32 s{S_T+3}, s{S_T+1}, 6")
    a(f"s_add_u32 s{S_T+2}, s{S_T+2}, s{S_T+3}")
    a(f"v_mul_u32_u24 v{W0+3}, 320, v{W0}")
    a(f"v_lshl_add_u32 v{W0+3}, v{W0+1}, 3, v{W0+3}")
    a(f"v_add_u32 v{W0+3}, s{S_T+2}, v{W0+3}")
    a.srd_off(S_WS, S_PTR, S_PTR + 1, KVS_OFF, KVS_BYTES)
    a(f"s_lshl_b32 s{S_T+2}, s{S_GI}, 2")
    a(f"s_add_u32 s{S_T+2}, s{S_T+2}, s{S_T}")
    a(f"s_mul_i32 s{S_T+2}, s{S_T+2}, 3360")
    a(f"s_lshl_b32 s{S_T+3}, s{S_T+1}, 7")
    a(f"s_add_u32 s{S_T+2}, s{S_T+2}, s{S_T+3}")
    a(f"v_mul_u32_u24 v{W0}, 640, v{V_HF}")
    a(f"v_lshl_add_u32 v{W0}, v{V_T31}, 2, v{W0}")
    a(f"v_add_u32 v{W0}, s{S_T+2}, v{W0}")
    a("s_waitcnt lgkmcnt(0)")
    a("s_barrier")
    stamp("A phi barrier")
    KA, KB = V_XF, V_XF + 32
    for kk in range(8):
        for rd in range(2):
            a(f"ds_read_b64_tr_b16 {vr(KA+4*kk+2*rd,2)}, v{W0+2} offset:{kk*3072+rd*768}")
            a(f"ds_read_b64_tr_b16 {vr(KB+4*kk+2*rd,2)}, v{W0+3} offset:{PHI+kk*5120+rd*1280}")
    KVD = V_E
    for kk in range(8):
        a(f"s_waitcnt lgkmcnt({min(15, 4*(7-kk))})")
        c = "0" if kk == 0 else vr(KVD, 16)
        a(f"v_mfma_f32_32x32x16_bf16 {vr(KVD,16)}, {vr(KA+4*kk,4)}, {vr(KB+4*kk,4)}, {c}")
    stamp("A kv mfma issued")
    a(f"s_mov_b32 s{S_T+5}, 0")
    a.label(P + "A_POLL")
    a("s_waitcnt vmcnt(0)")
    a(f"s_add_u32 s{S_T+5}, s{S_T+5}, 1")
    a(f"s_cmp_gt_u32 s{S_T+5}, 4000")
    a(f"s_cbranch_scc1 {P}A_GO")
    a(f"v_readfirstlane_b32 s{S_T+4}, v{V_TMP+5}")
    a(f"s_cmp_ge_u32 s{S_T+4}, 14")
    a(f"s_cbranch_scc1 {P}A_GO")
    a("s_sleep 2")
    a(f"global_load_dword v{V_TMP+5}, v{V_TMP+4}, s[{S_PTR+2}:{S_PTR+3}] offset:128 sc1")
    a(f"s_branch {P}A_POLL")
    a.label(P + "A_GO")
    a(f"s_cmp_eq_u32 s{S_T+1}, 0")
    a(f"s_cselect_b32 s{S_T+4}, 32, 8")
    a(f"v_cmp_gt_u32 vcc, s{S_T+4}, v{V_T31}")
    a(f"s_and_b64 exec, exec, vcc")
    a("s_nop 7"); a("s_nop 3")
    for q in range(2):
        for r in range(4):
            a(f"buffer_atomic_add_f32 v{KVD+4*q+r}, v{W0}, s[{S_WS}:{S_WS+3}], 0 offen offset:{(8*q+r)*160}")
    a(f"buffer_atomic_add_f32 v{KVD+8}, v{W0}, s[{S_WS}:{S_WS+3}], 0 offen offset:{16*160}")
    a(f"v_cmp_eq_u32 vcc, 0, v{V_HF}")
    a(f"s_and_b64 exec, exec, vcc")
    for r in range(1, 4):
        a(f"buffer_atomic_add_f32 v{KVD+8+r}, v{W0}, s[{S_WS}:{S_WS+3}], 0 offen offset:{(16+r)*160}")
    a("s_mov_b64 exec, -1")
    stamp("A atomics issued")
    a(f"s_branch {P}_DONE")

    a.label(P + "_B")
    a(f"s_and_b32 s{S_HP}, s{S_WV}, 3")
    a(f"s_lshr_b32 s{S_TQ}, s{S_WV}, 2")
    a(f"s_lshl_b32 s{S_T}, s{S_GI}, 2")
    a(f"s_sub_u32 s{S_T+1}, s{S_GI}, 5")
    a(f"s_max_i32 s{S_T+1}, s{S_T+1}, 0")
    a(f"s_sub_u32 s{S_N}, s{S_T}, s{S_T+1}")
    a(f"s_cmp_lt_u32 s{S_GI}, 5")
    a(f"s_cselect_b32 s{S_CNT}, 4, 3")
    for p in range(4):
        a(f"s_cmp_lt_u32 {p}, s{S_CNT}")
        a(f"s_cselect_b32 s{S_T}, {p}, 0")
        a(f"s_add_u32 s{S_T}, s{S_T}, s{S_N}")
        a(f"s_add_u32 s{S_T+2}, s{S_T}, 8")
        a(f"s_sub_u32 s{S_T+3}, s{S_T}, 2")
        a(f"s_cmp_lt_u32 s{S_T}, 2")
        a(f"s_cselect_b32 s{S_W0+4*p}, s6, s12")
        a(f"s_cselect_b32 s{S_W0+4*p+1}, s7, s13")
        a(f"s_mov_b32 s{S_W0+4*p+2}, {640*3456}")
        a(f"s_cselect_b32 s{S_W0+4*p+2}, {640*3840}, s{S_W0+4*p+2}")
        a(f"s_mov_b32 s{S_W0+4*p+3}, 0x00020000")
        a(f"s_mov_b32 s{S_T+1}, 3456")
        a(f"s_cselect_b32 s{S_T+1}, 3840, s{S_T+1}")
        a(f"s_cselect_b32 s{S_T+2}, s{S_T+2}, s{S_T+3}")
        a(f"s_and_b32 s{S_W0+4*p+1}, s{S_W0+4*p+1}, 0xffff")
        a(f"s_lshl_b32 s{S_WSTEP+p}, s{S_T+1}, 6")
        a(f"s_lshl_b32 s{S_T+2}, s{S_T+2}, 7")
        a(f"v_mul_lo_u32 v{V_TMP+5}, v{V_ROW}, s{S_T+1}")
        a(f"v_lshl_add_u32 v{V_TMP+5}, v{V_S8}, 4, v{V_TMP+5}")
        a(f"v_add_u32 v{V_WV+p}, s{S_T+2}, v{V_TMP+5}")
    prologue_w()
    a(f"s_add_u32 s{S_N}, s{S_N}, s{S_HP}")
    common_setup()
    a(f"v_and_b32 v{V_TMP+1}, 1, v{V_U}")
    a(f"v_bfe_u32 v{V_TMP+2}, v{V_U}, 1, 1")
    a(f"v_bfe_u32 v{V_TMP+3}, v{V_U}, 2, 1")
    a(f"v_lshl_add_u32 v{V_TMP+1}, v{V_TMP+3}, 1, v{V_TMP+1}")
    a(f"s_lshl_b32 s{S_T}, s{S_HP}, 13")
    a(f"s_add_u32 s{S_T}, s{S_T}, {WOFF}")
    for T in range(2):
        a(f"v_add_u32 v{V_TMP+4}, {4*T}, v{V_TMP+1}")
        a(f"v_xor_b32 v{V_TMP+4}, v{V_TMP+4}, v{V_RSW}")
        a(f"v_lshlrev_b32 v{V_TMP+4}, 4, v{V_TMP+4}")
        a(f"v_lshl_add_u32 v{V_TMP+4}, v{V_TMP+2}, 3, v{V_TMP+4}")
        a(f"v_lshl_add_u32 v{V_TMP+4}, v{V_ROW0}, 7, v{V_TMP+4}")
        a(f"v_add_u32 v{V_WB+T}, s{S_T}, v{V_TMP+4}")
    x_addr(2, 6, S_TQ)
    cs_roles()
    a(f"s_lshl_b32 s{S_B}, s{S_MT}, 3")
    a(f"s_add_u32 s{S_B}, s{S_B}, s{S_GI}")
    after_setup()
    a(f"s_cmp_lt_u32 s{S_B}, 14")
    a(f"s_cselect_b32 s{S_ZW}, 1, 0")
    a(f"s_cmp_eq_u32 s{S_WV}, 2")
    a(f"s_cselect_b32 s{S_ZFW}, s{S_ZW}, 0")
    def trailB():
        a(f"buffer_load_dword v{V_ONES}, v{V_ONES+1}, s[{S_X}:{S_X+3}], 0 offen")
    run_main('B', 2, P + "B", trailB)
    finish_stats('B')
    CSR = V_XF
    a(f"s_mul_i32 s{S_T}, s{S_HP}, 256")
    a(f"v_lshl_add_u32 v{V_TMP+4}, v{V_HF}, 4, s{S_T}")
    for T in range(2):
        for q in range(4):
            a(f"ds_read_b128 {vr(CSR+16*T+4*q,4)}, v{V_TMP+4} offset:{CS+T*128+q*32}")
    a(f"s_cmp_ge_u32 s{S_HP}, s{S_CNT}")
    a(f"s_cbranch_scc1 {P}B_EPI_DONE")
    a(f"s_cmp_lt_u32 s{S_N}, 2")
    a(f"s_cbranch_scc1 {P}B_QLINE")
    a(f"s_sub_u32 s{S_T}, s{S_N}, 2")
    a(f"s_lshl_b32 s{S_T+1}, s{S_T}, 7")
    a.srd_off(S_WS, S_PTR + 6, S_PTR + 7, f"s{S_T+1}", 128)
    BIA = V_E
    a(f"v_lshlrev_b32 v{V_TMP+5}, 4, v{V_HF}")
    for T in range(2):
        for p in range(2):
            a(f"buffer_load_dwordx4 {vr(BIA+(T*2+p)*4,4)}, v{V_TMP+5}, s[{S_WS}:{S_WS+3}], 0 offen offset:{(4*T+2*p)*16}")
    a(f"s_lshl_b32 s{S_T+1}, s{S_MT}, 3")
    a(f"s_lshl_b32 s{S_T+2}, s{S_TQ}, 2")
    a(f"s_add_u32 s{S_T+1}, s{S_T+1}, s{S_T+2}")
    a(f"s_mul_i32 s{S_T+1}, s{S_T+1}, {KS}")
    a(f"s_lshl_b32 s{S_T+2}, s{S_T}, 1")
    a(f"s_add_u32 s{S_T+1}, s{S_T+1}, s{S_T+2}")
    a(f"s_lshl_b32 s{S_T+1}, s{S_T+1}, 10")
    a(f"v_lshrrev_b32 v{V_TMP+5}, 4, v{V_T31}")
    a(f"v_mul_u32_u24 v{V_TMP+5}, {KS*1024}, v{V_TMP+5}")
    a(f"v_and_b32 v{V_TMP+6}, 15, v{V_T31}")
    a(f"v_lshl_add_u32 v{V_TMP+6}, v{V_HF}, 4, v{V_TMP+6}")
    a(f"v_lshl_add_u32 v{V_TMP+5}, v{V_TMP+6}, 4, v{V_TMP+5}")
    a(f"v_add_u32 v{V_TMP+5}, s{S_T+1}, v{V_TMP+5}")
    a(f"v_add_u32 v{V_TMP+6}, {2*KS*1024}, v{V_TMP+5}")
    a("s_waitcnt lgkmcnt(0)")
    MR = [(V_MN0, V_RS0), (V_MN1, V_RS1)]
    for tt in range(2):
        for T in range(2):
            A_ = acc(T * 2 + tt)
            for i in range(16):
                a(f"v_fmac_f32 v{A_+i}, v{CSR+16*T+i}, v{MR[tt][0]}")
    a("s_waitcnt vmcnt(0)")
    BF = V_E + 16
    for T in range(2):
        for p in range(2):
            for j in range(4):
                src = BIA + (T * 2 + p) * 4 + j
                a(f"v_lshlrev_b32 v{BF+16*T+8*p+2*j}, 16, v{src}")
                a(f"v_and_b32 v{BF+16*T+8*p+2*j+1}, 0xffff0000, v{src}")
    a.srd_off(S_WS, S_PTR, S_PTR + 1, ABUF_OFF, ABUF_BYTES)
    OPK = V_XF
    for tt in range(2):
        for T in range(2):
            A_ = acc(T * 2 + tt)
            for i in range(16):
                a(f"v_fma_f32 v{A_+i}, v{A_+i}, v{MR[tt][1]}, v{BF+16*T+i}")
                a(f"v_max_f32 v{A_+i}, 0, v{A_+i}")
                a(f"v_mul_f32 v{A_+i}, v{A_+i}, v{A_+i}")
            for p in range(2):
                o = OPK + ((tt * 2 + T) * 2 + p) * 4
                for j in range(4):
                    a(f"v_cvt_pk_bf16_f32 v{o+j}, v{A_+8*p+2*j}, v{A_+8*p+2*j+1}")
                a(f"buffer_store_dwordx4 {vr(o,4)}, v{V_TMP+5+tt}, s[{S_WS}:{S_WS+3}], 0 offen offset:{T*1024+p*512}{OSC}")
    a(f"s_branch {P}B_EPI_DONE")
    a.label(P + "B_QLINE")
    a.srd_off(S_WS, S_PTR, S_PTR + 1, QBUF_OFF, QBUF_BYTES)
    a(f"s_lshl_b32 s{S_T+1}, s{S_MT}, 2")
    a(f"s_lshl_b32 s{S_T+2}, s{S_TQ}, 1")
    a(f"s_add_u32 s{S_T+1}, s{S_T+1}, s{S_T+2}")
    a(f"s_mul_i32 s{S_T+1}, s{S_T+1}, 80")
    a(f"s_lshl_b32 s{S_T+2}, s{S_N}, 3")
    a(f"s_add_u32 s{S_T+1}, s{S_T+1}, s{S_T+2}")
    a(f"s_add_u32 s{S_T+1}, s{S_T+1}, 64")
    a(f"s_lshl_b32 s{S_T+1}, s{S_T+1}, 9")
    a(f"v_lshlrev_b32 v{V_TMP+5}, 9, v{V_HF}")
    a(f"v_lshl_add_u32 v{V_TMP+5}, v{V_T31}, 4, v{V_TMP+5}")
    a(f"v_add_u32 v{V_TMP+5}, s{S_T+1}, v{V_TMP+5}")
    a(f"v_add_u32 v{V_TMP+6}, {80*512}, v{V_TMP+5}")
    a("s_waitcnt lgkmcnt(0)")
    OPK = V_E
    for tt in range(2):
        for T in range(2):
            A_ = acc(T * 2 + tt)
            for i in range(16):
                a(f"v_fmac_f32 v{A_+i}, v{CSR+16*T+i}, v{MR[tt][0]}")
                a(f"v_mul_f32 v{A_+i}, v{A_+i}, v{MR[tt][1]}")
            for p in range(2):
                o = OPK + ((tt * 2 + T) * 2 + p) * 4
                for j in range(4):
                    a(f"v_cvt_pk_bf16_f32 v{o+j}, v{A_+8*p+2*j}, v{A_+8*p+2*j+1}")
                a(f"buffer_store_dwordx4 {vr(o,4)}, v{V_TMP+5+tt}, s[{S_WS}:{S_WS+3}], 0 offen offset:{(4*T+2*p)*512}{OSC}")
    a.label(P + "B_EPI_DONE")
    stamp("B epi done")
    SB = S_B
    a(f"s_cmp_ge_u32 s{SB}, {KS}")
    a(f"s_cbranch_scc1 {P}_DONE")
    a(f"s_cmp_lt_u32 s{SB}, {KS_H}")
    a(f"s_cselect_b32 s{S_WS}, s{S_PTR+8}, s{S_PTR+10}")
    a(f"s_cselect_b32 s{S_WS+1}, s{S_PTR+9}, s{S_PTR+11}")
    a(f"s_mov_b32 s{S_WS+2}, {640*1280}")
    a(f"s_cselect_b32 s{S_WS+2}, {1728*1280}, s{S_WS+2}")
    a(f"s_mov_b32 s{S_WS+3}, 0x00020000")
    a(f"s_cselect_b64 vcc, -1, 0")
    a(f"s_and_b32 s{S_WS+1}, s{S_WS+1}, 0xffff")
    a(f"s_mov_b64 s[{S_T+6}:{S_T+7}], vcc")
    a(f"s_mul_i32 s{S_T+5}, s{S_WV}, 5120")
    a(f"s_add_u32 s{S_T+5}, s{S_T+5}, {PREP}")
    a(f"s_mul_i32 s{S_T+4}, s{S_WV}, 160")
    a(f"s_lshl_b32 s{S_T}, s{SB}, 2")
    for i in range(5):
        a(f"v_add_u32 v{V_TMP}, {64*i}, v{V_L}")
        a(f"v_mul_u32_u24 v{V_TMP+1}, 6554, v{V_TMP}")
        a(f"v_lshrrev_b32 v{V_TMP+1}, 16, v{V_TMP+1}")
        a(f"v_mul_u32_u24 v{V_TMP+2}, 10, v{V_TMP+1}")
        a(f"v_sub_u32 v{V_TMP+2}, v{V_TMP}, v{V_TMP+2}")
        a(f"v_bfe_u32 v{V_TMP+3}, v{V_TMP+1}, 2, 2")
        a(f"v_and_b32 v{V_TMP+4}, 3, v{V_TMP+1}")
        a(f"v_lshrrev_b32 v{V_TMP+7}, 4, v{V_TMP+1}")
        a(f"v_lshl_add_u32 v{V_TMP+4}, v{V_TMP+7}, 2, v{V_TMP+4}")
        a(f"v_add_u32 v{V_TMP+8}, s{S_T}, v{V_TMP+3}")
        a(f"v_lshl_add_u32 v{V_WB}, v{V_TMP+8}, 3, v{V_TMP+4}")
        a(f"v_subrev_u32 v{V_WB+1}, 216, v{V_TMP+8}")
        a(f"v_mul_u32_u24 v{V_WB+2}, 13108, v{V_WB+1}")
        a(f"v_lshrrev_b32 v{V_WB+2}, 16, v{V_WB+2}")
        a(f"v_mul_u32_u24 v{V_WB+3}, 5, v{V_WB+2}")
        a(f"v_sub_u32 v{V_WB+3}, v{V_WB+1}, v{V_WB+3}")
        a(f"v_and_b32 v{V_WC}, 1, v{V_WB+3}")
        a(f"v_lshlrev_b32 v{V_WC}, 3, v{V_WC}")
        a(f"v_bfe_u32 v{V_WC+1}, v{V_WB+3}, 1, 1")
        a(f"v_mad_u32_u24 v{V_WC}, v{V_WC+1}, 20, v{V_WC}")
        a(f"v_lshlrev_b32 v{V_WC+1}, 4, v{V_TMP+7}")
        a(f"v_add_u32 v{V_WC+1}, 16, v{V_WC+1}")
        a(f"v_cmp_eq_u32 vcc, 4, v{V_WB+3}")
        a("s_nop 1")
        a(f"v_cndmask_b32 v{V_WC}, v{V_WC}, v{V_WC+1}, vcc")
        a(f"v_mad_u32_u24 v{V_WC}, v{V_WB+2}, 40, v{V_WC}")
        a(f"v_add_u32 v{V_WC}, v{V_WC}, v{V_TMP+4}")
        a(f"v_cndmask_b32 v{V_WB}, v{V_WC}, v{V_WB}, s[{S_T+6}:{S_T+7}]")
        a(f"v_mul_u32_u24 v{V_WB}, 1280, v{V_WB}")
        a(f"v_lshl_add_u32 v{V_WB}, v{V_TMP+2}, 4, v{V_WB}")
        a(f"v_add_u32 v{V_M+i}, s{S_T+4}, v{V_WB}")
    for i in range(5):
        a(f"s_add_u32 m0, s{S_T+5}, {i*1024}")
        a("s_nop 0")
        a(f"buffer_load_dwordx4 v{V_M+i}, s[{S_WS}:{S_WS+3}], 0 offen lds")
    a(f"v_lshrrev_b32 v{V_TMP}, 2, v{V_L}")
    a(f"v_mul_u32_u24 v{V_TMP}, 160, v{V_TMP}")
    a(f"v_and_b32 v{V_TMP+1}, 3, v{V_L}")
    a(f"v_lshl_add_u32 v{V_TMP+2}, v{V_TMP+1}, 4, v{V_TMP}")
    a(f"v_lshl_add_u32 v{V_TMP+3}, v{V_TMP+1}, 3, v{V_TMP}")
    a(f"v_add_u32 v{V_TMP+2}, s{S_T+5}, v{V_TMP+2}")
    a(f"v_add_u32 v{V_TMP+3}, s{S_T+5}, v{V_TMP+3}")
    a.srd_off(S_WS, S_PTR, S_PTR + 1, BBUF_OFF, BBUF_BYTES)
    a(f"s_mul_i32 s{S_T}, s{SB}, 40")
    a(f"s_mul_i32 s{S_T+1}, s{S_WV}, 5")
    a(f"s_add_u32 s{S_T}, s{S_T}, s{S_T+1}")
    a(f"s_lshl_b32 s{S_T}, s{S_T}, 10")
    a(f"v_lshlrev_b32 v{V_TMP+4}, 4, v{V_L}")
    a(f"v_add_u32 v{V_TMP+4}, s{S_T}, v{V_TMP+4}")
    a(f"v_add_u32 v{V_TMP+7}, 4096, v{V_TMP+4}")
    a("s_waitcnt vmcnt(0)")
    OB = V_ACC
    for nt in range(5):
        for rd in range(2):
            if nt < 4:
                a(f"ds_read_b64_tr_b16 {vr(OB+4*nt+2*rd,2)}, v{V_TMP+2} offset:{64*(nt//2)+8*(nt%2)+rd*2560}")
            else:
                a(f"ds_read_b64_tr_b16 {vr(OB+4*nt+2*rd,2)}, v{V_TMP+3} offset:{128+rd*2560}")
    a("s_waitcnt lgkmcnt(0)")
    for nt in range(4):
        a(f"buffer_store_dwordx4 {vr(OB+4*nt,4)}, v{V_TMP+4}, s[{S_WS}:{S_WS+3}], 0 offen offset:{nt*1024}{OSC}")
    a(f"buffer_store_dwordx4 {vr(OB+16,4)}, v{V_TMP+7}, s[{S_WS}:{S_WS+3}], 0 offen{OSC}")
    a.label(P + "_DONE")
    if timing:
        a("s_mov_b64 exec, -1")
        a("s_waitcnt vmcnt(0)")
        stamp_n[0] = 15
        stamp("end")
        a("s_memrealtime s[44:45]")
        a("s_waitcnt lgkmcnt(0)")
        a("s_lshl_b32 s46, s2, 7")
        a(f"s_lshl_b32 s47, s{S_WV}, 4")
        a("s_add_u32 s46, s46, s47")
        a(f"s_add_u32 s46, s46, {0x1320000}")
        a("v_mov_b32 v12, s46"); a("v_mov_b32 v14, s98"); a("v_mov_b32 v15, s44")
        a("s_mov_b64 s[44:45], exec"); a("s_mov_b64 exec, 1")
        a(f"global_store_dwordx2 v12, v[14:15], s[{S_PTR}:{S_PTR+1}]")
        a("s_mov_b64 exec, s[44:45]")
        a("s_cmp_eq_u32 s2, 0")
        a(f"s_cselect_b32 s40, {0x1300000}, 0")
        a("s_cmp_eq_u32 s2, 64")
        a(f"s_cselect_b32 s40, {0x1300000+4096}, s40")
        a("s_cmp_eq_u32 s40, 0")
        a(f"s_cbranch_scc1 {P}_END")
        a(f"s_lshl_b32 s41, s{S_WV}, 9")
        a("s_add_u32 s40, s40, s41")
        a(f"v_lshlrev_b32 v13, 2, v{V_L}")
        a("v_add_u32 v13, s40, v13")
        a(f"global_store_dword v13, v{V_STAMP}, s[{S_PTR}:{S_PTR+1}]")
    a.label(P + "_END")
    a("s_endpgm")
    return a.text(), 256, 100, 256, LDS_K1

if __name__ == "__main__":
    import sys
    body, vg, sg, ac, lds = gen_k1(timing=True, dis=sys.argv[2] if len(sys.argv) > 2 else '', SC={'a': ' sc0 sc1', 'b': ' sc1', 'c': '', 'd': ' sc0'}[sys.argv[3] if len(sys.argv) > 3 else 'a'])
    open(sys.argv[1], "w").write(file_text([("k1_kernel", 256, 512, lds)], [("k1_kernel", body, vg, sg, ac)]))
```

```python
from asmlib import *
from layout import *
from common import *

R = 4
STG = 36864
LDS_K2 = R * STG
PRIV = 3 * STG
PW = 6400
NSTG = 19

def gen_k2(timing=False, pfx="K2", producer=True, SC=" sc0 sc1"):
    a = Asm()
    P = pfx
    S_A, S_B, S_X, S_O, S_B2, S_G = 16, 20, 24, 28, 32, 36
    S_T = 40
    S_WV, S_MT, S_JN, S_W, S_HP, S_TT, S_PB = 48, 49, 50, 51, 52, 53, 54
    S_SA, S_SB, S_LB, S_NON = 56, 57, 58, 59
    S_T0 = 94
    V_L, V_T, V_G, V_T31, V_HF = 1, 2, 3, 4, 5
    V_A = 6
    V_B0, V_B1 = 10, 11
    V_XO, V_B2O, V_XO4, V_B2O4 = 12, 13, 14, 15
    V_LA, V_LB = 16, 17
    V_STAMP = 19
    V_TMP = 20
    V_X = 30; V_BB = 40
    V_ACC = 52
    V_FR = 72
    V_E = 120
    stamp_n = [0]
    def stamp(name):
        if not timing: return
        i = stamp_n[0]; stamp_n[0] += 1
        a(f"s_memtime s[{S_T0+2}:{S_T0+3}]")
        a("s_waitcnt lgkmcnt(0)")
        a(f"s_sub_u32 s{S_T0+2}, s{S_T0+2}, s{S_T0}")
        a(f"v_writelane_b32 v{V_STAMP}, s{S_T0+2}, {i}")
    a("s_cmp_ge_u32 s2, 256")
    a(f"s_cbranch_scc1 {P}_END")
    a("s_load_dwordx2 s[4:5], s[0:1], 0")
    a("s_load_dwordx2 s[6:7], s[0:1], 16")
    a("s_load_dwordx4 s[8:11], s[0:1], 64")
    a("s_load_dwordx4 s[12:15], s[0:1], 80")
    if timing: a(f"s_memtime s[{S_T0}:{S_T0+1}]")
    if timing: a("s_memrealtime s[98:99]")
    a(f"v_and_b32 v{V_L}, 63, v0")
    a(f"v_lshrrev_b32 v{V_TMP}, 6, v0")
    a(f"v_and_b32 v{V_T}, 15, v0")
    a(f"v_readfirstlane_b32 s{S_WV}, v{V_TMP}")
    a(f"v_bfe_u32 v{V_G}, v0, 4, 2")
    a(f"v_and_b32 v{V_T31}, 31, v0")
    a(f"v_bfe_u32 v{V_HF}, v0, 5, 1")
    a(f"s_and_b32 s{S_W}, s{S_WV}, 3")
    a("s_and_b32 s40, s2, 7")
    a("s_lshr_b32 s41, s2, 3")
    a("s_lshr_b32 s42, s40, 1")
    a("s_lshl_b32 s42, s42, 3")
    a("s_lshr_b32 s43, s41, 2")
    a(f"s_add_u32 s{S_MT}, s42, s43")
    a("s_and_b32 s40, s40, 1")
    a("s_lshl_b32 s40, s40, 2")
    a("s_and_b32 s41, s41, 3")
    a(f"s_add_u32 s{S_JN}, s40, s41")
    a(f"v_lshlrev_b32 v{V_B0}, 4, v{V_L}")
    a(f"v_add_u32 v{V_B1}, 4096, v{V_B0}")
    a("s_waitcnt lgkmcnt(0)")
    a(f"s_add_u32 s44, s14, {EPOCH_OFF}")
    a("s_addc_u32 s45, s15, 0")
    a(f"s_load_dword s{S_NON}, s[44:45], 0")
    a(f"s_cmp_ge_u32 s{S_WV}, 4")
    a(f"s_cbranch_scc1 {P}_LOADER")
    if producer:
        a(f"s_lshr_b32 s{S_HP}, s{S_W}, 1")
        a(f"s_and_b32 s{S_TT}, s{S_W}, 1")
        a(f"s_lshl_b32 s41, s{S_JN}, 1")
        a(f"s_add_u32 s41, s41, s{S_HP}")
        a(f"s_mul_i32 s{S_PB}, s{S_W}, {PW}")
        a(f"s_add_u32 s{S_PB}, s{S_PB}, {PRIV}")
        a("s_mul_i32 s42, s41, 1600")
        a.srd_off(S_G, 6, 7, "s42", 1600)
        WP = V_E
        a(f"buffer_load_dwordx4 {vr(WP,4)}, v{V_B0}, s[{S_G}:{S_G+3}], 0 offen")
        a(f"buffer_load_dwordx4 {vr(WP+4,4)}, v{V_B0}, s[{S_G}:{S_G+3}], 0 offen offset:1024")
        a("s_mul_i32 s42, s41, 6720")
        a(f"s_add_u32 s42, s42, {KVS_OFF}")
        a("s_nop 3")
        a.srd_off(S_G, 14, 15, "s42", 6720)
        KV = V_E + 8
        for i in range(7):
            a(f"buffer_load_dwordx4 {vr(KV+4*i,4)}, v{V_B0 if i < 4 else V_B1}, s[{S_G}:{S_G+3}], 0 offen offset:{(i%4)*1024}")
        a(f"s_lshl_b32 s40, s{S_MT}, 1")
        a(f"s_add_u32 s40, s40, s{S_TT}")
        a("s_mul_i32 s40, s40, 80")
        a("s_mul_i32 s42, s41, 5")
        a("s_add_u32 s40, s40, s42")
        a("s_lshl_b32 s40, s40, 9")
        a(f"v_lshl_add_u32 v{V_TMP}, v{V_T31}, 4, s40")
        a(f"v_mul_u32_u24 v{V_TMP+1}, {3*512}, v{V_HF}")
        a(f"v_add_u32 v{V_TMP+1}, v{V_TMP+1}, v{V_TMP}")
        a("s_nop 3")
        a.srd_off(S_G, 14, 15, QBUF_OFF, QBUF_BYTES)
        QF = V_E + 36
        a(f"buffer_load_dwordx4 {vr(QF,4)}, v{V_TMP+1}, s[{S_G}:{S_G+3}], 0 offen")
        a(f"buffer_load_dwordx4 {vr(QF+4,4)}, v{V_TMP+1}, s[{S_G}:{S_G+3}], 0 offen offset:512")
        a(f"buffer_load_dwordx4 {vr(QF+8,4)}, v{V_TMP}, s[{S_G}:{S_G+3}], 0 offen offset:1024")
    a.srd(S_X, 4, 5, 2621440)
    a.srd(S_O, 10, 11, 2621440)
    a.srd(S_B2, 8, 9, 1280)
    a(f"s_lshl_b32 s40, s{S_MT}, 6")
    a(f"s_lshl_b32 s42, s{S_W}, 4")
    a("s_add_u32 s40, s40, s42")
    a(f"v_add_u32 v{V_TMP}, s40, v{V_T}")
    a(f"v_mul_u32_u24 v{V_XO}, 1280, v{V_TMP}")
    a(f"s_mul_i32 s42, s{S_JN}, 160")
    a(f"v_lshl_add_u32 v{V_B2O}, v{V_G}, 4, s42")
    a(f"v_add_u32 v{V_XO}, v{V_XO}, v{V_B2O}")
    a(f"v_lshlrev_b32 v{V_TMP}, 3, v{V_G}")
    a(f"v_sub_u32 v{V_XO4}, v{V_XO}, v{V_TMP}")
    a(f"v_sub_u32 v{V_B2O4}, v{V_B2O}, v{V_TMP}")
    a(f"buffer_load_dwordx4 {vr(V_X,4)}, v{V_XO}, s[{S_X}:{S_X+3}], 0 offen")
    a(f"buffer_load_dwordx4 {vr(V_X+4,4)}, v{V_XO}, s[{S_X}:{S_X+3}], 0 offen offset:64")
    a(f"buffer_load_dwordx2 {vr(V_X+8,2)}, v{V_XO4}, s[{S_X}:{S_X+3}], 0 offen offset:128")
    a(f"buffer_load_dwordx4 {vr(V_BB,4)}, v{V_B2O}, s[{S_B2}:{S_B2+3}], 0 offen")
    a(f"buffer_load_dwordx4 {vr(V_BB+4,4)}, v{V_B2O}, s[{S_B2}:{S_B2+3}], 0 offen offset:64")
    a(f"buffer_load_dwordx2 {vr(V_BB+8,2)}, v{V_B2O4}, s[{S_B2}:{S_B2+3}], 0 offen offset:128")
    for i in range(20): a(f"v_mov_b32 v{V_ACC+i}, 0")
    if producer:
        WPL, ZL, KVL = 0, 1600, 2880
        Z = V_E + 48
        for i in range(4): a(f"v_mov_b32 v{Z+i}, 0")
        a(f"v_add_u32 v{V_TMP+2}, s{S_PB}, v{V_B0}")
        a(f"ds_write_b128 v{V_TMP+2}, {vr(Z,4)} offset:{ZL}")
        a(f"ds_write_b128 v{V_TMP+2}, {vr(Z,4)} offset:{ZL+256}")
        T0 = V_TMP + 3
        a(f"v_bfe_u32 v{T0}, v{V_L}, 4, 1")
        a(f"v_lshlrev_b32 v{T0}, 2, v{T0}")
        a(f"v_and_b32 v{T0+1}, 3, v{V_L}")
        a(f"v_add_u32 v{T0}, v{T0}, v{T0+1}")
        a(f"v_and_b32 v{T0+1}, 1, v{T0}")
        a(f"v_lshrrev_b32 v{T0}, 1, v{T0}")
        a(f"v_bfe_u32 v{T0+2}, v{V_L}, 2, 2")
        a(f"v_mul_u32_u24 v{T0+2}, 40, v{T0+2}")
        a(f"v_lshl_add_u32 v{T0+2}, v{T0}, 3, v{T0+2}")
        a(f"v_mul_u32_u24 v{T0+3}, 960, v{T0+1}")
        a(f"v_add3_u32 v{T0+2}, v{T0+2}, v{T0+3}, s{S_PB}")
        AD01, AD20, AD21, AZ = V_E + 52, V_E + 53, V_E + 54, V_E + 55
        a(f"s_add_u32 s42, s{S_PB}, {ZL}")
        a(f"v_mov_b32 v{AZ}, s42")
        a(f"v_cmp_eq_u32 vcc, v{T0+1}, v{V_HF}")
        a(f"v_cmp_eq_u32 s[44:45], 0, v{T0+1}")
        a(f"v_add_u32 v{T0+3}, 640, v{T0+2}")
        a(f"v_subrev_u32 v{T0+4}, 160, v{T0+2}")
        a(f"v_cndmask_b32 v{AD01}, v{AZ}, v{T0+2}, vcc")
        a("s_and_b64 s[46:47], vcc, s[44:45]")
        a("s_andn2_b64 s[44:45], vcc, s[44:45]")
        a("s_nop 1")
        a(f"v_cndmask_b32 v{AD20}, v{AZ}, v{T0+3}, s[46:47]")
        a(f"v_cndmask_b32 v{AD21}, v{AZ}, v{T0+4}, s[44:45]")
        a(f"v_lshrrev_b32 v{T0}, 3, v{V_T31}")
        a(f"v_bfe_u32 v{T0+1}, v{V_T31}, 2, 1")
        a(f"v_and_b32 v{T0+2}, 3, v{V_T31}")
        a(f"v_lshl_add_u32 v{T0+3}, v{T0}, 2, v{T0+2}")
        a(f"v_mul_u32_u24 v{T0+3}, 80, v{T0+3}")
        a(f"v_mul_u32_u24 v{T0+4}, 1680, v{T0+1}")
        a(f"s_add_u32 s42, s{S_PB}, {KVL}")
        a(f"v_add3_u32 v{T0+3}, v{T0+3}, v{T0+4}, s42")
        AX3, AY3 = V_E + 56, V_E + 57
        a(f"v_cmp_eq_u32 vcc, v{T0+1}, v{V_HF}")
        a("s_nop 1")
        a(f"v_cndmask_b32 v{AX3}, v{AZ}, v{T0+3}, vcc")
        a(f"v_add_u32 v{T0+3}, 1280, v{T0+3}")
        a(f"v_lshl_add_u32 v{T0+5}, v{T0}, 2, v{T0+2}")
        a(f"v_cmp_ge_u32 s[44:45], 4, v{T0+5}")
        a("s_and_b64 vcc, vcc, s[44:45]")
        a("s_nop 1")
        a(f"v_cndmask_b32 v{AY3}, v{AZ}, v{T0+3}, vcc")
        a("s_waitcnt vmcnt(16)")
        a(f"ds_write_b128 v{V_TMP+2}, {vr(WP,4)} offset:{WPL}")
        a(f"v_cmp_gt_u32 vcc, 36, v{V_L}")
        a("s_and_saveexec_b64 s[44:45], vcc")
        a(f"ds_write_b128 v{V_TMP+2}, {vr(WP+4,4)} offset:{WPL+1024}")
        a("s_mov_b64 exec, s[44:45]")
        a(f"v_lshlrev_b32 v{V_TMP+1}, 3, v{V_L}")
        a(f"v_add_u32 v{V_TMP+1}, s{S_PB}, v{V_TMP+1}")
        a("s_waitcnt vmcnt(9)")
        KP = V_E + 60
        for i in range(7):
            a(f"v_cvt_pk_bf16_f32 v{KP+2*i}, v{KV+4*i}, v{KV+4*i+1}")
            a(f"v_cvt_pk_bf16_f32 v{KP+2*i+1}, v{KV+4*i+2}, v{KV+4*i+3}")
        for i in range(6):
            a(f"ds_write_b64 v{V_TMP+1}, {vr(KP+2*i,2)} offset:{KVL+i*512}")
        a(f"v_cmp_gt_u32 vcc, 36, v{V_L}")
        a("s_and_saveexec_b64 s[44:45], vcc")
        a(f"ds_write_b64 v{V_TMP+1}, {vr(KP+12,2)} offset:{KVL+6*512}")
        a("s_mov_b64 exec, s[44:45]")
        a("s_waitcnt lgkmcnt(0)")
        A2 = V_E + 76
        for xy in range(2):
            for s_ in range(3):
                for rd in range(2):
                    if s_ < 2: a(f"ds_read_b64_tr_b16 {vr(A2+(xy*3+s_)*4+2*rd,2)}, v{AD01} offset:{s_*320+rd*160+xy*32}")
                    else: a(f"ds_read_b64_tr_b16 {vr(A2+(xy*3+s_)*4+2*rd,2)}, v{AD20 if rd == 0 else AD21} offset:{xy*32}")
        PX, PY = V_E, V_E + 16
        a("s_waitcnt vmcnt(6) lgkmcnt(0)")
        for xy, PP in ((0, PX), (1, PY)):
            for s_ in range(3):
                c = "0" if s_ == 0 else vr(PP, 16)
                a(f"v_mfma_f32_32x32x16_bf16 {vr(PP,16)}, {vr(A2+(xy*3+s_)*4,4)}, {vr(QF+4*s_,4)}, {c}")
        A3 = V_FR
        for xy, AD in ((0, AX3), (1, AY3)):
            for s3 in range(5):
                a(f"ds_read_b128 {vr(A3+(xy*5+s3)*4,4)}, v{AD} offset:{s3*16}")
        VC = V_TMP + 9
        a(f"v_mov_b32 v{VC}, {hex(LOG2E)}")
        a("s_nop 7"); a("s_nop 3")
        stamp("before softmax")
        p_ = [PX + i for i in range(16)] + [PY + i for i in range(4)]
        EP, EM, PH = V_E + 32, V_E + 52, V_E + 76 + 24
        softmax20(a, p_, VC, EP, EM, PH, V_TMP + 3)
        X3, Y3 = V_E, V_E + 16
        a("s_waitcnt lgkmcnt(0)")
        for xy, PP in ((0, X3), (1, Y3)):
            for s3 in range(5):
                c = "0" if s3 == 0 else vr(PP, 16)
                a(f"v_mfma_f32_32x32x16_bf16 {vr(PP,16)}, {vr(A3+(xy*5+s3)*4,4)}, {vr(PH+4*s3,4)}, {c}")
        a(f"s_lshl_b32 s41, s{S_JN}, 1")
        a(f"s_add_u32 s41, s41, s{S_HP}")
        a("s_mul_i32 s41, s41, 5")
        a("s_add_u32 s41, s41, 216")
        a(f"s_lshl_b32 s40, s{S_MT}, 2")
        a(f"s_lshl_b32 s42, s{S_TT}, 1")
        a("s_add_u32 s40, s40, s42")
        a(f"v_lshrrev_b32 v{T0}, 4, v{V_T31}")
        a(f"v_add_u32 v{T0}, s40, v{T0}")
        a(f"v_mul_u32_u24 v{T0}, {KS*1024}, v{T0}")
        a(f"v_and_b32 v{T0+1}, 15, v{V_T31}")
        a(f"v_lshl_add_u32 v{T0}, v{T0+1}, 4, v{T0}")
        def caddr(dst, cexpr_reg):
            a(f"v_lshrrev_b32 v{T0+2}, 2, v{cexpr_reg}")
            a(f"v_and_b32 v{T0+3}, 3, v{cexpr_reg}")
            a(f"v_lshl_add_u32 v{dst}, v{T0+2}, 10, v{T0}")
            a(f"v_lshl_add_u32 v{dst}, v{T0+3}, 8, v{dst}")
        SA0, SA1, SA2 = V_E + 32, V_E + 33, V_E + 34
        a(f"v_lshl_add_u32 v{T0+4}, v{V_HF}, 1, s41")
        caddr(SA0, T0 + 4)
        a(f"v_add_u32 v{T0+4}, 1, v{T0+4}")
        caddr(SA1, T0 + 4)
        a(f"s_add_u32 s41, s41, 4")
        a(f"v_mov_b32 v{T0+4}, s41")
        caddr(SA2, T0 + 4)
        a.srd_off(S_G, 14, 15, ABUF_OFF, ABUF_BYTES)
        a("s_nop 7"); a("s_nop 7")
        a(f"v_add_f32 v{T0}, 0x358637bd, v{Y3+4}")
        a(f"v_rcp_f32 v{T0}, v{T0}")
        a("s_nop 0")
        OP = V_E + 36
        C4 = V_E + 44
        for i in range(16): a(f"v_mul_f32 v{X3+i}, v{X3+i}, v{T0}")
        for i in range(4): a(f"v_mul_f32 v{Y3+i}, v{Y3+i}, v{T0}")
        for p in range(8): a(f"v_cvt_pk_bf16_f32 v{OP+p}, v{X3+2*p}, v{X3+2*p+1}")
        for p in range(2):
            a(f"v_cvt_pk_bf16_f32 v{C4+p}, v{Y3+2*p}, v{Y3+2*p+1}")
            a(f"v_cvt_pk_bf16_f32 v{C4+2+p}, v{Y3+2*p}, v{Y3+2*p+1}")
        a(f"buffer_store_dwordx4 {vr(OP,4)}, v{SA0}, s[{S_G}:{S_G+3}], 0 offen{SC}")
        a(f"buffer_store_dwordx4 {vr(OP+4,4)}, v{SA1}, s[{S_G}:{S_G+3}], 0 offen{SC}")
        a(f"v_permlane32_swap_b32 v{C4}, v{C4+2}")
        a(f"v_permlane32_swap_b32 v{C4+1}, v{C4+3}")
        a("s_mov_b64 s[44:45], exec")
        a("s_mov_b32 exec_hi, 0")
        a(f"buffer_store_dwordx4 {vr(C4,4)}, v{SA2}, s[{S_G}:{S_G+3}], 0 offen{SC}")
        a("s_mov_b64 exec, s[44:45]")
        stamp("o stored")
    a(f"s_lshl_b32 s40, s{S_W}, 10")
    a("s_add_u32 s40, s40, 5120")
    a(f"v_add_u32 v{V_LA}, s40, v{V_B0}")
    a(f"v_add_u32 v{V_LA+2}, 0x10000, v{V_LA}")
    a(f"v_add_u32 v{V_E+100}, 0x20000, v{V_LA}")
    a(f"v_add_u32 v{V_E+101}, 0x10000, v{V_B0}")
    a(f"v_add_u32 v{V_E+102}, 0x20000, v{V_B0}")
    LA = [V_LA, V_LA + 2, V_E + 100]; LB = [V_B0, V_E + 101, V_E + 102]
    def fr(buf, k): return V_FR + buf * 24 + k * 4
    def reads(i, j, buf):
        base = (i % R) * STG + j * 9216
        L = []
        off = base
        L.append(f"ds_read_b128 {vr(fr(buf,0),4)}, v{LA[off >> 16]} offset:{off & 0xffff}" if ((off & 0xffff) + 0) < 65536 else None)
        for nt in range(5):
            o = base + nt * 1024
            L.append(f"ds_read_b128 {vr(fr(buf,1+nt),4)}, v{LB[o >> 16]} offset:{o & 0xffff}")
        return L
    if producer:
        pass
    a("s_waitcnt lgkmcnt(0)")
    a("s_barrier")
    stamp("B0")
    if producer:
        pass
    NB = 4
    for jj in range(3):
        for x in reads(0, jj, jj): a(x)
    NK = NSTG * 4
    for n in range(NK):
        i, j = divmod(n, 4)
        buf = n % NB
        m = n + 3
        if j == 1 and i < NSTG - 1:
            if producer and i == 2: a("s_waitcnt vmcnt(0)")
            a("s_waitcnt lgkmcnt(0)")
            a("s_barrier")
            if producer and i == 2:
                L = P + "_NOARR"
                a(f"s_cmp_lg_u32 s{S_WV}, 0")
                a(f"s_cbranch_scc1 {L}")
                a(f"s_lshl_b32 s40, s{S_MT}, 7")
                a(f"s_lshl_b32 s41, s{S_JN}, 2")
                a("s_add_u32 s40, s40, s41")
                a(f"s_add_u32 s40, s40, {OFLAG_OFF}")
                a(f"v_mov_b32 v{V_TMP}, s40")
                a(f"v_mov_b32 v{V_TMP+1}, s{S_NON}")
                a("s_mov_b64 s[44:45], exec")
                a("s_mov_b64 exec, 1")
                a(f"global_store_dword v{V_TMP}, v{V_TMP+1}, s[14:15] sc0 sc1")
                a("s_mov_b64 exec, s[44:45]")
                a.label(L)
            if timing:
                a(f"s_memtime s[{S_T0+2}:{S_T0+3}]")
                a("s_waitcnt lgkmcnt(0)")
                a(f"s_sub_u32 s{S_T0+2}, s{S_T0+2}, s{S_T0}")
                a(f"v_writelane_b32 v{V_STAMP}, s{S_T0+2}, {16+i}")
        else:
            outstanding = min(2, NK - 1 - n)
            a(f"s_waitcnt lgkmcnt({6*outstanding})")
        rl = reads(m // 4, m % 4, m % NB) if m < NK else []
        for nt in range(5):
            a(f"v_mfma_f32_16x16x32_bf16 {vr(V_ACC+4*nt,4)}, {vr(fr(buf,1+nt),4)}, {vr(fr(buf,0),4)}, {vr(V_ACC+4*nt,4)}")
            if nt == 0:
                for x in rl[:3]: a(x)
            if nt == 1:
                for x in rl[3:]: a(x)
    stamp("main end")
    Rr = V_ACC
    T = V_TMP
    def add_bf16(base_reg, dst_list):
        for p in range(len(dst_list) // 2):
            a(f"v_lshlrev_b32 v{T}, 16, v{base_reg+p}")
            a(f"v_and_b32 v{T+1}, 0xffff0000, v{base_reg+p}")
            a(f"v_add_f32 v{dst_list[2*p]}, v{dst_list[2*p]}, v{T}")
            a(f"v_add_f32 v{dst_list[2*p+1]}, v{dst_list[2*p+1]}, v{T+1}")
    a("s_waitcnt vmcnt(0)")
    SB_ = V_E
    for p in range(10):
        a(f"v_lshlrev_b32 v{T}, 16, v{V_X+p}")
        a(f"v_and_b32 v{T+1}, 0xffff0000, v{V_X+p}")
        a(f"v_lshlrev_b32 v{T+2}, 16, v{V_BB+p}")
        a(f"v_and_b32 v{T+3}, 0xffff0000, v{V_BB+p}")
        a(f"v_add_f32 v{SB_+2*p}, v{T}, v{T+2}")
        a(f"v_add_f32 v{SB_+2*p+1}, v{T+1}, v{T+3}")
    for i in range(20): a(f"v_add_f32 v{Rr+i}, v{Rr+i}, v{SB_+i}")
    O = V_E + 24
    for p in range(10): a(f"v_cvt_pk_bf16_f32 v{O+p}, v{Rr+2*p}, v{Rr+2*p+1}")
    a(f"buffer_store_dwordx4 {vr(O,4)}, v{V_XO}, s[{S_O}:{S_O+3}], 0 offen")
    a(f"buffer_store_dwordx4 {vr(O+4,4)}, v{V_XO}, s[{S_O}:{S_O+3}], 0 offen offset:64")
    a(f"buffer_store_dwordx2 {vr(O+8,2)}, v{V_XO4}, s[{S_O}:{S_O+3}], 0 offen offset:128")
    if timing:
        a("s_waitcnt vmcnt(0)")
        stamp_n[0] = 15
        stamp("end")
        a("s_memrealtime s[44:45]")
        a("s_waitcnt lgkmcnt(0)")
        a("s_lshl_b32 s46, s2, 7")
        a(f"s_lshl_b32 s47, s{S_WV}, 4")
        a("s_add_u32 s46, s46, s47")
        a(f"s_add_u32 s46, s46, {0x1330000}")
        a("v_mov_b32 v12, s46"); a("v_mov_b32 v14, s98"); a("v_mov_b32 v15, s44")
        a("s_mov_b64 s[44:45], exec"); a("s_mov_b64 exec, 1")
        a(f"global_store_dwordx2 v12, v[14:15], s[14:15]")
        a("s_mov_b64 exec, s[44:45]")
        a("s_cmp_lg_u32 s2, 5")
        a(f"s_cbranch_scc1 {P}_END")
        a(f"s_cmp_lg_u32 s{S_WV}, 0")
        a(f"s_cbranch_scc1 {P}_END")
        a(f"v_lshlrev_b32 v13, 2, v{V_L}")
        a(f"v_add_u32 v13, {0x1310000}, v13")
        a(f"global_store_dword v13, v{V_STAMP}, s[14:15]")
    a("s_endpgm")
    a.label(P + "_LOADER")
    a("s_waitcnt lgkmcnt(0)")
    a(f"v_mov_b32 v{V_A}, v{V_B0}")
    for mt in range(1, 4):
        a(f"v_add_u32 v{V_A+mt}, {mt*KS*1024}, v{V_B0}")
    a(f"s_mul_i32 s40, s{S_MT}, {4*KS*1024}")
    a.srd_off(S_A, 14, 15, "s40", 4*KS*1024)
    a(f"s_mul_i32 s40, s{S_JN}, 5120")
    a(f"s_add_u32 s41, s40, {BBUF_OFF}")
    a.srd_off(S_B, 14, 15, "s41", 0)
    a(f"s_sub_u32 s{S_B+2}, {BBUF_BYTES}, s40")
    a(f"s_lshl_b32 s{S_SA}, s{S_W}, 10")
    a(f"s_mul_i32 s{S_SB}, s{S_W}, 40960")
    a(f"s_mul_i32 s{S_LB}, s{S_W}, 9216")
    def set_off(i):
        if i == 0: return
        if i < 13 or i > 14:
            a(f"s_add_u32 s{S_SA}, s{S_SA}, 4096"); a(f"s_add_u32 s{S_SB}, s{S_SB}, 163840")
        elif i == 13:
            a(f"s_add_u32 s{S_SA}, s{S_SA}, 4096"); a(f"s_add_u32 s{S_SB}, s{S_SB}, 163840")
            a(f"s_cmp_lt_u32 s{S_W}, 2")
            a(f"s_cselect_b32 s{S_SA}, s{S_SA}, 0x7f000000")
            a(f"s_cselect_b32 s{S_SB}, s{S_SB}, 0x7f000000")
        else:
            a(f"s_lshl_b32 s{S_SA}, s{S_W}, 10"); a(f"s_add_u32 s{S_SA}, s{S_SA}, {54*1024}")
            a(f"s_mul_i32 s{S_SB}, s{S_W}, 40960"); a(f"s_add_u32 s{S_SB}, s{S_SB}, {54*40960}")
    def issue(i):
        set_off(i)
        base = (i % R) * STG
        fl = " sc1" if (i >= 14 and producer) else ""
        a(f"s_add_u32 m0, s{S_LB}, {base}")
        a("s_nop 0")
        for nt in range(4):
            a(f"buffer_load_dwordx4 v{V_B0}, s[{S_B}:{S_B+3}], s{S_SB} offen offset:{nt*1024} lds")
        a(f"s_add_u32 m0, s{S_LB}, {base + 4096}")
        a("s_nop 0")
        a(f"buffer_load_dwordx4 v{V_B1}, s[{S_B}:{S_B+3}], s{S_SB} offen lds")
        for mt in range(4):
            a(f"s_add_u32 m0, s{S_LB}, {base + 5120 + mt*1024}")
            a("s_nop 0")
            a(f"buffer_load_dwordx4 v{V_A+mt}, s[{S_A}:{S_A+3}], s{S_SA} offen{fl} lds")
    def poll():
        Lp = P + "_POLL"
        a(f"s_lshl_b32 s40, s{S_MT}, 7")
        a(f"s_add_u32 s40, s40, {OFLAG_OFF}")
        a(f"v_and_b32 v{V_TMP}, 7, v{V_L}")
        a(f"v_lshl_add_u32 v{V_TMP}, v{V_TMP}, 2, s40")
        a("s_mov_b32 s42, 0")
        a.label(Lp)
        a(f"global_load_dword v{V_TMP+1}, v{V_TMP}, s[14:15] sc1")
        a("s_waitcnt vmcnt(0)")
        a(f"v_cmp_ne_u32 vcc, s{S_NON}, v{V_TMP+1}")
        a("s_add_u32 s42, s42, 1")
        a("s_cmp_gt_u32 s42, 4000")
        a(f"s_cbranch_scc1 {Lp}_OK")
        a(f"s_cbranch_vccz {Lp}_OK")
        a("s_sleep 2")
        a(f"s_branch {Lp}")
        a.label(Lp + "_OK")
    for i in range(3): issue(i)
    a("s_waitcnt vmcnt(18)")
    a("s_barrier")
    issue(3)
    for i in range(NSTG - 1):
        after = min(2, NSTG - 1 - (i + 1))
        if not (producer and i + 4 > 14 and i + 4 - 3 <= 14 and False):
            a(f"s_waitcnt vmcnt({9*after})")
        a("s_barrier")
        if i + 4 < NSTG:
            if i + 4 == 14 and producer:
                poll()
            issue(i + 4)
    a.label(P + "_END")
    a("s_endpgm")
    return a.text(), 256, 100, 256, LDS_K2

if __name__ == "__main__":
    import sys
    body, vg, sg, ac, lds = gen_k2(timing=True, producer=(len(sys.argv) < 3))
    open(sys.argv[1], "w").write(file_text([("k2_kernel", 256, 512, lds)], [("k2_kernel", body, vg, sg, ac)]))
```

```python
S, D, F, H, DH = 2048, 640, 1728, 32, 20
KS_H = 54
KS_O = 20
KS = KS_H + KS_O
ABUF_OFF = 0
ABUF_BYTES = 128 * KS * 1024
BBUF_OFF = 0xA00000
BBUF_BYTES = KS * 40 * 1024
QBUF_OFF = 0xE00000
QBUF_BYTES = 64 * 80 * 512
KVS_OFF = 0x1200000
KVS_BYTES = 32 * 21 * 40 * 4

def o_chunk_channels(c):
    P, i = divmod(c, 5)
    a, b = 40 * P, 40 * P + 20
    if i == 0: return list(range(a, a + 8))
    if i == 1: return list(range(a + 8, a + 16))
    if i == 2: return list(range(b, b + 8))
    if i == 3: return list(range(b + 8, b + 16))
    return list(range(a + 16, a + 20)) + list(range(b + 16, b + 20))

def k2_col_map(nt, i):
    g, r = divmod(i, 4)
    if nt < 4:
        return 32 * (nt // 2) + 8 * g + 4 * (nt % 2) + r
    return 64 + i
STATG_OFF = 0x1240000
STATG_BYTES = 2048 * 16
CSG_OFF = 0x1250000
CSG_BYTES = 16 * 10 * 2048
EPOCH_OFF = 0x12C0000
OFLAG_OFF = 0x12C1000
DONE_OFF = 0x12C2000
PDONE_OFF = 0x12C3000
```

```python
from asmlib import *
from layout import *
from k1tables import SLOT_A, TILES, LIGHTS, tile_quad, where

CS = 0
WPHI = 1024
ZERO = WPHI + 3200
CSP = 6144
XOFF = 10240; XSTG = 16384
WOFF = XOFF + 3 * XSTG; WSTG = 32768
LDS_K1 = WOFF + 3 * WSTG
PHI = XOFF
VP = PHI + 40960
PREP = VP + 24576
LOG2E = 0x3fb8aa3b
ONES2 = 0x3f803f80

def gen_k1(timing=False, dis='', pfx="K1", SC=' sc0 sc1', OSC='', fused=False):
    a = Asm()
    S_X, S_W0 = 16, 20
    S_WS = 36
    S_T = 40
    S_WV, S_MT, S_GI, S_HP, S_TQ = 48, 49, 50, 51, 52
    S_XRD, S_WRD = 53, 54
    S_XSO = 55
    S_WSO = 56
    S_WSTEP = 60
    S_I = 64; S_M0X, S_M0W = 65, 66; S_SIG = 67
    S_PTR = 68
    S_M2 = 80
    S_ROLE = 86; S_CSK = 87
    S_ZFW = 91; S_RSO = 92; S_ZW = 93; S_PLB = 87
    S_N, S_CNT, S_B = S_M2 + 3, S_M2 + 4, S_M2 + 5
    S_CSPUB, S_C2W, S_NM = 88, 89, 90
    S_T0 = 94
    V_L = 1; V_T31 = 2; V_HF = 3
    V_XV = 4; V_WV = 5
    V_XA = 9
    V_WB = 11; V_WC = 15
    V_STAMP = 19
    V_TMP = 20
    V_XF = 30; V_WF = 54
    V_ONES = 102
    V_ACC = 104
    V_E = 168
    V_NON = 168 + 75
    V_M = 248
    V_MN0, V_RS0, V_MN1, V_RS1 = 248, 249, 250, 251
    P = pfx

    stamp_n = [0]
    def stamp(name):
        if not timing: return
        i = stamp_n[0]; stamp_n[0] += 1
        a(f"s_memtime s[{S_T0+2}:{S_T0+3}]")
        a("s_waitcnt lgkmcnt(0)")
        a(f"s_sub_u32 s{S_T0+2}, s{S_T0+2}, s{S_T0}")
        a(f"v_writelane_b32 v{V_STAMP}, s{S_T0+2}, {i}")
    def pst(lane):
        if timing and 'P' in dis:
            a(f"s_memtime s[{S_T0+2}:{S_T0+3}]")
            a("s_waitcnt lgkmcnt(0)")
            a(f"s_sub_u32 s{S_T0+2}, s{S_T0+2}, s{S_T0}")
            a(f"v_writelane_b32 v{V_STAMP}, s{S_T0+2}, {lane}")
    def xf(buf, tt): return V_XF + buf * 8 + tt * 4
    def wf(buf, T): return V_WF + buf * 16 + T * 4
    def acc(i): return V_ACC + 16 * i
    def flag_add(kind):
        if kind == 'x': a(f"s_lshl_b32 s{S_T+4}, s{S_MT}, 2")
        elif kind == 'c':
            a(f"s_lshl_b32 s{S_T+4}, s{S_ROLE}, 2"); a(f"s_add_u32 s{S_T+4}, s{S_T+4}, 64")
        else: a(f"s_mov_b32 s{S_T+4}, 128")
        a(f"v_mov_b32 v{V_TMP+8}, s{S_T+4}")
        a(f"v_mov_b32 v{V_TMP+9}, 1")
        a(f"s_mov_b64 s[{S_T+6}:{S_T+7}], exec")
        a("s_mov_b64 exec, 1")
        a(f"global_atomic_add v{V_TMP+8}, v{V_TMP+9}, s[{S_PTR+2}:{S_PTR+3}] sc1")
        a(f"s_mov_b64 exec, s[{S_T+6}:{S_T+7}]")

    def advance_slot():
        a(f"s_add_u32 s{S_XRD}, s{S_XRD}, {XSTG}")
        a(f"s_add_u32 s{S_WRD}, s{S_WRD}, {WSTG}")
        a(f"s_cmp_eq_u32 s{S_XRD}, {XOFF+3*XSTG}")
        a(f"s_cselect_b32 s{S_XRD}, {XOFF}, s{S_XRD}")
        a(f"s_cselect_b32 s{S_WRD}, 0, s{S_WRD}")
    def dma_stage(sx, sw):
        a(f"s_add_u32 m0, s{S_M0X}, s{sx}")
        a(f"s_add_u32 s{S_T}, s{S_XSO}, 81920")
        a(f"buffer_load_dwordx4 v{V_XV}, s[{S_X}:{S_X+3}], s{S_XSO} offen lds")
        a(f"s_add_u32 m0, m0, 8192")
        a(f"s_add_u32 s{S_T+1}, s{S_M0W}, s{sw}")
        a(f"buffer_load_dwordx4 v{V_XV}, s[{S_X}:{S_X+3}], s{S_T} offen lds")
        for p in range(4):
            a(f"s_add_u32 m0, s{S_T+1}, {p*8192}")
            a("s_nop 0")
            a(f"buffer_load_dwordx4 v{V_WV+p}, s[{S_W0+4*p}:{S_W0+4*p+3}], s{S_WSO+p} offen lds")
        next_sigma()
    def next_sigma(xonly=False, wonly=False):
        if not wonly: a(f"s_add_u32 s{S_XSO}, s{S_XSO}, 128")
        if not xonly:
            for p in range(4): a(f"s_add_u32 s{S_WSO+p}, s{S_WSO+p}, s{S_WSTEP+p}")
        if xonly:
            a(f"s_cmp_eq_u32 s{S_XSO}, 1280"); a(f"s_cselect_b32 s{S_XSO}, 0, s{S_XSO}")
            return
        a(f"s_add_u32 s{S_SIG}, s{S_SIG}, 1")
        a(f"s_cmp_eq_u32 s{S_SIG}, 10")
        a(f"s_cselect_b32 s{S_SIG}, 0, s{S_SIG}")
        if not wonly: a(f"s_cselect_b32 s{S_XSO}, 0, s{S_XSO}")
        for p in range(4): a(f"s_cselect_b32 s{S_WSO+p}, 0, s{S_WSO+p}")
    def dma_x_now(st):
        a(f"s_add_u32 m0, s{S_M0X}, {XOFF + st*XSTG}")
        a(f"s_add_u32 s{S_T}, s{S_XSO}, 81920")
        a(f"buffer_load_dwordx4 v{V_XV}, s[{S_X}:{S_X+3}], s{S_XSO} offen lds")
        a(f"s_add_u32 m0, m0, 8192")
        a("s_nop 0")
        a(f"buffer_load_dwordx4 v{V_XV}, s[{S_X}:{S_X+3}], s{S_T} offen lds")
    def dma_w_now(st):
        for p in range(4):
            a(f"s_add_u32 m0, s{S_M0W}, {st*WSTG + p*8192}")
            a("s_nop 0")
            a(f"buffer_load_dwordx4 v{V_WV+p}, s[{S_W0+4*p}:{S_W0+4*p+3}], s{S_WSO+p} offen lds")
    def prologue_w():
        for p in range(4): a(f"s_mul_i32 s{S_WSO+p}, s{S_SIG}, s{S_WSTEP+p}")
        dma_w_now(0)
        next_sigma()
    def prologue_w2():
        a(f"buffer_load_dwordx4 {vr(V_E+64,4)}, v{V_M+6}, s[{S_X}:{S_X+3}], s{S_RSO} offen")
        a(f"buffer_load_dwordx4 {vr(V_E+68,4)}, v{V_M+7}, s[{S_X}:{S_X+3}], s{S_RSO} offen")
        dma_x_now(1); dma_w_now(1)
        next_sigma()

    def xrow_stats():
        R = V_E + 64
        S1, S2, ON = V_TMP + 2, V_TMP + 3, V_TMP + 4
        a(f"v_mov_b32 v{ON}, {hex(ONES2)}")
        a(f"v_mov_b32 v{S1}, 0"); a(f"v_mov_b32 v{S2}, 0")
        for i in range(8):
            a(f"v_dot2_f32_bf16 v{S1}, v{R+i}, v{ON}, v{S1}")
            a(f"v_dot2_f32_bf16 v{S2}, v{R+i}, v{R+i}, v{S2}")
        for dpp in ("row_shr:1", "row_shr:2", "row_shr:4", "row_shr:8", "row_bcast:15 row_mask:0xa", "row_bcast:31 row_mask:0xc"):
            a("s_nop 1")
            a(f"v_add_f32_dpp v{S1}, v{S1}, v{S1} {dpp}" + (" row_mask:0xf" if "mask" not in dpp else "") + " bank_mask:0xf")
            a(f"v_add_f32_dpp v{S2}, v{S2}, v{S2} {dpp}" + (" row_mask:0xf" if "mask" not in dpp else "") + " bank_mask:0xf")
        a(f"v_mul_f32 v{V_E+72}, 0xbacccccd, v{S1}")
        a(f"v_mul_f32 v{S2}, 0x3acccccd, v{S2}")
        a(f"v_fma_f32 v{S2}, -v{V_E+72}, v{V_E+72}, v{S2}")
        a(f"v_max_f32 v{S2}, 0, v{S2}")
        a(f"v_add_f32 v{S2}, 0x3727c5ac, v{S2}")
        a(f"v_rsq_f32 v{V_E+73}, v{S2}")
        a(f"s_lshl_b32 s{S_T}, s{S_MT}, 7")
        a(f"s_lshl_b32 s{S_T+1}, s{S_ROLE}, 3")
        a(f"s_add_u32 s{S_T}, s{S_T}, s{S_T+1}")
        a(f"s_add_u32 s{S_T}, s{S_T}, s{S_WV}")
        a(f"s_lshl_b32 s{S_T}, s{S_T}, 4")
        a(f"s_add_u32 s{S_RSO}, s{S_T}, {STATG_OFF}")
    def xrow_store():
        a(f"v_mov_b32 v{V_E+74}, v{V_NON}")
        a(f"v_mov_b32 v{V_TMP+8}, s{S_RSO}")
        a(f"s_mov_b64 s[{S_T+6}:{S_T+7}], exec")
        a("s_mov_b32 exec_lo, 0"); a("s_mov_b32 exec_hi, 0x80000000")
        a(f"global_store_dwordx4 v{V_TMP+8}, {vr(V_E+72,4)}, s[{S_PTR}:{S_PTR+1}]{SC}")
        a(f"s_mov_b64 exec, s[{S_T+6}:{S_T+7}]")

    def dma_pieces(sx, sw):
        G = []
        G.append([f"s_add_u32 m0, s{S_M0X}, s{sx}", f"s_add_u32 s{S_T}, s{S_XSO}, 81920",
                  f"buffer_load_dwordx4 v{V_XV}, s[{S_X}:{S_X+3}], s{S_XSO} offen lds"])
        G.append([f"s_add_u32 m0, s{S_M0X}, s{sx}", f"s_add_u32 m0, m0, 8192", f"s_add_u32 s{S_T}, s{S_XSO}, 81920",
                  f"buffer_load_dwordx4 v{V_XV}, s[{S_X}:{S_X+3}], s{S_T} offen lds"])
        for p in range(4):
            G.append([f"s_add_u32 s{S_T+1}, s{S_M0W}, s{sw}", f"s_add_u32 m0, s{S_T+1}, {p*8192}", "s_nop 0",
                      f"buffer_load_dwordx4 v{V_WV+p}, s[{S_W0+4*p}:{S_W0+4*p+3}], s{S_WSO+p} offen lds"])
        return G

    def prep_issue():
        SB = S_B
        a(f"s_cmp_lt_u32 s{SB}, {KS_H}")
        a(f"s_cselect_b32 s{S_WS}, s{S_PTR+8}, s{S_PTR+10}")
        a(f"s_cselect_b32 s{S_WS+1}, s{S_PTR+9}, s{S_PTR+11}")
        a(f"s_mov_b32 s{S_WS+2}, {640*1280}")
        a(f"s_cselect_b32 s{S_WS+2}, {1728*1280}, s{S_WS+2}")
        a(f"s_mov_b32 s{S_WS+3}, 0x00020000")
        a(f"s_cselect_b64 s[{S_T+6}:{S_T+7}], -1, 0")
        a(f"s_and_b32 s{S_WS+1}, s{S_WS+1}, 0xffff")
        a(f"s_cmp_ge_u32 s{SB}, {KS}")
        a(f"s_cselect_b32 s{S_WS+2}, 0, s{S_WS+2}")
        a(f"s_mul_i32 s{S_T+5}, s{S_WV}, 5120")
        a(f"s_add_u32 s{S_T+4}, s{S_M2+2}, {WOFF}")
        a(f"s_add_u32 s{S_T+4}, s{S_T+4}, s{S_T+5}")
        a(f"s_sub_u32 s{S_T+5}, s{S_T+5}, {6*5120}")
        a(f"s_add_u32 s{S_T+5}, s{S_T+5}, s{S_M2+1}")
        a(f"s_cmp_lt_u32 s{S_WV}, 6")
        a(f"s_cselect_b32 s{S_PLB}, s{S_T+4}, s{S_T+5}")
        a(f"s_mul_i32 s{S_T+4}, s{S_WV}, 160")
        a(f"s_lshl_b32 s{S_T}, s{SB}, 2")
        E = V_E
        for i in range(5):
            a(f"v_add_u32 v{E}, {64*i}, v{V_L}")
            a(f"v_mul_u32_u24 v{E+1}, 6554, v{E}")
            a(f"v_lshrrev_b32 v{E+1}, 16, v{E+1}")
            a(f"v_mul_u32_u24 v{E+2}, 10, v{E+1}")
            a(f"v_sub_u32 v{E+2}, v{E}, v{E+2}")
            a(f"v_bfe_u32 v{E+3}, v{E+1}, 2, 2")
            a(f"v_and_b32 v{E+4}, 3, v{E+1}")
            a(f"v_lshrrev_b32 v{E+7}, 4, v{E+1}")
            a(f"v_lshl_add_u32 v{E+4}, v{E+7}, 2, v{E+4}")
            a(f"v_add_u32 v{E+8}, s{S_T}, v{E+3}")
            a(f"v_lshl_add_u32 v{E+9}, v{E+8}, 3, v{E+4}")
            a(f"v_subrev_u32 v{E+10}, 216, v{E+8}")
            a(f"v_mul_u32_u24 v{E+11}, 13108, v{E+10}")
            a(f"v_lshrrev_b32 v{E+11}, 16, v{E+11}")
            a(f"v_mul_u32_u24 v{E+12}, 5, v{E+11}")
            a(f"v_sub_u32 v{E+12}, v{E+10}, v{E+12}")
            a(f"v_and_b32 v{E+13}, 1, v{E+12}")
            a(f"v_lshlrev_b32 v{E+13}, 3, v{E+13}")
            a(f"v_bfe_u32 v{E+14}, v{E+12}, 1, 1")
            a(f"v_mad_u32_u24 v{E+13}, v{E+14}, 20, v{E+13}")
            a(f"v_lshlrev_b32 v{E+14}, 4, v{E+7}")
            a(f"v_add_u32 v{E+14}, 16, v{E+14}")
            a(f"v_cmp_eq_u32 vcc, 4, v{E+12}")
            a("s_nop 1")
            a(f"v_cndmask_b32 v{E+13}, v{E+13}, v{E+14}, vcc")
            a(f"v_mad_u32_u24 v{E+13}, v{E+11}, 40, v{E+13}")
            a(f"v_add_u32 v{E+13}, v{E+13}, v{E+4}")
            a(f"v_cndmask_b32 v{E+9}, v{E+13}, v{E+9}, s[{S_T+6}:{S_T+7}]")
            a(f"v_mul_u32_u24 v{E+9}, 1280, v{E+9}")
            a(f"v_lshl_add_u32 v{E+9}, v{E+2}, 4, v{E+9}")
            a(f"v_add_u32 v{E+16+i}, s{S_T+4}, v{E+9}")
        for i in range(5):
            a(f"s_add_u32 m0, s{S_PLB}, {i*1024}")
            a("s_nop 0")
            a(f"buffer_load_dwordx4 v{V_E+16+i}, s[{S_WS}:{S_WS+3}], 0 offen lds")
    def prep_finish():
        SB = S_B
        L = a.newlabel(P + "_pf")
        a(f"s_cmp_ge_u32 s{SB}, {KS}")
        a(f"s_cbranch_scc1 {L}")
        a(f"v_lshrrev_b32 v{V_TMP}, 2, v{V_L}")
        a(f"v_mul_u32_u24 v{V_TMP}, 160, v{V_TMP}")
        a(f"v_and_b32 v{V_TMP+1}, 3, v{V_L}")
        a(f"v_lshl_add_u32 v{V_TMP+2}, v{V_TMP+1}, 4, v{V_TMP}")
        a(f"v_lshl_add_u32 v{V_TMP+3}, v{V_TMP+1}, 3, v{V_TMP}")
        a(f"v_add_u32 v{V_TMP+2}, s{S_PLB}, v{V_TMP+2}")
        a(f"v_add_u32 v{V_TMP+3}, s{S_PLB}, v{V_TMP+3}")
        OB = V_XF
        for nt in range(5):
            for rd in range(2):
                if nt < 4:
                    a(f"ds_read_b64_tr_b16 {vr(OB+4*nt+2*rd,2)}, v{V_TMP+2} offset:{64*(nt//2)+8*(nt%2)+rd*2560}")
                else:
                    a(f"ds_read_b64_tr_b16 {vr(OB+4*nt+2*rd,2)}, v{V_TMP+3} offset:{128+rd*2560}")
        a.srd_off(S_WS, S_PTR, S_PTR + 1, BBUF_OFF, BBUF_BYTES)
        a(f"s_mul_i32 s{S_T}, s{SB}, 40")
        a(f"s_mul_i32 s{S_T+1}, s{S_WV}, 5")
        a(f"s_add_u32 s{S_T}, s{S_T}, s{S_T+1}")
        a(f"s_lshl_b32 s{S_T}, s{S_T}, 10")
        a(f"v_lshlrev_b32 v{V_TMP+4}, 4, v{V_L}")
        a(f"v_add_u32 v{V_TMP+4}, s{S_T}, v{V_TMP+4}")
        a(f"v_add_u32 v{V_TMP+7}, 4096, v{V_TMP+4}")
        a("s_waitcnt lgkmcnt(0)")
        for nt in range(4):
            a(f"buffer_store_dwordx4 {vr(OB+4*nt,4)}, v{V_TMP+4}, s[{S_WS}:{S_WS+3}], 0 offen offset:{nt*1024}{OSC}")
        a(f"buffer_store_dwordx4 {vr(OB+16,4)}, v{V_TMP+7}, s[{S_WS}:{S_WS+3}], 0 offen{OSC}")
        a.label(L)
    def tag_store(off_sgpr):
        a(f"v_mov_b32 v{V_TMP+8}, s{off_sgpr}")
        a(f"v_mov_b32 v{V_TMP+9}, s100")
        a(f"s_mov_b64 s[{S_T+6}:{S_T+7}], exec")
        a("s_mov_b64 exec, 1")
        a(f"global_store_dword v{V_TMP+8}, v{V_TMP+9}, s[{S_PTR}:{S_PTR+1}] sc0 sc1")
        a(f"s_mov_b64 exec, s[{S_T+6}:{S_T+7}]")
    def bias_issue():
        a(f"s_sub_u32 s{S_T}, s{S_N}, 2")
        a(f"s_max_i32 s{S_T}, s{S_T}, 0")
        a(f"s_min_u32 s{S_T}, s{S_T}, 26")
        a(f"s_lshl_b32 s{S_T+1}, s{S_T}, 7")
        a.srd_off(S_WS, S_PTR + 6, S_PTR + 7, f"s{S_T+1}", 128)
        a(f"v_lshlrev_b32 v{V_TMP+8}, 4, v{V_HF}")
        for T in range(2):
            for p in range(2):
                a(f"buffer_load_dwordx4 {vr(V_E+52+(T*2+p)*4,4)}, v{V_TMP+8}, s[{S_WS}:{S_WS+3}], 0 offen offset:{(4*T+2*p)*16}")
    def run_main(typ, ntile, lab, trail):
        nTT = 1 if typ == 'A' else 2
        ACS = V_E
        ool = []
        def read_list(ks, buf):
            L = []
            for tt in range(nTT):
                L.append(f"v_xad_u32 v{V_TMP+tt}, v{V_XA+tt}, {ks*16}, s{S_XRD}")
                L.append(f"ds_read_b128 {vr(xf(buf,tt),4)}, v{V_TMP+tt}")
            for T in range(ntile):
                for rd in range(2):
                    L.append(f"ds_read_b64_tr_b16 {vr(wf(buf,T)+2*rd,2)}, v{V_WC+T} offset:{ks*2048+rd*512}")
            return [] if 'r' in dis else L
        nreads = nTT + 2 * ntile
        def upd_w():
            for T in range(ntile): a(f"v_add_u32 v{V_WC+T}, s{S_WRD}, v{V_WB+T}")
        def side(name, tests, fn, else_fn=None):
            if 'S' in dis:
                if else_fn: else_fn()
                return
            L = a.newlabel(lab + "_" + name)
            a(f"s_cmp_lg_u32 s{tests[0][0]}, {tests[0][1]}")
            a(f"s_cbranch_scc1 {L}e")
            fn()
            if else_fn:
                a(f"s_branch {L}x")
            a.label(L + "e")
            if else_fn:
                else_fn()
                a.label(L + "x")
        def dummy():
            a(f"buffer_load_dword v{V_ONES}, v{V_ONES+1}, s[{S_X}:{S_X+3}], 0 offen")
        pend = []
        def kstep(i, ks):
            n = i * 4 + ks
            buf = n % 3; nb = (n + 2) % 3
            nks = (ks + 2) & 3
            last_reads = (n + 2) >= 40
            if ks == 2:
                assert not pend
                a("s_waitcnt lgkmcnt(0)")
                if i < 9:
                    def st(lane):
                        if timing and 'W' in dis:
                            a(f"s_memtime s[{S_T0+2}:{S_T0+3}]")
                            a("s_waitcnt lgkmcnt(0)")
                            a(f"s_sub_u32 s{S_T0+2}, s{S_T0+2}, s{S_T0}")
                            a(f"v_writelane_b32 v{V_STAMP}, s{S_T0+2}, {lane}")
                    st(32 + 3 * i)
                    a(f"s_waitcnt vmcnt({[7, 8, 8, 8, 8, 8, 8, 8, 6 if typ == 'B' else 1][i]})")
                    st(33 + 3 * i)
                    a("s_barrier")
                    st(34 + 3 * i)
                    if i == 3: nonce_check()
                    a(f"s_mov_b32 s{S_M2+1}, s{S_XRD}"); a(f"s_mov_b32 s{S_M2+2}, s{S_WRD}")
                    advance_slot()
                    upd_w()
                    if i == 7 and typ == 'B': pend.append(prep_issue)
                    if i <= 6 and 'd' not in dis:
                        for g in dma_pieces(S_M2 + 1, S_M2 + 2): pend.append(g)
                        pend.append(next_sigma)
                        if i == 0:
                            pend.append(nonce_load)
                        elif i == 1 and typ == 'B':
                            pend.append(lambda: side("zs", [(S_ZW, 1)], zstore, dummy))
                        elif i == 3:
                            pend.append(xrow_store)
                        elif i == 4:
                            pend.append(lambda: side("c2", [(S_C2W, 1)], c2, dummy))
                        elif i == 5 and typ == 'B':
                            pend.append(lambda: side("zf", [(S_ZFW, 1)], lambda: flag_add('z'), dummy))
                        else:
                            pend.append(dummy)
            else:
                a(f"s_waitcnt lgkmcnt({0 if n == 39 else nreads})")
            rl = [] if last_reads else read_list(nks, nb)
            mf = []
            for T in range(ntile):
                for tt in range(nTT):
                    j = T * nTT + tt
                    if 'm' not in dis:
                        mf.append(f"v_mfma_f32_32x32x16_bf16 {vr(acc(j),16)}, {vr(wf(buf,T),4)}, {vr(xf(buf,tt),4)}, {'0' if n == 0 else vr(acc(j),16)}")
            half = (len(rl) + 1) // 2
            groups = [rl[:half], rl[half:]] + [[] for _ in range(8)]
            nm = max(2, len(mf))
            for j in range(nm):
                if j < len(mf): a(mf[j])
                for x in groups[j]: a(x)
                npop = 0
                if n < 2: npop = 2 if nm < 4 else 1
                elif j >= nm - 2: npop = 1
                if n == 1 and j == nm - 1: npop = 99
                for _ in range(npop):
                    if not pend: break
                    g = pend.pop(0)
                    if callable(g): g()
                    else:
                        for x in g: a(x)
                    if pend and callable(pend[0]) and pend[0] is next_sigma:
                        pend.pop(0)()
            if i == 0:
                def cs(buf=buf):
                    for T in range(ntile):
                        c = vr(ACS + 16 * T, 16)
                        a(f"v_mfma_f32_32x32x16_bf16 {c}, {vr(V_M+4,4)}, {vr(wf(buf,T),4)}, {'0' if (typ == 'A' or ks < 2) else c}")
                if typ == 'A':
                    side("cs", [(S_CSK, ks)], cs)
                else:
                    side("cs", [(S_CSK, ks & 1)], cs)
            if i == 0 and ks == 3:
                xrow_stats()
            if i == 1 and ks == 0:
                def cw():
                    nT_ = 4 if typ == 'A' else 2
                    a(f"s_mul_i32 s{S_T}, s{S_HP}, {nT_*128}")
                    a(f"s_lshl_b32 s{S_T+1}, s{S_TQ}, 10")
                    a(f"s_add_u32 s{S_T}, s{S_T}, s{S_T+1}")
                    a(f"v_lshlrev_b32 v{V_TMP+8}, 7, v{V_HF}")
                    a(f"v_lshl_add_u32 v{V_TMP+8}, v{V_T31}, 2, v{V_TMP+8}")
                    a(f"v_add_u32 v{V_TMP+8}, s{S_T}, v{V_TMP+8}")
                    a(f"v_cmp_eq_u32 vcc, 1, v{V_HF}")
                    a("s_nop 1")
                    for T in range(0, nT_, 2):
                        hi = ACS + 16 * (T + 1) if T + 1 < ntile else ACS + 16 * T
                        a(f"v_cndmask_b32 v{V_TMP+9}, v{ACS+16*T}, v{hi}, vcc")
                        a(f"ds_write_b32 v{V_TMP+8}, v{V_TMP+9} offset:{CSP+T*128}")
                side("cw", [(S_CSPUB, 1)], cw)
            if i == 8 and ks == 2:
                gran_issue(typ)
                if typ == 'B': bias_issue()
        def zstore():
            a.srd_off(S_WS, S_PTR, S_PTR + 1, KVS_OFF, KVS_BYTES)
            a(f"s_lshl_b32 s{S_T}, s{S_B}, 3")
            a(f"s_add_u32 s{S_T}, s{S_T}, s{S_WV}")
            a(f"s_lshl_b32 s{S_T}, s{S_T}, 10")
            a(f"v_lshlrev_b32 v{V_TMP+8}, 4, v{V_L}")
            for e in range(4): a(f"v_mov_b32 v{V_TMP+4+e}, 0")
            a(f"buffer_store_dwordx4 {vr(V_TMP+4,4)}, v{V_TMP+8}, s[{S_WS}:{S_WS+3}], s{S_T} offen{SC}")
        def c2():
            ncon = 4 if typ == 'A' else 2
            a(f"v_lshlrev_b32 v{V_TMP+8}, 2, v0")
            for c in range(ncon):
                a(f"ds_read_b32 v{ACS+c}, v{V_TMP+8} offset:{CSP+c*1024}")
            a(f"s_mul_i32 s{S_T}, s{S_ROLE}, 20480")
            a(f"s_lshl_b32 s{S_T+1}, s{S_MT}, 11")
            a(f"s_add_u32 s{S_T}, s{S_T}, s{S_T+1}")
            a(f"s_add_u32 s{S_T}, s{S_T}, {CSG_OFF}")
            a(f"v_lshl_add_u32 v{V_TMP+8}, v0, 3, s{S_T}")
            a("s_waitcnt lgkmcnt(0)")
            for c in range(1, ncon): a(f"v_add_f32 v{ACS}, v{ACS}, v{ACS+c}")
            a(f"v_mov_b32 v{ACS+1}, v{V_NON}")
            a(f"global_store_dwordx2 v{V_TMP+8}, {vr(ACS,2)}, s[{S_PTR}:{S_PTR+1}]{SC}")
        def nonce_load():
            a(f"global_load_dword v{V_NON}, v{V_ONES+1}, s[{S_PTR+2}:{S_PTR+3}] sc1")
        def nonce_check():
            L = a.newlabel(lab + "_nc")
            a(f"v_readfirstlane_b32 s{S_T}, v{V_NON}")
            a(f"s_cmp_lg_u32 s{S_T}, 0")
            a(f"s_cbranch_scc1 {L}ok")
            a(f"s_mov_b32 s{S_T+2}, 0")
            a.label(L)
            a("s_sleep 4")
            nonce_load()
            a("s_waitcnt vmcnt(0)")
            a(f"v_readfirstlane_b32 s{S_T}, v{V_NON}")
            a(f"s_add_u32 s{S_T+2}, s{S_T+2}, 1")
            a(f"s_cmp_gt_u32 s{S_T+2}, 4000")
            a(f"s_cbranch_scc1 {L}ok")
            a(f"s_cmp_eq_u32 s{S_T}, 0")
            a(f"s_cbranch_scc1 {L}")
            a.label(L + "ok")
            a(f"s_mov_b32 s100, s{S_T}")
        a("s_waitcnt lgkmcnt(0)")
        a("s_barrier")
        stamp(typ + " first barrier")
        a(f"s_mov_b32 s{S_M2+1}, {XOFF + 2*XSTG}"); a(f"s_mov_b32 s{S_M2+2}, {2*WSTG}")
        for g in dma_pieces(S_M2 + 1, S_M2 + 2): pend.append(g)
        pend.append(next_sigma)
        pend.append(trail)
        upd_w()
        for x in read_list(0, 0): a(x)
        for x in read_list(1, 1): a(x)
        for i in range(10):
            if timing and 'T' in dis:
                a(f"s_memtime s[{S_T0+2}:{S_T0+3}]")
                a("s_waitcnt lgkmcnt(0)")
                a(f"s_sub_u32 s{S_T0+2}, s{S_T0+2}, s{S_T0}")
                a(f"v_writelane_b32 v{V_STAMP}, s{S_T0+2}, {16+i}")
            for ks in range(4): kstep(i, ks)
        a(f"s_branch {lab}_EXIT")
        k = 0
        while k < len(ool):
            L, fn = ool[k]; k += 1
            a.label(L); fn(); a(f"s_branch {L}r")
        a.label(lab + "_EXIT")

    V_FL = V_M + 2
    def gran_issue(typ):
        for tt in range(1 if typ == 'A' else 2):
            a(f"v_lshrrev_b32 v{V_TMP+8}, 7, v{V_XA+tt}")
            a(f"s_lshl_b32 s{S_T}, s{S_MT}, 7")
            a(f"v_add_u32 v{V_TMP+8}, s{S_T}, v{V_TMP+8}")
            a(f"v_lshlrev_b32 v{V_TMP+8}, 4, v{V_TMP+8}")
            a(f"v_add_u32 v{V_TMP+8}, {STATG_OFF}, v{V_TMP+8}")
            a(f"global_load_dwordx4 {vr(V_E+24+4*tt,4)}, v{V_TMP+8}, s[{S_PTR}:{S_PTR+1}] sc1")
        L = a.newlabel(P + "_csl")
        a(f"s_cmp_ge_u32 s{S_WV}, 4"); a(f"s_cbranch_scc1 {L}")
        a(f"s_mul_i32 s{S_T}, s{S_ROLE}, 20480")
        a(f"s_add_u32 s{S_T}, s{S_T}, {CSG_OFF}")
        a(f"v_lshl_add_u32 v{V_TMP+8}, v0, 3, s{S_T}")
        for j in range(10):
            if j % 2 == 0 and j: a(f"v_add_u32 v{V_TMP+8}, 4096, v{V_TMP+8}")
            a(f"global_load_dwordx2 {vr(V_E+32+2*j,2)}, v{V_TMP+8}, s[{S_PTR}:{S_PTR+1}] offset:{(j%2)*2048} sc1")
        a.label(L)
    def gran_check(typ):
        Lp = a.newlabel(P + "_gr"); Lok = Lp + "ok"
        a(f"s_mov_b32 s{S_T+2}, 0")
        a.label(Lp)
        a("s_waitcnt vmcnt(0)")
        a(f"v_cmp_ne_u32 vcc, v{V_E+24+2}, v{V_NON}")
        if typ == 'B':
            a(f"v_cmp_ne_u32 s[{S_T}:{S_T+1}], v{V_E+28+2}, v{V_NON}")
            a(f"s_or_b64 vcc, vcc, s[{S_T}:{S_T+1}]")
        L = a.newlabel(P + "_grc")
        a(f"s_cmp_ge_u32 s{S_WV}, 4"); a(f"s_cbranch_scc1 {L}")
        for j in range(10):
            a(f"v_cmp_ne_u32 s[{S_T}:{S_T+1}], v{V_E+32+2*j+1}, v{V_NON}")
            a(f"s_or_b64 vcc, vcc, s[{S_T}:{S_T+1}]")
        a.label(L)
        a(f"s_add_u32 s{S_T+2}, s{S_T+2}, 1")
        a(f"s_cmp_gt_u32 s{S_T+2}, 4000")
        a(f"s_cbranch_scc1 {Lok}")
        a(f"s_cbranch_vccz {Lok}")
        a("s_sleep 4")
        gran_issue(typ)
        a(f"s_branch {Lp}")
        a.label(Lok)
        for tt in range(1 if typ == 'A' else 2):
            a(f"v_mov_b32 v{V_M+2*tt}, v{V_E+24+4*tt}")
            a(f"v_mov_b32 v{V_M+2*tt+1}, v{V_E+24+4*tt+1}")
    def finish_stats(typ):
        a("s_waitcnt lgkmcnt(0)")
        stamp(typ + " main loop end")
        if 'S' not in dis: gran_check(typ)
        else: a("s_waitcnt vmcnt(0)")
        if typ == 'B': prep_finish()
        L = a.newlabel(P + "_cs2")
        a(f"s_cmp_ge_u32 s{S_WV}, 4"); a(f"s_cbranch_scc1 {L}")
        for j in range(1, 10):
            a(f"v_add_f32 v{V_E+32}, v{V_E+32}, v{V_E+32+2*j}")
        a(f"v_lshlrev_b32 v{V_TMP}, 2, v0")
        a(f"ds_write_b32 v{V_TMP}, v{V_E+32} offset:{CS}")
        a("s_waitcnt lgkmcnt(0)")
        a.label(L)
        a("s_barrier")
        stamp(typ + " stats barrier")

    a("s_cmp_ge_u32 s2, 256")
    a(f"s_cbranch_scc1 {P}_END")
    a("s_load_dwordx4 s[4:7], s[0:1], 0")
    a("s_load_dwordx4 s[8:11], s[0:1], 16")
    a("s_load_dwordx4 s[12:15], s[0:1], 40")
    a(f"s_load_dwordx2 s[{S_PTR+8}:{S_PTR+9}], s[0:1], 56")
    a(f"s_load_dwordx4 s[{S_T}:{S_T+3}], s[0:1], 80")
    if timing: a(f"s_memtime s[{S_T0}:{S_T0+1}]")
    if timing: a("s_memrealtime s[98:99]")
    a(f"v_and_b32 v{V_L}, 63, v0")
    a(f"v_lshrrev_b32 v{V_TMP}, 6, v0")
    a(f"v_and_b32 v{V_T31}, 31, v0")
    a(f"v_readfirstlane_b32 s{S_WV}, v{V_TMP}")
    a(f"v_bfe_u32 v{V_HF}, v0, 5, 1")
    a(f"s_and_b32 s{S_T+4}, s2, 7")
    a(f"s_lshr_b32 s{S_T+5}, s2, 3")
    a(f"s_and_b32 s{S_T+6}, s{S_T+4}, 1")
    a(f"s_lshl_b32 s{S_T+6}, s{S_T+6}, 3")
    a(f"s_and_b32 s{S_T+7}, s{S_T+5}, 7")
    a(f"s_add_u32 s{S_MT}, s{S_T+6}, s{S_T+7}")
    a(f"s_lshr_b32 s{S_T+4}, s{S_T+4}, 1")
    a(f"s_lshl_b32 s{S_T+4}, s{S_T+4}, 2")
    a(f"s_lshr_b32 s{S_T+5}, s{S_T+5}, 3")
    a(f"s_add_u32 s{S_ROLE}, s{S_T+4}, s{S_T+5}")
    a(f"s_lshr_b32 s{S_GI}, s{S_ROLE}, 1")
    a(f"s_and_b32 s{S_M2}, s{S_ROLE}, 1")
    a(f"s_sub_u32 s{S_SIG}, s{S_MT}, 10")
    a(f"s_cmp_lt_u32 s{S_MT}, 10")
    a(f"s_cselect_b32 s{S_SIG}, s{S_MT}, s{S_SIG}")
    if 'R' in dis: a(f"s_mov_b32 s{S_SIG}, 0")
    if 'H' in dis:
        a(f"s_and_b32 s{S_SIG}, s{S_MT}, 1"); a(f"s_mul_i32 s{S_SIG}, s{S_SIG}, 5")
    a(f"s_lshl_b32 s{S_XSO}, s{S_SIG}, 7")
    V_ROW, V_S8 = V_TMP + 1, V_TMP + 4
    a(f"v_lshrrev_b32 v{V_TMP}, 3, v{V_L}")
    a(f"s_lshl_b32 s{S_T+4}, s{S_WV}, 3")
    a(f"v_add_u32 v{V_ROW}, s{S_T+4}, v{V_TMP}")
    a(f"v_bfe_u32 v{V_TMP+2}, v{V_ROW}, 1, 3")
    a(f"v_and_b32 v{V_TMP+3}, 7, v{V_L}")
    a(f"v_xor_b32 v{V_TMP+2}, v{V_TMP+2}, v{V_TMP+3}")
    a(f"v_and_b32 v{V_TMP+8}, 3, v{V_TMP+2}")
    a(f"v_lshrrev_b32 v{V_TMP+2}, 2, v{V_TMP+2}")
    a(f"v_lshl_add_u32 v{V_TMP+2}, v{V_TMP+8}, 1, v{V_TMP+2}")
    a(f"v_mul_u32_u24 v{V_XV}, 1280, v{V_ROW}")
    a(f"v_lshl_add_u32 v{V_XV}, v{V_TMP+2}, 4, v{V_XV}")
    a(f"v_bfe_u32 v{V_S8}, v{V_L}, 4, 1")
    a(f"v_lshlrev_b32 v{V_S8}, 2, v{V_S8}")
    a(f"v_xor_b32 v{V_S8}, v{V_S8}, v{V_TMP+3}")
    a(f"s_lshl_b32 s{S_M0X}, s{S_WV}, 10")
    a(f"s_add_u32 s{S_M0W}, s{S_M0X}, {WOFF}")
    a(f"s_mov_b32 s{S_XRD}, {XOFF}"); a(f"s_mov_b32 s{S_WRD}, 0")
    a(f"s_mul_i32 s{S_T+4}, s{S_MT}, 163840")
    a(f"s_lshl_b32 s{S_T+5}, s{S_ROLE}, 3")
    a(f"s_add_u32 s{S_T+5}, s{S_T+5}, s{S_WV}")
    a(f"s_mul_i32 s{S_T+5}, s{S_T+5}, 1280")
    a(f"v_lshlrev_b32 v{V_M+6}, 4, v{V_L}")
    a(f"v_add_u32 v{V_TMP+8}, 1024, v{V_M+6}")
    a(f"v_cmp_gt_u32 vcc, 16, v{V_L}")
    a(f"v_mov_b32 v{V_TMP+7}, 0x7f000000")
    a("s_waitcnt lgkmcnt(0)")
    pst(32)
    a.srd_off(S_X, 4, 5, f"s{S_T+4}", 163840)
    a(f"v_cndmask_b32 v{V_M+7}, v{V_TMP+7}, v{V_TMP+8}, vcc")
    a(f"s_mov_b64 s[{S_PTR}:{S_PTR+1}], s[{S_T+2}:{S_T+3}]")
    a(f"s_mov_b64 s[{S_PTR+2}:{S_PTR+3}], s[{S_T}:{S_T+1}]")
    a(f"s_mov_b32 s{S_RSO}, s{S_T+5}")
    a(f"s_cmp_eq_u32 s2, 70"); a(f"s_cselect_b32 s{S_NM}, 1, 0")
    a(f"s_cmp_eq_u32 s{S_WV}, 7"); a(f"s_cselect_b32 s{S_NM}, s{S_NM}, 0")
    a(f"s_cmp_eq_u32 s{S_NM}, 0")
    a(f"s_cbranch_scc1 {P}_NM0")
    a(f"v_mov_b32 v{V_TMP+8}, {EPOCH_OFF}")
    a(f"global_load_dword v{V_NON}, v{V_TMP+8}, s[{S_PTR}:{S_PTR+1}] sc1")
    a.label(P + "_NM0")
    dma_x_now(0)
    pst(33)
    a(f"s_mov_b64 s[{S_PTR+4}:{S_PTR+5}], s[8:9]")
    a(f"s_mov_b64 s[{S_PTR+6}:{S_PTR+7}], s[14:15]")
    a(f"s_mov_b64 s[{S_PTR+10}:{S_PTR+11}], s[10:11]")
    a(f"s_cmp_eq_u32 s{S_M2}, 1")
    a(f"s_cbranch_scc1 {P}_B")

    V_U, V_ROW0, V_RSW = V_M + 0, V_M + 1, V_M + 2
    def common_setup():
        a(f"v_bfe_u32 v{V_U}, v{V_L}, 4, 1")
        a(f"v_lshlrev_b32 v{V_U}, 2, v{V_U}")
        a(f"v_and_b32 v{V_TMP+8}, 3, v{V_L}")
        a(f"v_add_u32 v{V_U}, v{V_U}, v{V_TMP+8}")
        a(f"v_bfe_u32 v{V_ROW0}, v{V_L}, 2, 2")
        a(f"v_bfe_u32 v{V_RSW}, v{V_L}, 3, 1")
        a(f"v_lshlrev_b32 v{V_RSW}, 2, v{V_RSW}")
        a(f"v_lshl_add_u32 v{V_ROW0}, v{V_HF}, 3, v{V_ROW0}")
    def cs_roles():
        a(f"s_cmp_lt_u32 s{S_MT}, 10")
        a(f"s_cselect_b32 s{S_CSK}, s{S_TQ}, 99")
        a(f"s_cselect_b32 s{S_CSPUB}, 1, 0")
        a(f"s_cselect_b32 s{S_C2W}, 1, 0")
        a(f"s_cmp_lt_u32 s{S_WV}, 4"); a(f"s_cselect_b32 s{S_C2W}, s{S_C2W}, 0")
        a(f"v_mov_b32 v{V_ONES+1}, 0")
    def after_setup():
        pst(35)
        prologue_w2()
        for i in range(4): a(f"v_mov_b32 v{V_M+4+i}, {hex(ONES2)}")
        pst(36)
        a("s_waitcnt vmcnt(8)")
        pst(37)
        L = a.newlabel(P + "_nm")
        a(f"s_cmp_eq_u32 s{S_NM}, 0")
        a(f"s_cbranch_scc1 {L}")
        a(f"v_add_u32 v{V_NON}, 1, v{V_NON}")
        a(f"v_max_u32 v{V_NON}, 1, v{V_NON}")
        a(f"v_mov_b32 v{V_TMP+7}, 0")
        a(f"v_mov_b32 v{V_TMP+8}, {EPOCH_OFF}")
        a("s_mov_b64 exec, 1")
        a(f"global_store_dword v{V_TMP+7}, v{V_NON}, s[{S_PTR+2}:{S_PTR+3}] sc0 sc1")
        a(f"global_store_dword v{V_TMP+8}, v{V_NON}, s[{S_PTR}:{S_PTR+1}] sc0 sc1")
        a("s_mov_b64 exec, -1")
        a.label(L)

    a(f"s_lshr_b32 s{S_HP}, s{S_WV}, 2")
    a(f"s_and_b32 s{S_TQ}, s{S_WV}, 3")
    for p in range(4):
        a.srd(S_W0 + 4 * p, 6, 7, 640 * 3840)
        a(f"s_mov_b32 s{S_WSTEP+p}, {64*3840}")
    a(f"s_mul_i32 s{S_T}, s{S_GI}, 160")
    a(f"s_lshl_b32 s{S_T+1}, s{S_GI}, 7")
    a(f"v_mul_u32_u24 v{V_TMP+5}, 3840, v{V_ROW}")
    a(f"v_lshl_add_u32 v{V_TMP+6}, v{V_S8}, 4, v{V_TMP+5}")
    a(f"s_add_u32 s{S_T+2}, s{S_T}, 1280")
    a(f"v_add_u32 v{V_WV}, s{S_T+2}, v{V_TMP+6}")
    a(f"s_add_u32 s{S_T+2}, s{S_T}, {2560+32}")
    a(f"v_add_u32 v{V_WV+2}, s{S_T+2}, v{V_TMP+6}")
    a(f"v_add_u32 v{V_WV+3}, s{S_T+1}, v{V_TMP+6}")
    a(f"v_and_b32 v{V_TMP+7}, 1, v{V_S8}")
    a(f"v_lshl_add_u32 v{V_TMP+7}, v{V_TMP+7}, 4, v{V_TMP+5}")
    a(f"v_mov_b32 v{V_TMP+8}, 2560")
    a(f"v_mov_b32 v{V_TMP+9}, {1280+128}")
    a(f"v_cmp_gt_u32 vcc, 4, v{V_S8}")
    a("s_nop 1")
    a(f"v_cndmask_b32 v{V_TMP+8}, v{V_TMP+8}, v{V_TMP+9}, vcc")
    a(f"v_add3_u32 v{V_WV+1}, v{V_TMP+7}, v{V_TMP+8}, s{S_T}")
    prologue_w()
    pst(34)
    a(f"s_mul_i32 s{S_T}, s{S_GI}, 3200")
    a.srd_off(S_WS, S_PTR + 4, S_PTR + 5, f"s{S_T}", 3200)
    common_setup()
    a(f"v_and_b32 v{V_TMP+1}, 3, v{V_U}")
    a(f"v_lshlrev_b32 v{V_TMP+1}, 3, v{V_TMP+1}")
    a(f"v_cmp_lt_u32 vcc, 3, v{V_U}")
    for T in range(4):
        cs = []
        for hp in (0, 1):
            TT = T if T < len(TILES[hp]) else 0
            ent = []
            for u in range(8):
                q, hf = u >> 1, u & 1
                c, hi = tile_quad(hp, TT, q, hf)
                ent.append((SLOT_A[c] << 1) | hi)
            cs.append((sum(ent[s] << (8 * s) for s in range(4)), sum(ent[4 + s] << (8 * s) for s in range(4))))
        a(f"s_cmp_eq_u32 s{S_HP}, 0")
        a(f"s_mov_b32 s{S_T+2}, {hex(cs[1][0])}")
        a(f"s_cselect_b32 s{S_T+2}, {hex(cs[0][0])}, s{S_T+2}")
        a(f"s_mov_b32 s{S_T+3}, {hex(cs[1][1])}")
        a(f"s_cselect_b32 s{S_T+3}, {hex(cs[0][1])}, s{S_T+3}")
        a(f"v_mov_b32 v{V_TMP+2}, s{S_T+2}")
        a(f"v_mov_b32 v{V_TMP+3}, s{S_T+3}")
        a(f"v_cndmask_b32 v{V_TMP+2}, v{V_TMP+2}, v{V_TMP+3}, vcc")
        a(f"v_lshrrev_b32 v{V_TMP+2}, v{V_TMP+1}, v{V_TMP+2}")
        a(f"v_and_b32 v{V_TMP+3}, 1, v{V_TMP+2}")
        a(f"v_bfe_u32 v{V_TMP+4}, v{V_TMP+2}, 1, 3")
        a(f"v_bfe_u32 v{V_TMP+5}, v{V_TMP+2}, 4, 2")
        a(f"v_xor_b32 v{V_TMP+4}, v{V_TMP+4}, v{V_RSW}")
        a(f"v_lshlrev_b32 v{V_TMP+4}, 4, v{V_TMP+4}")
        a(f"v_lshl_add_u32 v{V_TMP+4}, v{V_TMP+3}, 3, v{V_TMP+4}")
        a(f"v_lshl_add_u32 v{V_TMP+4}, v{V_TMP+5}, 13, v{V_TMP+4}")
        a(f"v_lshl_add_u32 v{V_TMP+4}, v{V_ROW0}, 7, v{V_TMP+4}")
        a(f"v_add_u32 v{V_WB+T}, {WOFF}, v{V_TMP+4}")
    def x_addr(tts, rowbase_sgpr_shift, sg):
        a(f"v_bfe_u32 v{V_TMP+1}, v{V_T31}, 1, 3")
        a(f"v_lshlrev_b32 v{V_TMP+2}, 2, v{V_HF}")
        a(f"v_xor_b32 v{V_TMP+1}, v{V_TMP+1}, v{V_TMP+2}")
        a(f"s_lshl_b32 s{S_T}, s{sg}, {rowbase_sgpr_shift}")
        for tt in range(tts):
            a(f"v_add_u32 v{V_TMP+2}, s{S_T}, v{V_T31}")
            if tt: a(f"v_add_u32 v{V_TMP+2}, {32*tt}, v{V_TMP+2}")
            a(f"v_lshlrev_b32 v{V_TMP+2}, 7, v{V_TMP+2}")
            a(f"v_lshl_add_u32 v{V_XA+tt}, v{V_TMP+1}, 4, v{V_TMP+2}")
    x_addr(1, 5, S_TQ)
    cs_roles()
    a(f"v_lshlrev_b32 v{V_TMP+1}, 2, v0")
    a(f"v_mov_b32 v{V_TMP+2}, 0")
    a(f"v_cmp_gt_u32 vcc, 320, v0")
    a(f"s_and_saveexec_b64 s[{S_T+6}:{S_T+7}], vcc")
    a(f"ds_write_b32 v{V_TMP+1}, v{V_TMP+2} offset:{ZERO}")
    a(f"s_mov_b64 exec, s[{S_T+6}:{S_T+7}]")
    after_setup()
    def trailA():
        a(f"v_lshlrev_b32 v{V_TMP+8}, 4, v0")
        a(f"buffer_load_dwordx4 {vr(V_E+76,4)}, v{V_TMP+8}, s[{S_WS}:{S_WS+3}], 0 offen")
    a(f"s_cmp_lg_u32 s{S_HP}, 0")
    a(f"s_cbranch_scc1 {P}A_H1")
    run_main('A', 4, P + "A0", trailA)
    a(f"s_branch {P}A_EPI")
    a.label(P + "A_H1")
    run_main('A', 3, P + "A1", trailA)
    a.label(P + "A_EPI")
    a(f"v_lshlrev_b32 v{V_TMP}, 4, v0")
    a(f"v_cmp_gt_u32 vcc, 200, v0")
    a(f"s_and_saveexec_b64 s[{S_T+6}:{S_T+7}], vcc")
    a(f"ds_write_b128 v{V_TMP}, {vr(V_E+76,4)} offset:{WPHI}")
    a(f"s_mov_b64 exec, s[{S_T+6}:{S_T+7}]")
    finish_stats('A')
    V_MN, V_RS, V_C = V_MN0, V_RS0, V_M + 2
    CSR = V_XF
    a(f"s_mul_i32 s{S_T}, s{S_HP}, 512")
    a(f"v_lshl_add_u32 v{V_TMP+4}, v{V_HF}, 4, s{S_T}")
    for T in range(3):
        for q in range(4):
            a(f"ds_read_b128 {vr(CSR+16*T+4*q,4)}, v{V_TMP+4} offset:{CS+T*128+q*32}")
    A2 = V_E
    a(f"v_bfe_u32 v{V_TMP}, v{V_L}, 4, 1")
    a(f"v_lshlrev_b32 v{V_TMP}, 2, v{V_TMP}")
    a(f"v_and_b32 v{V_TMP+1}, 3, v{V_L}")
    a(f"v_add_u32 v{V_TMP}, v{V_TMP}, v{V_TMP+1}")
    a(f"v_and_b32 v{V_TMP+1}, 1, v{V_TMP}")
    a(f"v_lshrrev_b32 v{V_TMP}, 1, v{V_TMP}")
    a(f"v_bfe_u32 v{V_TMP+2}, v{V_L}, 2, 2")
    a(f"v_mul_u32_u24 v{V_TMP+2}, 40, v{V_TMP+2}")
    a(f"v_lshl_add_u32 v{V_TMP+2}, v{V_TMP}, 3, v{V_TMP+2}")
    a(f"s_mul_i32 s{S_T}, s{S_HP}, 1600")
    a(f"v_mul_u32_u24 v{V_TMP+3}, 800, v{V_TMP+1}")
    a(f"v_add3_u32 v{V_TMP+2}, v{V_TMP+2}, v{V_TMP+3}, s{S_T}")
    a(f"v_add_u32 v{V_TMP+2}, {WPHI}, v{V_TMP+2}")
    a(f"v_mov_b32 v{V_TMP+3}, {ZERO}")
    a(f"v_cmp_eq_u32 vcc, v{V_TMP+1}, v{V_HF}")
    a("s_nop 1")
    a(f"v_cndmask_b32 v{V_TMP+2}, v{V_TMP+3}, v{V_TMP+2}, vcc")
    for xy in range(2):
        for s_ in range(3):
            for rd in range(2):
                a(f"ds_read_b64_tr_b16 {vr(A2+(xy*3+s_)*4+2*rd,2)}, v{V_TMP+2} offset:{s_*320+rd*160+xy*32}")
    def qregs(lg):
        T, p = where(0, lg)
        return [acc(T) + 4 * p + r for r in range(4)]
    def cs_of(r): return CSR + (r - V_ACC)
    kv_ = sum([qregs(('k', i)) for i in range(5)], [])
    vv = sum([qregs(('v', i)) for i in range(5)], [])
    a("s_waitcnt lgkmcnt(12)")
    for r in kv_: a(f"v_fmac_f32 v{r}, v{cs_of(r)}, v{V_MN}")
    KF = V_E + 24
    for p in range(10):
        a(f"v_cvt_pk_bf16_f32 v{KF+p}, v{kv_[2*p]}, v{kv_[2*p+1]}")
    a(f"v_mov_b32 v{KF+10}, 0"); a(f"v_mov_b32 v{KF+11}, 0")
    a(f"v_mul_f32 v{V_C}, {hex(LOG2E)}, v{V_RS}")
    PX, PY = V_E + 48, V_E + 64
    a("s_waitcnt lgkmcnt(0)")
    for xy, PP in ((0, PX), (1, PY)):
        for s_ in range(3):
            c = "0" if s_ == 0 else vr(PP, 16)
            a(f"v_mfma_f32_32x32x16_bf16 {vr(PP,16)}, {vr(A2+(xy*3+s_)*4,4)}, {vr(KF+4*s_,4)}, {c}")
    VPK = V_E + 36
    for p in range(10):
        for e in range(2):
            r = vv[2 * p + e]
            a(f"v_fmac_f32 v{r}, v{cs_of(r)}, v{V_MN}")
            a(f"v_mul_f32 v{r}, v{r}, v{V_RS}")
        a(f"v_cvt_pk_bf16_f32 v{VPK+p}, v{vv[2*p]}, v{vv[2*p+1]}")
    a(f"v_mov_b32 v{VPK+10}, 0x3f80")
    a(f"v_mov_b32 v{VPK+11}, 0")
    V_HL, V_VPA, V_PHA, V_QA = V_M + 3, V_M + 4, V_M + 5, V_M + 6
    a(f"v_lshrrev_b32 v{V_TMP}, 7, v{V_XA}")
    a(f"s_lshl_b32 s{S_T}, s{S_HP}, 1")
    a(f"v_add_u32 v{V_HL}, s{S_T}, v{V_HF}")
    a(f"v_mul_u32_u24 v{V_VPA}, 192, v{V_TMP}")
    a(f"v_mad_u32_u24 v{V_VPA}, v{V_HL}, 48, v{V_VPA}")
    a(f"v_add_u32 v{V_VPA}, {VP}, v{V_VPA}")
    a(f"v_mul_u32_u24 v{V_PHA}, 320, v{V_TMP}")
    a(f"v_mul_u32_u24 v{V_TMP+1}, 80, v{V_HL}")
    a(f"v_add_u32 v{V_PHA}, v{V_PHA}, v{V_TMP+1}")
    for j in range(3):
        a(f"ds_write_b128 v{V_VPA}, {vr(VPK+4*j,4)} offset:{16*j}")
    a.srd_off(S_WS, S_PTR, S_PTR + 1, QBUF_OFF, QBUF_BYTES)
    a(f"s_lshl_b32 s{S_T}, s{S_MT}, 2")
    a(f"s_add_u32 s{S_T}, s{S_T}, s{S_TQ}")
    a(f"s_mul_i32 s{S_T}, s{S_T}, 80")
    a(f"s_lshl_b32 s{S_T+1}, s{S_GI}, 3")
    a(f"s_add_u32 s{S_T}, s{S_T}, s{S_T+1}")
    a(f"s_lshl_b32 s{S_T}, s{S_T}, 9")
    a(f"v_lshl_add_u32 v{V_QA}, v{V_T31}, 4, s{S_T}")
    def store_light(src, csr, addr, pk):
        for p in range(4):
            for e in range(2):
                r = src + 2 * p + e
                a(f"v_fmac_f32 v{r}, v{csr+2*p+e}, v{V_MN}")
                a(f"v_mul_f32 v{r}, v{r}, v{V_RS}")
            a(f"v_cvt_pk_bf16_f32 v{pk+p}, v{src+2*p}, v{src+2*p+1}")
        a(f"buffer_store_dwordx4 {vr(pk,4)}, v{addr}, s[{S_WS}:{S_WS+3}], 0 offen{OSC}")
    l00, l01 = LIGHTS[0][0][0][1], LIGHTS[0][0][1][1]; l10, l11 = LIGHTS[1][0][0][1], LIGHTS[1][0][1][1]
    assert l01 - l00 == l11 - l10
    a(f"s_cmp_eq_u32 s{S_HP}, 0")
    a(f"s_mov_b32 s{S_T}, {l10*512}")
    a(f"s_cselect_b32 s{S_T}, {l00*512}, s{S_T}")
    a(f"v_mul_u32_u24 v{V_TMP+5}, {(l01-l00)*512}, v{V_HF}")
    a(f"v_add3_u32 v{V_TMP+5}, v{V_TMP+5}, v{V_QA}, s{S_T}")
    store_light(acc(0), cs_of(acc(0)), V_TMP + 5, A2)
    a(f"s_cmp_lg_u32 s{S_HP}, 0")
    a(f"s_cbranch_scc1 {P}A_noT3")
    for q in range(4):
        a(f"ds_read_b128 {vr(CSR+48+4*q,4)}, v{V_TMP+4} offset:{CS+3*128+q*32}")
    (m0, m1), (n0, n1) = LIGHTS[0][1], LIGHTS[0][2]
    a(f"v_mul_u32_u24 v{V_TMP+5}, {(m1[1]-m0[1])*512}, v{V_HF}")
    a(f"v_add_u32 v{V_TMP+5}, v{V_TMP+5}, v{V_QA}")
    a(f"v_add_u32 v{V_TMP+6}, {n0[1]*512}, v{V_TMP+5}")
    assert n1[1] - n0[1] == m1[1] - m0[1]
    if m0[1]: a(f"v_add_u32 v{V_TMP+5}, {m0[1]*512}, v{V_TMP+5}")
    a("s_waitcnt lgkmcnt(0)")
    store_light(acc(3), CSR + 48, V_TMP + 5, A2 + 4)
    store_light(acc(3) + 8, CSR + 56, V_TMP + 6, A2 + 8)
    a.label(P + "A_noT3")
    stamp("A before softmax")
    p_ = [PX + i for i in range(16)] + [PY + i for i in range(4)]
    MX, MNn = V_TMP, V_TMP + 1
    a("s_nop 3")
    a(f"v_max3_f32 v{MX}, v{p_[0]}, v{p_[1]}, v{p_[2]}")
    a(f"v_min3_f32 v{MNn}, v{p_[0]}, v{p_[1]}, v{p_[2]}")
    for i in range(3, 19, 2):
        a(f"v_max3_f32 v{MX}, v{MX}, v{p_[i]}, v{p_[i+1]}")
        a(f"v_min3_f32 v{MNn}, v{MNn}, v{p_[i]}, v{p_[i+1]}")
    a(f"v_max_f32 v{MX}, v{MX}, v{p_[19]}")
    a(f"v_min_f32 v{MNn}, v{MNn}, v{p_[19]}")
    a(f"v_mul_f32 v{MX}, v{MX}, v{V_C}")
    a(f"v_mul_f32 v{MNn}, v{MNn}, v{V_C}")
    EP = CSR; EM = CSR + 20
    for i in range(20):
        a(f"v_fma_f32 v{EP+i}, v{p_[i]}, v{V_C}, -v{MX}")
        a(f"v_fma_f32 v{EM+i}, -v{p_[i]}, v{V_C}, v{MNn}")
    for i in range(20):
        a(f"v_exp_f32 v{EP+i}, v{EP+i}")
        a(f"v_exp_f32 v{EM+i}, v{EM+i}")
    SP, SM = V_TMP + 2, V_TMP + 3
    a(f"v_add_f32 v{SP}, v{EP}, v{EP+1}")
    a(f"v_add_f32 v{SM}, v{EM}, v{EM+1}")
    for i in range(2, 20):
        a(f"v_add_f32 v{SP}, v{SP}, v{EP+i}")
        a(f"v_add_f32 v{SM}, v{SM}, v{EM+i}")
    a(f"v_rcp_f32 v{SP}, v{SP}")
    a(f"v_rcp_f32 v{SM}, v{SM}")
    a("s_nop 0")
    PH = V_ACC
    for p in range(10):
        a(f"v_mul_f32 v{EP+2*p}, v{EP+2*p}, v{SP}")
        a(f"v_mul_f32 v{EP+2*p+1}, v{EP+2*p+1}, v{SP}")
        a(f"v_cvt_pk_bf16_f32 v{PH+p}, v{EP+2*p}, v{EP+2*p+1}")
    for p in range(10):
        a(f"v_mul_f32 v{EM+2*p}, v{EM+2*p}, v{SM}")
        a(f"v_mul_f32 v{EM+2*p+1}, v{EM+2*p+1}, v{SM}")
        a(f"v_cvt_pk_bf16_f32 v{PH+10+p}, v{EM+2*p}, v{EM+2*p+1}")
    for j in range(5):
        a(f"ds_write_b128 v{V_PHA}, {vr(PH+4*j,4)} offset:{PHI+16*j}")
    stamp("A after softmax")
    a(f"v_mov_b32 v{V_TMP+4}, 0")
    a(f"global_load_dword v{V_TMP+5}, v{V_TMP+4}, s[{S_PTR+2}:{S_PTR+3}] offset:128 sc1")
    a(f"s_lshr_b32 s{S_T}, s{S_WV}, 1")
    a(f"s_and_b32 s{S_T+1}, s{S_WV}, 1")
    W0 = V_M
    a(f"v_bfe_u32 v{W0}, v{V_L}, 2, 2")
    a(f"v_lshl_add_u32 v{W0}, v{V_HF}, 3, v{W0}")
    a(f"v_bfe_u32 v{W0+1}, v{V_L}, 4, 1")
    a(f"v_lshlrev_b32 v{W0+1}, 2, v{W0+1}")
    a(f"v_and_b32 v{W0+2}, 3, v{V_L}")
    a(f"v_add_u32 v{W0+1}, v{W0+1}, v{W0+2}")
    a(f"s_mul_i32 s{S_T+2}, s{S_T}, 48")
    a(f"s_add_u32 s{S_T+2}, s{S_T+2}, {VP}")
    a(f"v_mul_u32_u24 v{W0+2}, 192, v{W0}")
    a(f"v_lshl_add_u32 v{W0+2}, v{W0+1}, 3, v{W0+2}")
    a(f"v_add_u32 v{W0+2}, s{S_T+2}, v{W0+2}")
    a(f"s_mul_i32 s{S_T+2}, s{S_T}, 80")
    a(f"s_lshl_b32 s{S_T+3}, s{S_T+1}, 6")
    a(f"s_add_u32 s{S_T+2}, s{S_T+2}, s{S_T+3}")
    a(f"v_mul_u32_u24 v{W0+3}, 320, v{W0}")
    a(f"v_lshl_add_u32 v{W0+3}, v{W0+1}, 3, v{W0+3}")
    a(f"v_add_u32 v{W0+3}, s{S_T+2}, v{W0+3}")
    a.srd_off(S_WS, S_PTR, S_PTR + 1, KVS_OFF, KVS_BYTES)
    a(f"s_lshl_b32 s{S_T+2}, s{S_GI}, 2")
    a(f"s_add_u32 s{S_T+2}, s{S_T+2}, s{S_T}")
    a(f"s_mul_i32 s{S_T+2}, s{S_T+2}, 3360")
    a(f"s_lshl_b32 s{S_T+3}, s{S_T+1}, 7")
    a(f"s_add_u32 s{S_T+2}, s{S_T+2}, s{S_T+3}")
    a(f"v_mul_u32_u24 v{W0}, 640, v{V_HF}")
    a(f"v_lshl_add_u32 v{W0}, v{V_T31}, 2, v{W0}")
    a(f"v_add_u32 v{W0}, s{S_T+2}, v{W0}")
    a("s_waitcnt lgkmcnt(0)")
    a("s_barrier")
    stamp("A phi barrier")
    KA, KB = V_XF, V_XF + 32
    for kk in range(8):
        for rd in range(2):
            a(f"ds_read_b64_tr_b16 {vr(KA+4*kk+2*rd,2)}, v{W0+2} offset:{kk*3072+rd*768}")
            a(f"ds_read_b64_tr_b16 {vr(KB+4*kk+2*rd,2)}, v{W0+3} offset:{PHI+kk*5120+rd*1280}")
    KVD = V_E
    for kk in range(8):
        a(f"s_waitcnt lgkmcnt({min(15, 4*(7-kk))})")
        c = "0" if kk == 0 else vr(KVD, 16)
        a(f"v_mfma_f32_32x32x16_bf16 {vr(KVD,16)}, {vr(KA+4*kk,4)}, {vr(KB+4*kk,4)}, {c}")
    stamp("A kv mfma issued")
    a(f"s_mov_b32 s{S_T+5}, 0")
    a.label(P + "A_POLL")
    a("s_waitcnt vmcnt(0)")
    a(f"s_add_u32 s{S_T+5}, s{S_T+5}, 1")
    a(f"s_cmp_gt_u32 s{S_T+5}, 4000")
    a(f"s_cbranch_scc1 {P}A_GO")
    a(f"v_readfirstlane_b32 s{S_T+4}, v{V_TMP+5}")
    a(f"s_cmp_ge_u32 s{S_T+4}, 14")
    a(f"s_cbranch_scc1 {P}A_GO")
    a("s_sleep 2")
    a(f"global_load_dword v{V_TMP+5}, v{V_TMP+4}, s[{S_PTR+2}:{S_PTR+3}] offset:128 sc1")
    a(f"s_branch {P}A_POLL")
    a.label(P + "A_GO")
    a(f"s_cmp_eq_u32 s{S_T+1}, 0")
    a(f"s_cselect_b32 s{S_T+4}, 32, 8")
    a(f"v_cmp_gt_u32 vcc, s{S_T+4}, v{V_T31}")
    a(f"s_and_b64 exec, exec, vcc")
    a("s_nop 7"); a("s_nop 3")
    for q in range(2):
        for r in range(4):
            a(f"buffer_atomic_add_f32 v{KVD+4*q+r}, v{W0}, s[{S_WS}:{S_WS+3}], 0 offen offset:{(8*q+r)*160}")
    a(f"buffer_atomic_add_f32 v{KVD+8}, v{W0}, s[{S_WS}:{S_WS+3}], 0 offen offset:{16*160}")
    a(f"v_cmp_eq_u32 vcc, 0, v{V_HF}")
    a(f"s_and_b64 exec, exec, vcc")
    for r in range(1, 4):
        a(f"buffer_atomic_add_f32 v{KVD+8+r}, v{W0}, s[{S_WS}:{S_WS+3}], 0 offen offset:{(16+r)*160}")
    a("s_mov_b64 exec, -1")
    stamp("A atomics issued")
    a(f"s_branch {P}_DONE")

    a.label(P + "_B")
    a(f"s_and_b32 s{S_HP}, s{S_WV}, 3")
    a(f"s_lshr_b32 s{S_TQ}, s{S_WV}, 2")
    a(f"s_lshl_b32 s{S_T}, s{S_GI}, 2")
    a(f"s_sub_u32 s{S_T+1}, s{S_GI}, 5")
    a(f"s_max_i32 s{S_T+1}, s{S_T+1}, 0")
    a(f"s_sub_u32 s{S_N}, s{S_T}, s{S_T+1}")
    a(f"s_cmp_lt_u32 s{S_GI}, 5")
    a(f"s_cselect_b32 s{S_CNT}, 4, 3")
    for p in range(4):
        a(f"s_cmp_lt_u32 {p}, s{S_CNT}")
        a(f"s_cselect_b32 s{S_T}, {p}, 0")
        a(f"s_add_u32 s{S_T}, s{S_T}, s{S_N}")
        a(f"s_add_u32 s{S_T+2}, s{S_T}, 8")
        a(f"s_sub_u32 s{S_T+3}, s{S_T}, 2")
        a(f"s_cmp_lt_u32 s{S_T}, 2")
        a(f"s_cselect_b32 s{S_W0+4*p}, s6, s12")
        a(f"s_cselect_b32 s{S_W0+4*p+1}, s7, s13")
        a(f"s_mov_b32 s{S_W0+4*p+2}, {640*3456}")
        a(f"s_cselect_b32 s{S_W0+4*p+2}, {640*3840}, s{S_W0+4*p+2}")
        a(f"s_mov_b32 s{S_W0+4*p+3}, 0x00020000")
        a(f"s_mov_b32 s{S_T+1}, 3456")
        a(f"s_cselect_b32 s{S_T+1}, 3840, s{S_T+1}")
        a(f"s_cselect_b32 s{S_T+2}, s{S_T+2}, s{S_T+3}")
        a(f"s_and_b32 s{S_W0+4*p+1}, s{S_W0+4*p+1}, 0xffff")
        a(f"s_lshl_b32 s{S_WSTEP+p}, s{S_T+1}, 6")
        a(f"s_lshl_b32 s{S_T+2}, s{S_T+2}, 7")
        a(f"v_mul_lo_u32 v{V_TMP+5}, v{V_ROW}, s{S_T+1}")
        a(f"v_lshl_add_u32 v{V_TMP+5}, v{V_S8}, 4, v{V_TMP+5}")
        a(f"v_add_u32 v{V_WV+p}, s{S_T+2}, v{V_TMP+5}")
    prologue_w()
    a(f"s_add_u32 s{S_N}, s{S_N}, s{S_HP}")
    common_setup()
    a(f"v_and_b32 v{V_TMP+1}, 1, v{V_U}")
    a(f"v_bfe_u32 v{V_TMP+2}, v{V_U}, 1, 1")
    a(f"v_bfe_u32 v{V_TMP+3}, v{V_U}, 2, 1")
    a(f"v_lshl_add_u32 v{V_TMP+1}, v{V_TMP+3}, 1, v{V_TMP+1}")
    a(f"s_lshl_b32 s{S_T}, s{S_HP}, 13")
    a(f"s_add_u32 s{S_T}, s{S_T}, {WOFF}")
    for T in range(2):
        a(f"v_add_u32 v{V_TMP+4}, {4*T}, v{V_TMP+1}")
        a(f"v_xor_b32 v{V_TMP+4}, v{V_TMP+4}, v{V_RSW}")
        a(f"v_lshlrev_b32 v{V_TMP+4}, 4, v{V_TMP+4}")
        a(f"v_lshl_add_u32 v{V_TMP+4}, v{V_TMP+2}, 3, v{V_TMP+4}")
        a(f"v_lshl_add_u32 v{V_TMP+4}, v{V_ROW0}, 7, v{V_TMP+4}")
        a(f"v_add_u32 v{V_WB+T}, s{S_T}, v{V_TMP+4}")
    x_addr(2, 6, S_TQ)
    cs_roles()
    a(f"s_lshl_b32 s{S_B}, s{S_MT}, 3")
    a(f"s_add_u32 s{S_B}, s{S_B}, s{S_GI}")
    after_setup()
    a(f"s_cmp_lt_u32 s{S_B}, 14")
    a(f"s_cselect_b32 s{S_ZW}, 1, 0")
    a(f"s_cmp_eq_u32 s{S_WV}, 2")
    a(f"s_cselect_b32 s{S_ZFW}, s{S_ZW}, 0")
    def trailB():
        a(f"buffer_load_dword v{V_ONES}, v{V_ONES+1}, s[{S_X}:{S_X+3}], 0 offen")
    run_main('B', 2, P + "B", trailB)
    finish_stats('B')
    CSR = V_XF
    a(f"s_mul_i32 s{S_T}, s{S_HP}, 256")
    a(f"v_lshl_add_u32 v{V_TMP+4}, v{V_HF}, 4, s{S_T}")
    for T in range(2):
        for q in range(4):
            a(f"ds_read_b128 {vr(CSR+16*T+4*q,4)}, v{V_TMP+4} offset:{CS+T*128+q*32}")
    a(f"s_cmp_ge_u32 s{S_HP}, s{S_CNT}")
    a(f"s_cbranch_scc1 {P}B_EPI_DONE")
    a(f"s_cmp_lt_u32 s{S_N}, 2")
    a(f"s_cbranch_scc1 {P}B_QLINE")
    a(f"s_sub_u32 s{S_T}, s{S_N}, 2")
    BIA = V_E + 52
    a(f"s_lshl_b32 s{S_T+1}, s{S_MT}, 3")
    a(f"s_lshl_b32 s{S_T+2}, s{S_TQ}, 2")
    a(f"s_add_u32 s{S_T+1}, s{S_T+1}, s{S_T+2}")
    a(f"s_mul_i32 s{S_T+1}, s{S_T+1}, {KS}")
    a(f"s_lshl_b32 s{S_T+2}, s{S_T}, 1")
    a(f"s_add_u32 s{S_T+1}, s{S_T+1}, s{S_T+2}")
    a(f"s_lshl_b32 s{S_T+1}, s{S_T+1}, 10")
    a(f"v_lshrrev_b32 v{V_TMP+5}, 4, v{V_T31}")
    a(f"v_mul_u32_u24 v{V_TMP+5}, {KS*1024}, v{V_TMP+5}")
    a(f"v_and_b32 v{V_TMP+6}, 15, v{V_T31}")
    a(f"v_lshl_add_u32 v{V_TMP+6}, v{V_HF}, 4, v{V_TMP+6}")
    a(f"v_lshl_add_u32 v{V_TMP+5}, v{V_TMP+6}, 4, v{V_TMP+5}")
    a(f"v_add_u32 v{V_TMP+5}, s{S_T+1}, v{V_TMP+5}")
    a(f"v_add_u32 v{V_TMP+6}, {2*KS*1024}, v{V_TMP+5}")
    a("s_waitcnt lgkmcnt(0)")
    MR = [(V_MN0, V_RS0), (V_MN1, V_RS1)]
    for tt in range(2):
        for T in range(2):
            A_ = acc(T * 2 + tt)
            for i in range(16):
                a(f"v_fmac_f32 v{A_+i}, v{CSR+16*T+i}, v{MR[tt][0]}")
    BF = V_E + 16
    for T in range(2):
        for p in range(2):
            for j in range(4):
                src = BIA + (T * 2 + p) * 4 + j
                a(f"v_lshlrev_b32 v{BF+16*T+8*p+2*j}, 16, v{src}")
                a(f"v_and_b32 v{BF+16*T+8*p+2*j+1}, 0xffff0000, v{src}")
    a.srd_off(S_WS, S_PTR, S_PTR + 1, ABUF_OFF, ABUF_BYTES)
    OPK = V_XF
    for tt in range(2):
        for T in range(2):
            A_ = acc(T * 2 + tt)
            for i in range(16):
                a(f"v_fma_f32 v{A_+i}, v{A_+i}, v{MR[tt][1]}, v{BF+16*T+i}")
                a(f"v_max_f32 v{A_+i}, 0, v{A_+i}")
                a(f"v_mul_f32 v{A_+i}, v{A_+i}, v{A_+i}")
            for p in range(2):
                o = OPK + ((tt * 2 + T) * 2 + p) * 4
                for j in range(4):
                    a(f"v_cvt_pk_bf16_f32 v{o+j}, v{A_+8*p+2*j}, v{A_+8*p+2*j+1}")
                a(f"buffer_store_dwordx4 {vr(o,4)}, v{V_TMP+5+tt}, s[{S_WS}:{S_WS+3}], 0 offen offset:{T*1024+p*512}{OSC}")
    a(f"s_branch {P}B_EPI_DONE")
    a.label(P + "B_QLINE")
    a.srd_off(S_WS, S_PTR, S_PTR + 1, QBUF_OFF, QBUF_BYTES)
    a(f"s_lshl_b32 s{S_T+1}, s{S_MT}, 2")
    a(f"s_lshl_b32 s{S_T+2}, s{S_TQ}, 1")
    a(f"s_add_u32 s{S_T+1}, s{S_T+1}, s{S_T+2}")
    a(f"s_mul_i32 s{S_T+1}, s{S_T+1}, 80")
    a(f"s_lshl_b32 s{S_T+2}, s{S_N}, 3")
    a(f"s_add_u32 s{S_T+1}, s{S_T+1}, s{S_T+2}")
    a(f"s_add_u32 s{S_T+1}, s{S_T+1}, 64")
    a(f"s_lshl_b32 s{S_T+1}, s{S_T+1}, 9")
    a(f"v_lshlrev_b32 v{V_TMP+5}, 9, v{V_HF}")
    a(f"v_lshl_add_u32 v{V_TMP+5}, v{V_T31}, 4, v{V_TMP+5}")
    a(f"v_add_u32 v{V_TMP+5}, s{S_T+1}, v{V_TMP+5}")
    a(f"v_add_u32 v{V_TMP+6}, {80*512}, v{V_TMP+5}")
    a("s_waitcnt lgkmcnt(0)")
    OPK = V_E
    for tt in range(2):
        for T in range(2):
            A_ = acc(T * 2 + tt)
            for i in range(16):
                a(f"v_fmac_f32 v{A_+i}, v{CSR+16*T+i}, v{MR[tt][0]}")
                a(f"v_mul_f32 v{A_+i}, v{A_+i}, v{MR[tt][1]}")
            for p in range(2):
                o = OPK + ((tt * 2 + T) * 2 + p) * 4
                for j in range(4):
                    a(f"v_cvt_pk_bf16_f32 v{o+j}, v{A_+8*p+2*j}, v{A_+8*p+2*j+1}")
                a(f"buffer_store_dwordx4 {vr(o,4)}, v{V_TMP+5+tt}, s[{S_WS}:{S_WS+3}], 0 offen offset:{(4*T+2*p)*512}{OSC}")
    a.label(P + "B_EPI_DONE")
    stamp("B epi done")
    a.label(P + "_DONE")
    if fused:
        a("s_mov_b64 exec, -1")
        a(f"v_mov_b32 v{V_TMP}, {159936}")
        a(f"v_mov_b32 v{V_TMP+2}, 0"); a(f"v_mov_b32 v{V_TMP+3}, 0")
        a(f"ds_write_b64 v{V_TMP}, {vr(V_TMP+2,2)}")
        a("s_waitcnt vmcnt(0) lgkmcnt(0)")
        a("s_barrier")
        L = P + "_dn"
        a(f"s_cmp_lg_u32 s{S_WV}, 0"); a(f"s_cbranch_scc1 {L}")
        a(f"s_lshl_b32 s{S_T}, s{S_MT}, 4"); a(f"s_add_u32 s{S_T}, s{S_T}, s{S_ROLE}")
        a(f"s_lshl_b32 s{S_T}, s{S_T}, 2"); a(f"s_add_u32 s{S_T}, s{S_T}, {DONE_OFF}")
        tag_store(S_T)
        a.label(L)
        a(f"s_mov_b32 s59, s100")
        a(f"s_mov_b32 s60, s{S_MT}"); a(f"s_mov_b32 s61, s{S_ROLE}")
        return a.text(), 256, 102, 256, LDS_K1
    if timing:
        a("s_mov_b64 exec, -1")
        a("s_waitcnt vmcnt(0)")
        stamp_n[0] = 15
        stamp("end")
        a("s_memrealtime s[44:45]")
        a("s_waitcnt lgkmcnt(0)")
        a("s_lshl_b32 s46, s2, 7")
        a(f"s_lshl_b32 s47, s{S_WV}, 4")
        a("s_add_u32 s46, s46, s47")
        a(f"s_add_u32 s46, s46, {0x1320000}")
        a("v_mov_b32 v12, s46"); a("v_mov_b32 v14, s98"); a("v_mov_b32 v15, s44")
        a("s_mov_b64 s[44:45], exec"); a("s_mov_b64 exec, 1")
        a(f"global_store_dwordx2 v12, v[14:15], s[{S_PTR}:{S_PTR+1}]")
        a("s_mov_b64 exec, s[44:45]")
        a("s_cmp_eq_u32 s2, 0")
        a(f"s_cselect_b32 s40, {0x1300000}, 0")
        a("s_cmp_eq_u32 s2, 64")
        a(f"s_cselect_b32 s40, {0x1300000+4096}, s40")
        a("s_cmp_eq_u32 s40, 0")
        a(f"s_cbranch_scc1 {P}_END")
        a(f"s_lshl_b32 s41, s{S_WV}, 9")
        a("s_add_u32 s40, s40, s41")
        a(f"v_lshlrev_b32 v13, 2, v{V_L}")
        a("v_add_u32 v13, s40, v13")
        a(f"global_store_dword v13, v{V_STAMP}, s[{S_PTR}:{S_PTR+1}]")
    a.label(P + "_END")
    a("s_endpgm")
    return a.text(), 256, 102, 256, LDS_K1

if __name__ == "__main__":
    import sys
    body, vg, sg, ac, lds = gen_k1(timing=True, dis=sys.argv[2] if len(sys.argv) > 2 else '', SC={'a': ' sc0 sc1', 'b': ' sc1', 'c': '', 'd': ' sc0'}[sys.argv[3] if len(sys.argv) > 3 else 'a'])
    open(sys.argv[1], "w").write(file_text([("k1_kernel", 256, 512, lds)], [("k1_kernel", body, vg, sg, ac)]))
```

```python
from asmlib import *
from layout import *
from common import *

R = 4
STG = 36864
PRIV = R * STG
PW = 6240
LDS_K2 = PRIV + 2 * PW
NSTG = 19

def gen_k2(timing=False, pfx="K2", SC=" sc0 sc1", fused=False, PSTG=0):
    a = Asm()
    P = pfx
    S_A, S_B, S_X, S_O, S_B2, S_G = 16, 20, 24, 28, 32, 36
    S_T = 40
    S_WV, S_MT, S_JN, S_W, S_HP, S_TT, S_PB = 48, 49, 50, 51, 52, 53, 54
    S_SA, S_SB, S_LB, S_NON = 56, 57, 58, 59
    S_T0 = 94
    V_L, V_T, V_G, V_T31, V_HF = 1, 2, 3, 4, 5
    V_A = 6
    V_B0, V_B1 = 10, 11
    V_XO, V_B2O, V_XO4, V_B2O4 = 12, 13, 14, 15
    V_LA = 16
    V_STAMP = 19
    V_TMP = 20
    V_X = 30; V_BB = 40
    V_LB1, V_LB2 = 50, 51
    V_ACC = 52
    V_FR = 72
    V_E = 120
    LDF = " sc1" if fused else ""
    stamp_n = [0]
    def stamp(name):
        if not timing: return
        i = stamp_n[0]; stamp_n[0] += 1
        a(f"s_memtime s[{S_T0+2}:{S_T0+3}]")
        a("s_waitcnt lgkmcnt(0)")
        a(f"s_sub_u32 s{S_T0+2}, s{S_T0+2}, s{S_T0}")
        a(f"v_writelane_b32 v{V_STAMP}, s{S_T0+2}, {32+i if fused else i}")
    if not fused:
        a("s_cmp_ge_u32 s2, 256")
        a(f"s_cbranch_scc1 {P}_END")
    a("s_load_dwordx2 s[4:5], s[0:1], 0")
    a("s_load_dwordx2 s[6:7], s[0:1], 16")
    a("s_load_dwordx4 s[8:11], s[0:1], 64")
    a("s_load_dwordx4 s[12:15], s[0:1], 80")
    if timing and not fused:
        a(f"s_memtime s[{S_T0}:{S_T0+1}]")
        a("s_memrealtime s[98:99]")
    a(f"v_and_b32 v{V_L}, 63, v0")
    a(f"v_lshrrev_b32 v{V_TMP}, 6, v0")
    a(f"v_and_b32 v{V_T}, 15, v0")
    a(f"v_readfirstlane_b32 s{S_WV}, v{V_TMP}")
    a(f"v_bfe_u32 v{V_G}, v0, 4, 2")
    a(f"v_and_b32 v{V_T31}, 31, v0")
    a(f"v_bfe_u32 v{V_HF}, v0, 5, 1")
    a(f"s_and_b32 s{S_W}, s{S_WV}, 3")
    if fused:
        a("s_lshl_b32 s40, s60, 1")
        a("s_lshr_b32 s41, s61, 3")
        a(f"s_add_u32 s{S_MT}, s40, s41")
        a(f"s_and_b32 s{S_JN}, s61, 7")
    else:
        a("s_and_b32 s40, s2, 7")
        a("s_lshr_b32 s41, s2, 3")
        a("s_lshr_b32 s42, s40, 1")
        a("s_lshl_b32 s42, s42, 3")
        a("s_lshr_b32 s43, s41, 2")
        a(f"s_add_u32 s{S_MT}, s42, s43")
        a("s_and_b32 s40, s40, 1")
        a("s_lshl_b32 s40, s40, 2")
        a("s_and_b32 s41, s41, 3")
        a(f"s_add_u32 s{S_JN}, s40, s41")
    a(f"v_lshlrev_b32 v{V_B0}, 4, v{V_L}")
    a(f"v_add_u32 v{V_B1}, 4096, v{V_B0}")
    a("s_waitcnt lgkmcnt(0)")
    if not fused:
        a(f"s_add_u32 s44, s14, {EPOCH_OFF}")
        a("s_addc_u32 s45, s15, 0")
        a(f"s_load_dword s{S_NON}, s[44:45], 0")
    LFLAG = LDS_K2
    def poll_done(mask, lab, leader, word):
        a(f"s_cmp_lg_u32 s{S_WV}, {leader}")
        a(f"s_cbranch_scc1 {lab}_F")
        a(f"v_add_u32 v{V_TMP}, {DONE_OFF}, v{V_B0}")
        a("s_mov_b32 s42, 0")
        a.label(lab)
        a(f"global_load_dwordx4 {vr(V_TMP+2,4)}, v{V_TMP}, s[14:15] sc1")
        a("s_waitcnt vmcnt(0)")
        first = True
        for e in range(4):
            if mask >> e & 1:
                if first: a(f"v_cmp_ne_u32 vcc, s{S_NON}, v{V_TMP+2+e}"); first = False
                else:
                    a(f"v_cmp_ne_u32 s[44:45], s{S_NON}, v{V_TMP+2+e}")
                    a("s_or_b64 vcc, vcc, s[44:45]")
        a("s_add_u32 s42, s42, 1")
        a("s_cmp_gt_u32 s42, 4000")
        a(f"s_cbranch_scc1 {lab}_OK")
        a(f"s_cbranch_vccz {lab}_OK")
        a("s_sleep 6")
        a(f"s_branch {lab}")
        a.label(lab + "_OK")
        a(f"v_mov_b32 v{V_TMP}, {LFLAG + 4*word}")
        a(f"v_mov_b32 v{V_TMP+1}, 1")
        a(f"ds_write_b32 v{V_TMP}, v{V_TMP+1}")
        a("s_waitcnt lgkmcnt(0)")
        a(f"s_branch {lab}_X")
        a.label(lab + "_F")
        a(f"v_mov_b32 v{V_TMP}, {LFLAG + 4*word}")
        a("s_mov_b32 s42, 0")
        a.label(lab + "_FL")
        a(f"ds_read_b32 v{V_TMP+1}, v{V_TMP}")
        a("s_waitcnt lgkmcnt(0)")
        a(f"v_readfirstlane_b32 s43, v{V_TMP+1}")
        a("s_add_u32 s42, s42, 1")
        a("s_cmp_gt_u32 s42, 2000000")
        a(f"s_cbranch_scc1 {lab}_X")
        a("s_cmp_eq_u32 s43, 1")
        a(f"s_cbranch_scc1 {lab}_X")
        a("s_sleep 1")
        a(f"s_branch {lab}_FL")
        a.label(lab + "_X")
    a(f"s_cmp_ge_u32 s{S_WV}, 4")
    a(f"s_cbranch_scc1 {P}_LOADER")
    a(f"s_lshr_b32 s{S_HP}, s{S_W}, 1")
    a(f"s_and_b32 s{S_TT}, s{S_W}, 1")
    a(f"s_mul_i32 s{S_PB}, s{S_HP}, {PW}")
    a(f"s_add_u32 s{S_PB}, s{S_PB}, {PRIV}")
    def xb_loads():
        a.srd(S_X, 4, 5, 2621440)
        a.srd(S_O, 10, 11, 2621440)
        a.srd(S_B2, 8, 9, 1280)
        a(f"s_lshl_b32 s40, s{S_MT}, 6")
        a(f"s_lshl_b32 s42, s{S_W}, 4")
        a("s_add_u32 s40, s40, s42")
        a(f"v_add_u32 v{V_TMP}, s40, v{V_T}")
        a(f"v_mul_u32_u24 v{V_XO}, 1280, v{V_TMP}")
        a(f"s_mul_i32 s42, s{S_JN}, 160")
        a(f"v_lshl_add_u32 v{V_B2O}, v{V_G}, 4, s42")
        a(f"v_add_u32 v{V_XO}, v{V_XO}, v{V_B2O}")
        a(f"v_lshlrev_b32 v{V_TMP}, 3, v{V_G}")
        a(f"v_sub_u32 v{V_XO4}, v{V_XO}, v{V_TMP}")
        a(f"v_sub_u32 v{V_B2O4}, v{V_B2O}, v{V_TMP}")
        a(f"buffer_load_dwordx4 {vr(V_X,4)}, v{V_XO}, s[{S_X}:{S_X+3}], 0 offen")
        a(f"buffer_load_dwordx4 {vr(V_X+4,4)}, v{V_XO}, s[{S_X}:{S_X+3}], 0 offen offset:64")
        a(f"buffer_load_dwordx2 {vr(V_X+8,2)}, v{V_XO4}, s[{S_X}:{S_X+3}], 0 offen offset:128")
        a(f"buffer_load_dwordx4 {vr(V_BB,4)}, v{V_B2O}, s[{S_B2}:{S_B2+3}], 0 offen")
        a(f"buffer_load_dwordx4 {vr(V_BB+4,4)}, v{V_B2O}, s[{S_B2}:{S_B2+3}], 0 offen offset:64")
        a(f"buffer_load_dwordx2 {vr(V_BB+8,2)}, v{V_B2O4}, s[{S_B2}:{S_B2+3}], 0 offen offset:128")
    def producer():
        if fused: poll_done(0xf, P + "_PD2", 0, 1)
        a(f"s_lshl_b32 s41, s{S_JN}, 1")
        a(f"s_add_u32 s41, s41, s{S_HP}")
        a("s_mul_i32 s42, s41, 1600")
        a.srd_off(S_G, 6, 7, "s42", 1600)
        WP = V_E
        a(f"buffer_load_dwordx4 {vr(WP,4)}, v{V_B0}, s[{S_G}:{S_G+3}], 0 offen")
        a(f"buffer_load_dwordx4 {vr(WP+4,4)}, v{V_B0}, s[{S_G}:{S_G+3}], 0 offen offset:1024")
        a("s_mul_i32 s42, s41, 6720")
        a(f"s_add_u32 s42, s42, {KVS_OFF}")
        a("s_nop 3")
        a.srd_off(S_G, 14, 15, "s42", 6720)
        KV = V_E + 8
        for i in range(7):
            a(f"buffer_load_dwordx4 {vr(KV+4*i,4)}, v{V_B0 if i < 4 else V_B1}, s[{S_G}:{S_G+3}], 0 offen offset:{(i%4)*1024}{LDF}")
        a(f"s_lshl_b32 s40, s{S_MT}, 1")
        a(f"s_add_u32 s40, s40, s{S_TT}")
        a("s_mul_i32 s40, s40, 80")
        a("s_mul_i32 s42, s41, 5")
        a("s_add_u32 s40, s40, s42")
        a("s_lshl_b32 s40, s40, 9")
        a(f"v_lshl_add_u32 v{V_TMP}, v{V_T31}, 4, s40")
        a(f"v_mul_u32_u24 v{V_TMP+1}, {3*512}, v{V_HF}")
        a(f"v_add_u32 v{V_TMP+1}, v{V_TMP+1}, v{V_TMP}")
        a("s_nop 3")
        a.srd_off(S_G, 14, 15, QBUF_OFF, QBUF_BYTES)
        QF = V_E + 36
        a(f"buffer_load_dwordx4 {vr(QF,4)}, v{V_TMP+1}, s[{S_G}:{S_G+3}], 0 offen{LDF}")
        a(f"buffer_load_dwordx4 {vr(QF+4,4)}, v{V_TMP+1}, s[{S_G}:{S_G+3}], 0 offen offset:512{LDF}")
        a(f"buffer_load_dwordx4 {vr(QF+8,4)}, v{V_TMP}, s[{S_G}:{S_G+3}], 0 offen offset:1024{LDF}")
        WPL, ZL, KVL = 0, 1600, 2880
        Z = V_E + 48
        for i in range(4): a(f"v_mov_b32 v{Z+i}, 0")
        a(f"v_add_u32 v{V_TMP+2}, s{S_PB}, v{V_B0}")
        a(f"ds_write_b128 v{V_TMP+2}, {vr(Z,4)} offset:{ZL}")
        a(f"ds_write_b128 v{V_TMP+2}, {vr(Z,4)} offset:{ZL+256}")
        T0 = V_TMP + 3
        a(f"v_bfe_u32 v{T0}, v{V_L}, 4, 1")
        a(f"v_lshlrev_b32 v{T0}, 2, v{T0}")
        a(f"v_and_b32 v{T0+1}, 3, v{V_L}")
        a(f"v_add_u32 v{T0}, v{T0}, v{T0+1}")
        a(f"v_and_b32 v{T0+1}, 1, v{T0}")
        a(f"v_lshrrev_b32 v{T0}, 1, v{T0}")
        a(f"v_bfe_u32 v{T0+2}, v{V_L}, 2, 2")
        a(f"v_mul_u32_u24 v{T0+2}, 40, v{T0+2}")
        a(f"v_lshl_add_u32 v{T0+2}, v{T0}, 3, v{T0+2}")
        a(f"v_mul_u32_u24 v{T0+3}, 960, v{T0+1}")
        a(f"v_add3_u32 v{T0+2}, v{T0+2}, v{T0+3}, s{S_PB}")
        AD01, AD20, AD21, AZ = V_E + 52, V_E + 53, V_E + 54, V_E + 55
        a(f"s_add_u32 s42, s{S_PB}, {ZL}")
        a(f"v_mov_b32 v{AZ}, s42")
        a(f"v_cmp_eq_u32 vcc, v{T0+1}, v{V_HF}")
        a(f"v_cmp_eq_u32 s[44:45], 0, v{T0+1}")
        a(f"v_add_u32 v{T0+3}, 640, v{T0+2}")
        a(f"v_subrev_u32 v{T0+4}, 160, v{T0+2}")
        a(f"v_cndmask_b32 v{AD01}, v{AZ}, v{T0+2}, vcc")
        a("s_and_b64 s[46:47], vcc, s[44:45]")
        a("s_andn2_b64 s[44:45], vcc, s[44:45]")
        a("s_nop 1")
        a(f"v_cndmask_b32 v{AD20}, v{AZ}, v{T0+3}, s[46:47]")
        a(f"v_cndmask_b32 v{AD21}, v{AZ}, v{T0+4}, s[44:45]")
        a(f"v_lshrrev_b32 v{T0}, 3, v{V_T31}")
        a(f"v_bfe_u32 v{T0+1}, v{V_T31}, 2, 1")
        a(f"v_and_b32 v{T0+2}, 3, v{V_T31}")
        a(f"v_lshl_add_u32 v{T0+3}, v{T0}, 2, v{T0+2}")
        a(f"v_mul_u32_u24 v{T0+3}, 80, v{T0+3}")
        a(f"v_mul_u32_u24 v{T0+4}, 1680, v{T0+1}")
        a(f"s_add_u32 s42, s{S_PB}, {KVL}")
        a(f"v_add3_u32 v{T0+3}, v{T0+3}, v{T0+4}, s42")
        AX3, AY3 = V_E + 56, V_E + 57
        a(f"v_cmp_eq_u32 vcc, v{T0+1}, v{V_HF}")
        a("s_nop 1")
        a(f"v_cndmask_b32 v{AX3}, v{AZ}, v{T0+3}, vcc")
        a(f"v_add_u32 v{T0+3}, 1280, v{T0+3}")
        a(f"v_lshl_add_u32 v{T0+5}, v{T0}, 2, v{T0+2}")
        a(f"v_cmp_ge_u32 s[44:45], 4, v{T0+5}")
        a("s_and_b64 vcc, vcc, s[44:45]")
        a("s_nop 1")
        a(f"v_cndmask_b32 v{AY3}, v{AZ}, v{T0+3}, vcc")
        a("s_waitcnt vmcnt(10)")
        a(f"ds_write_b128 v{V_TMP+2}, {vr(WP,4)} offset:{WPL}")
        a(f"v_cmp_gt_u32 vcc, 36, v{V_L}")
        a("s_and_saveexec_b64 s[44:45], vcc")
        a(f"ds_write_b128 v{V_TMP+2}, {vr(WP+4,4)} offset:{WPL+1024}")
        a("s_mov_b64 exec, s[44:45]")
        a(f"v_lshlrev_b32 v{V_TMP+1}, 3, v{V_L}")
        a(f"v_add_u32 v{V_TMP+1}, s{S_PB}, v{V_TMP+1}")
        a("s_waitcnt vmcnt(3)")
        KP = V_E + 60
        for i in range(7):
            a(f"v_cvt_pk_bf16_f32 v{KP+2*i}, v{KV+4*i}, v{KV+4*i+1}")
            a(f"v_cvt_pk_bf16_f32 v{KP+2*i+1}, v{KV+4*i+2}, v{KV+4*i+3}")
        for i in range(6):
            a(f"ds_write_b64 v{V_TMP+1}, {vr(KP+2*i,2)} offset:{KVL+i*512}")
        a(f"v_cmp_gt_u32 vcc, 36, v{V_L}")
        a("s_and_saveexec_b64 s[44:45], vcc")
        a(f"ds_write_b64 v{V_TMP+1}, {vr(KP+12,2)} offset:{KVL+6*512}")
        a("s_mov_b64 exec, s[44:45]")
        a("s_waitcnt lgkmcnt(0)")
        A2 = V_E + 76
        for xy in range(2):
            for s_ in range(3):
                for rd in range(2):
                    if s_ < 2: a(f"ds_read_b64_tr_b16 {vr(A2+(xy*3+s_)*4+2*rd,2)}, v{AD01} offset:{s_*320+rd*160+xy*32}")
                    else: a(f"ds_read_b64_tr_b16 {vr(A2+(xy*3+s_)*4+2*rd,2)}, v{AD20 if rd == 0 else AD21} offset:{xy*32}")
        PX, PY = V_E, V_E + 16
        a("s_waitcnt vmcnt(0) lgkmcnt(0)")
        for xy, PP in ((0, PX), (1, PY)):
            for s_ in range(3):
                c = "0" if s_ == 0 else vr(PP, 16)
                a(f"v_mfma_f32_32x32x16_bf16 {vr(PP,16)}, {vr(A2+(xy*3+s_)*4,4)}, {vr(QF+4*s_,4)}, {c}")
        A3 = V_FR
        for xy, AD in ((0, AX3), (1, AY3)):
            for s3 in range(5):
                a(f"ds_read_b128 {vr(A3+(xy*5+s3)*4,4)}, v{AD} offset:{s3*16}")
        VC = V_TMP + 9
        a(f"v_mov_b32 v{VC}, {hex(LOG2E)}")
        a("s_nop 7"); a("s_nop 3")
        stamp("before softmax")
        p_ = [PX + i for i in range(16)] + [PY + i for i in range(4)]
        EP, EM, PH = V_E + 32, V_E + 52, V_E + 100
        softmax20(a, p_, VC, EP, EM, PH, V_TMP + 3)
        X3, Y3 = V_E, V_E + 16
        a("s_waitcnt lgkmcnt(0)")
        for xy, PP in ((0, X3), (1, Y3)):
            for s3 in range(5):
                c = "0" if s3 == 0 else vr(PP, 16)
                a(f"v_mfma_f32_32x32x16_bf16 {vr(PP,16)}, {vr(A3+(xy*5+s3)*4,4)}, {vr(PH+4*s3,4)}, {c}")
        a(f"s_lshl_b32 s41, s{S_JN}, 1")
        a(f"s_add_u32 s41, s41, s{S_HP}")
        a("s_mul_i32 s41, s41, 5")
        a("s_add_u32 s41, s41, 216")
        a(f"s_lshl_b32 s40, s{S_MT}, 2")
        a(f"s_lshl_b32 s42, s{S_TT}, 1")
        a("s_add_u32 s40, s40, s42")
        a(f"v_lshrrev_b32 v{T0}, 4, v{V_T31}")
        a(f"v_add_u32 v{T0}, s40, v{T0}")
        a(f"v_mul_u32_u24 v{T0}, {KS*1024}, v{T0}")
        a(f"v_and_b32 v{T0+1}, 15, v{V_T31}")
        a(f"v_lshl_add_u32 v{T0}, v{T0+1}, 4, v{T0}")
        def caddr(dst, cexpr_reg):
            a(f"v_lshrrev_b32 v{T0+2}, 2, v{cexpr_reg}")
            a(f"v_and_b32 v{T0+3}, 3, v{cexpr_reg}")
            a(f"v_lshl_add_u32 v{dst}, v{T0+2}, 10, v{T0}")
            a(f"v_lshl_add_u32 v{dst}, v{T0+3}, 8, v{dst}")
        SA0, SA1, SA2 = V_E + 32, V_E + 33, V_E + 34
        a(f"v_lshl_add_u32 v{T0+4}, v{V_HF}, 1, s41")
        caddr(SA0, T0 + 4)
        a(f"v_add_u32 v{T0+4}, 1, v{T0+4}")
        caddr(SA1, T0 + 4)
        a(f"s_add_u32 s41, s41, 4")
        a(f"v_mov_b32 v{T0+4}, s41")
        caddr(SA2, T0 + 4)
        a.srd_off(S_G, 14, 15, ABUF_OFF, ABUF_BYTES)
        a("s_nop 7"); a("s_nop 7")
        a(f"v_add_f32 v{T0}, 0x358637bd, v{Y3+4}")
        a(f"v_rcp_f32 v{T0}, v{T0}")
        a("s_nop 0")
        OP = V_E + 36; C4 = V_E + 44
        for i in range(16): a(f"v_mul_f32 v{X3+i}, v{X3+i}, v{T0}")
        for i in range(4): a(f"v_mul_f32 v{Y3+i}, v{Y3+i}, v{T0}")
        for p in range(8): a(f"v_cvt_pk_bf16_f32 v{OP+p}, v{X3+2*p}, v{X3+2*p+1}")
        for p in range(2):
            a(f"v_cvt_pk_bf16_f32 v{C4+p}, v{Y3+2*p}, v{Y3+2*p+1}")
            a(f"v_cvt_pk_bf16_f32 v{C4+2+p}, v{Y3+2*p}, v{Y3+2*p+1}")
        a(f"buffer_store_dwordx4 {vr(OP,4)}, v{SA0}, s[{S_G}:{S_G+3}], 0 offen{SC}")
        a(f"buffer_store_dwordx4 {vr(OP+4,4)}, v{SA1}, s[{S_G}:{S_G+3}], 0 offen{SC}")
        a(f"v_permlane32_swap_b32 v{C4}, v{C4+2}")
        a(f"v_permlane32_swap_b32 v{C4+1}, v{C4+3}")
        a("s_mov_b64 s[44:45], exec")
        a("s_mov_b32 exec_hi, 0")
        a(f"buffer_store_dwordx4 {vr(C4,4)}, v{SA2}, s[{S_G}:{S_G+3}], 0 offen{SC}")
        a("s_mov_b64 exec, s[44:45]")
        stamp("o stored")
    for i in range(20): a(f"v_mov_b32 v{V_ACC+i}, 0")
    a(f"s_lshl_b32 s40, s{S_W}, 10")
    a("s_add_u32 s40, s40, 5120")
    a(f"v_add_u32 v{V_LA}, s40, v{V_B0}")
    a(f"v_add_u32 v{V_LA+1}, 0x10000, v{V_LA}")
    a(f"v_add_u32 v{V_LA+2}, 0x20000, v{V_LA}")
    a(f"v_add_u32 v{V_LB1}, 0x10000, v{V_B0}")
    a(f"v_add_u32 v{V_LB2}, 0x20000, v{V_B0}")
    LA = [V_LA, V_LA + 1, V_LA + 2]; LB = [V_B0, V_LB1, V_LB2]
    def fr(buf, k): return V_FR + buf * 24 + k * 4
    def reads(i, j, buf):
        base = (i % R) * STG + j * 9216
        L = [f"ds_read_b128 {vr(fr(buf,0),4)}, v{LA[base >> 16]} offset:{base & 0xffff}"]
        for nt in range(5):
            o = base + nt * 1024
            L.append(f"ds_read_b128 {vr(fr(buf,1+nt),4)}, v{LB[o >> 16]} offset:{o & 0xffff}")
        return L
    if PSTG == 0:
        producer()
        xb_loads()
    else:
        xb_loads()
    a("s_waitcnt lgkmcnt(0)")
    a("s_barrier")
    stamp("B0")
    NB = 4
    NK = NSTG * 4
    AST = PSTG + 3
    def prime(n0):
        for jj in range(3):
            m = n0 + jj
            for x in reads(m // 4, m % 4, m % NB): a(x)
    prime(0)
    for n in range(NK):
        i, j = divmod(n, 4)
        buf = n % NB
        m = n + 3
        seg_end = PSTG * 4
        if PSTG and n == seg_end:
            producer()
            prime(n)
        if j == 1 and i < NSTG - 1:
            if i == AST - 1: a("s_waitcnt vmcnt(0)")
            a("s_waitcnt lgkmcnt(0)")
            a("s_barrier")
            if timing:
                a(f"s_memtime s[{S_T0+2}:{S_T0+3}]")
                a("s_waitcnt lgkmcnt(0)")
                a(f"s_sub_u32 s{S_T0+2}, s{S_T0+2}, s{S_T0}")
                a(f"v_writelane_b32 v{V_STAMP}, s{S_T0+2}, {(44 if fused else 16)+i}")
            if i == AST - 1:
                L = P + "_NOARR"
                a(f"s_cmp_lg_u32 s{S_WV}, 0")
                a(f"s_cbranch_scc1 {L}")
                a(f"s_lshl_b32 s40, s{S_MT}, 7")
                a(f"s_lshl_b32 s41, s{S_JN}, 2")
                a("s_add_u32 s40, s40, s41")
                a(f"s_add_u32 s40, s40, {OFLAG_OFF}")
                a(f"v_mov_b32 v{V_TMP}, s40")
                a(f"v_mov_b32 v{V_TMP+1}, s{S_NON}")
                a("s_mov_b64 s[44:45], exec")
                a("s_mov_b64 exec, 1")
                a(f"global_store_dword v{V_TMP}, v{V_TMP+1}, s[14:15] sc0 sc1")
                a("s_mov_b64 exec, s[44:45]")
                a.label(L)
        else:
            pend_groups = min(2, NK - 1 - n)
            if PSTG and n < seg_end: pend_groups = min(pend_groups, seg_end - 1 - n)
            a(f"s_waitcnt lgkmcnt({6*pend_groups})")
        skip = (m >= NK) or (PSTG and n < seg_end and m >= seg_end)
        rl = [] if skip else reads(m // 4, m % 4, m % NB)
        for nt in range(5):
            a(f"v_mfma_f32_16x16x32_bf16 {vr(V_ACC+4*nt,4)}, {vr(fr(buf,1+nt),4)}, {vr(fr(buf,0),4)}, {vr(V_ACC+4*nt,4)}")
            if nt == 0:
                for x in rl[:3]: a(x)
            if nt == 1:
                for x in rl[3:]: a(x)
    stamp("main end")
    Rr = V_ACC
    T = V_TMP
    a("s_waitcnt vmcnt(0)")
    SB_ = V_E
    for p in range(10):
        a(f"v_lshlrev_b32 v{T}, 16, v{V_X+p}")
        a(f"v_and_b32 v{T+1}, 0xffff0000, v{V_X+p}")
        a(f"v_lshlrev_b32 v{T+2}, 16, v{V_BB+p}")
        a(f"v_and_b32 v{T+3}, 0xffff0000, v{V_BB+p}")
        a(f"v_add_f32 v{SB_+2*p}, v{T}, v{T+2}")
        a(f"v_add_f32 v{SB_+2*p+1}, v{T+1}, v{T+3}")
    for i in range(20): a(f"v_add_f32 v{Rr+i}, v{Rr+i}, v{SB_+i}")
    O = V_E + 24
    for p in range(10): a(f"v_cvt_pk_bf16_f32 v{O+p}, v{Rr+2*p}, v{Rr+2*p+1}")
    a(f"buffer_store_dwordx4 {vr(O,4)}, v{V_XO}, s[{S_O}:{S_O+3}], 0 offen")
    a(f"buffer_store_dwordx4 {vr(O+4,4)}, v{V_XO}, s[{S_O}:{S_O+3}], 0 offen offset:64")
    a(f"buffer_store_dwordx2 {vr(O+8,2)}, v{V_XO4}, s[{S_O}:{S_O+3}], 0 offen offset:128")
    if timing:
        a("s_waitcnt vmcnt(0)")
        stamp_n[0] = 31 if fused else 15
        stamp("end")
        a("s_memrealtime s[44:45]")
        a("s_waitcnt lgkmcnt(0)")
        a("s_lshl_b32 s46, s2, 7")
        a(f"s_lshl_b32 s47, s{S_WV}, 4")
        a("s_add_u32 s46, s46, s47")
        a(f"s_add_u32 s46, s46, {0x1330000}")
        a("v_mov_b32 v12, s46"); a("v_mov_b32 v14, s98"); a("v_mov_b32 v15, s44")
        a("s_mov_b64 s[44:45], exec"); a("s_mov_b64 exec, 1")
        a(f"global_store_dwordx2 v12, v[14:15], s[14:15]")
        a("s_mov_b64 exec, s[44:45]")
        a(f"s_cmp_lg_u32 s2, {0 if fused else 5}")
        a(f"s_cbranch_scc1 {P}_END")
        a(f"s_cmp_lg_u32 s{S_WV}, 0")
        a(f"s_cbranch_scc1 {P}_END")
        a(f"v_lshlrev_b32 v13, 2, v{V_L}")
        a(f"v_add_u32 v13, {0x1310000}, v13")
        a(f"global_store_dword v13, v{V_STAMP}, s[14:15]")
    a("s_endpgm")
    a.label(P + "_LOADER")
    a("s_waitcnt lgkmcnt(0)")
    a(f"v_mov_b32 v{V_A}, v{V_B0}")
    for mt in range(1, 4):
        a(f"v_add_u32 v{V_A+mt}, {mt*KS*1024}, v{V_B0}")
    a(f"s_mul_i32 s40, s{S_MT}, {4*KS*1024}")
    a.srd_off(S_A, 14, 15, "s40", 4*KS*1024)
    a(f"s_mul_i32 s40, s{S_JN}, 5120")
    a(f"s_add_u32 s41, s40, {BBUF_OFF}")
    a.srd_off(S_B, 14, 15, "s41", 0)
    a(f"s_sub_u32 s{S_B+2}, {BBUF_BYTES}, s40")
    a(f"s_lshl_b32 s{S_SA}, s{S_W}, 10")
    a(f"s_mul_i32 s{S_SB}, s{S_W}, 40960")
    a(f"s_mul_i32 s{S_LB}, s{S_W}, 9216")
    def set_off(i):
        if i == 0: return
        if i < 13 or i > 14:
            a(f"s_add_u32 s{S_SA}, s{S_SA}, 4096"); a(f"s_add_u32 s{S_SB}, s{S_SB}, 163840")
        elif i == 13:
            a(f"s_add_u32 s{S_SA}, s{S_SA}, 4096"); a(f"s_add_u32 s{S_SB}, s{S_SB}, 163840")
            a(f"s_cmp_lt_u32 s{S_W}, 2")
            a(f"s_cselect_b32 s{S_SA}, s{S_SA}, 0x7f000000")
            a(f"s_cselect_b32 s{S_SB}, s{S_SB}, 0x7f000000")
        else:
            a(f"s_lshl_b32 s{S_SA}, s{S_W}, 10"); a(f"s_add_u32 s{S_SA}, s{S_SA}, {54*1024}")
            a(f"s_mul_i32 s{S_SB}, s{S_W}, 40960"); a(f"s_add_u32 s{S_SB}, s{S_SB}, {54*40960}")
    def issue(i):
        set_off(i)
        base = (i % R) * STG
        fl = " sc1" if i >= 14 else LDF
        a(f"s_add_u32 m0, s{S_LB}, {base}")
        a("s_nop 0")
        for nt in range(4):
            a(f"buffer_load_dwordx4 v{V_B0}, s[{S_B}:{S_B+3}], s{S_SB} offen offset:{nt*1024}{LDF} lds")
        a(f"s_add_u32 m0, s{S_LB}, {base + 4096}")
        a("s_nop 0")
        a(f"buffer_load_dwordx4 v{V_B1}, s[{S_B}:{S_B+3}], s{S_SB} offen{LDF} lds")
        for mt in range(4):
            a(f"s_add_u32 m0, s{S_LB}, {base + 5120 + mt*1024}")
            a("s_nop 0")
            a(f"buffer_load_dwordx4 v{V_A+mt}, s[{S_A}:{S_A+3}], s{S_SA} offen{fl} lds")
    def poll():
        Lp = P + "_POLL"
        a(f"s_lshl_b32 s40, s{S_MT}, 7")
        a(f"s_add_u32 s40, s40, {OFLAG_OFF}")
        a(f"v_and_b32 v{V_TMP}, 7, v{V_L}")
        a(f"v_lshl_add_u32 v{V_TMP}, v{V_TMP}, 2, s40")
        a("s_mov_b32 s42, 0")
        a.label(Lp)
        a(f"global_load_dword v{V_TMP+1}, v{V_TMP}, s[14:15] sc1")
        a("s_waitcnt vmcnt(0)")
        a(f"v_cmp_ne_u32 vcc, s{S_NON}, v{V_TMP+1}")
        a("s_add_u32 s42, s42, 1")
        a("s_cmp_gt_u32 s42, 8000")
        a(f"s_cbranch_scc1 {Lp}_OK")
        a(f"s_cbranch_vccz {Lp}_OK")
        a("s_sleep 2")
        a(f"s_branch {Lp}")
        a.label(Lp + "_OK")
    if fused: poll_done(0xa, P + "_PD1", 4, 0)
    for i in range(R): issue(i)
    a(f"s_waitcnt vmcnt({9*(R-1)})")
    a("s_barrier")
    for i in range(NSTG - 1):
        hi = min(NSTG - 1, max(R - 1, i + 3))
        a(f"s_waitcnt vmcnt({9*(hi-(i+1))})")
        a("s_barrier")
        if i + 4 < NSTG:
            if i + 4 == 14: poll()
            issue(i + 4)
    a.label(P + "_END")
    a("s_endpgm")
    return a.text(), 256, 100, 256, LDS_K2 + 16

if __name__ == "__main__":
    import sys
    body, vg, sg, ac, lds = gen_k2(timing=True)
    open(sys.argv[1], "w").write(file_text([("k2_kernel", 256, 512, lds)], [("k2_kernel", body, vg, sg, ac)]))
```

```python
import sys
from asmlib import *
import k1, k2c
NAME = "parallel_sum__linear_kernel_hedgehog__dense_activation_squared_relu__prompt_kernel"
def build(path, timing=False, OSC=' sc1', fused=False, PSTG=0):
    if not fused:
        b1, v1, s1, a1, l1 = k1.gen_k1(timing=timing, OSC=OSC)
        b2, v2, s2, a2, l2 = k2c.gen_k2(timing=timing, PSTG=PSTG)
        txt = file_text([("k1_kernel", 256, 512, l1), ("k2_kernel", 256, 512, l2)], [("k1_kernel", b1, v1, s1, a1), ("k2_kernel", b2, v2, s2, a2)])
    else:
        b1, v1, s1, a1, l1 = k1.gen_k1(timing=timing, OSC=OSC, fused=True)
        b2, v2, s2, a2, l2 = k2c.gen_k2(timing=timing, fused=True, PSTG=PSTG)
        body = b1 + b2 + "K1_END:\n    s_endpgm\n"
        txt = file_text([("f_kernel", 256, 512, max(l1, l2))], [("f_kernel", body, 256, 102, 256)])
    open(path, "w").write(txt)
if __name__ == "__main__":
    import argparse
    ap = argparse.ArgumentParser()
    ap.add_argument("out"); ap.add_argument("-t", action="store_true"); ap.add_argument("-f", action="store_true"); ap.add_argument("-p", type=int, default=0)
    a = ap.parse_args()
    build(a.out, timing=a.t, fused=a.f, PSTG=a.p)
```

```python
from asmlib import *
from layout import *
from common import *

R = 4
STG = 36864
PRIV = R * STG
PW = 6240
LDS_K2 = PRIV + 2 * PW
NSTG = 19

def gen_k2(timing=False, pfx="K2", SC=" sc0 sc1", fused=False, PSTG=0):
    a = Asm()
    P = pfx
    S_A, S_B, S_X, S_O, S_B2, S_G = 16, 20, 24, 28, 32, 36
    S_T = 40
    S_WV, S_MT, S_JN, S_W, S_HP, S_TT, S_PB = 48, 49, 50, 51, 52, 53, 54
    S_SA, S_SB, S_LB, S_NON = 56, 57, 58, 59
    S_T0 = 94
    V_L, V_T, V_G, V_T31, V_HF = 1, 2, 3, 4, 5
    V_A = 6
    V_B0, V_B1 = 10, 11
    V_XO, V_B2O, V_XO4, V_B2O4 = 12, 13, 14, 15
    V_LA = 16
    V_STAMP = 19
    V_TMP = 20
    V_X = 30; V_BB = 40
    V_LB1, V_LB2 = 50, 51
    V_ACC = 52
    V_FR = 72
    V_E = 120
    LDF = " sc1" if fused else ""
    stamp_n = [0]
    def stamp(name):
        if not timing: return
        i = stamp_n[0]; stamp_n[0] += 1
        a(f"s_memtime s[{S_T0+2}:{S_T0+3}]")
        a("s_waitcnt lgkmcnt(0)")
        a(f"s_sub_u32 s{S_T0+2}, s{S_T0+2}, s{S_T0}")
        a(f"v_writelane_b32 v{V_STAMP}, s{S_T0+2}, {32+i if fused else i}")
    if not fused:
        a("s_cmp_ge_u32 s2, 256")
        a(f"s_cbranch_scc1 {P}_END")
    a("s_load_dwordx2 s[4:5], s[0:1], 0")
    a("s_load_dwordx2 s[6:7], s[0:1], 16")
    a("s_load_dwordx4 s[8:11], s[0:1], 64")
    a("s_load_dwordx4 s[12:15], s[0:1], 80")
    if timing and not fused:
        a(f"s_memtime s[{S_T0}:{S_T0+1}]")
        a("s_memrealtime s[98:99]")
    a(f"v_and_b32 v{V_L}, 63, v0")
    a(f"v_lshrrev_b32 v{V_TMP}, 6, v0")
    a(f"v_and_b32 v{V_T}, 15, v0")
    a(f"v_readfirstlane_b32 s{S_WV}, v{V_TMP}")
    a(f"v_bfe_u32 v{V_G}, v0, 4, 2")
    a(f"v_and_b32 v{V_T31}, 31, v0")
    a(f"v_bfe_u32 v{V_HF}, v0, 5, 1")
    a(f"s_and_b32 s{S_W}, s{S_WV}, 3")
    if fused:
        a("s_lshl_b32 s40, s60, 1")
        a("s_lshr_b32 s41, s61, 3")
        a(f"s_add_u32 s{S_MT}, s40, s41")
        a(f"s_and_b32 s{S_JN}, s61, 7")
    else:
        a("s_and_b32 s40, s2, 7")
        a("s_lshr_b32 s41, s2, 3")
        a("s_lshr_b32 s42, s40, 1")
        a("s_lshl_b32 s42, s42, 3")
        a("s_lshr_b32 s43, s41, 2")
        a(f"s_add_u32 s{S_MT}, s42, s43")
        a("s_and_b32 s40, s40, 1")
        a("s_lshl_b32 s40, s40, 2")
        a("s_and_b32 s41, s41, 3")
        a(f"s_add_u32 s{S_JN}, s40, s41")
    a(f"v_lshlrev_b32 v{V_B0}, 4, v{V_L}")
    a(f"v_add_u32 v{V_B1}, 4096, v{V_B0}")
    a("s_waitcnt lgkmcnt(0)")
    if not fused:
        a(f"s_add_u32 s44, s14, {EPOCH_OFF}")
        a("s_addc_u32 s45, s15, 0")
        a(f"s_load_dword s{S_NON}, s[44:45], 0")
    LFLAG = LDS_K2
    def poll_done(mask, lab, leader, word):
        a(f"s_cmp_lg_u32 s{S_WV}, {leader}")
        a(f"s_cbranch_scc1 {lab}_F")
        a(f"v_add_u32 v{V_TMP}, {DONE_OFF}, v{V_B0}")
        a("s_mov_b32 s42, 0")
        a.label(lab)
        a(f"global_load_dwordx4 {vr(V_TMP+2,4)}, v{V_TMP}, s[14:15] sc1")
        a("s_waitcnt vmcnt(0)")
        first = True
        for e in range(4):
            if mask >> e & 1:
                if first: a(f"v_cmp_ne_u32 vcc, s{S_NON}, v{V_TMP+2+e}"); first = False
                else:
                    a(f"v_cmp_ne_u32 s[44:45], s{S_NON}, v{V_TMP+2+e}")
                    a("s_or_b64 vcc, vcc, s[44:45]")
        a("s_add_u32 s42, s42, 1")
        a("s_cmp_gt_u32 s42, 4000")
        a(f"s_cbranch_scc1 {lab}_OK")
        a(f"s_cbranch_vccz {lab}_OK")
        a("s_sleep 6")
        a(f"s_branch {lab}")
        a.label(lab + "_OK")
        a(f"v_mov_b32 v{V_TMP}, {LFLAG + 4*word}")
        a(f"v_mov_b32 v{V_TMP+1}, 1")
        a(f"ds_write_b32 v{V_TMP}, v{V_TMP+1}")
        a("s_waitcnt lgkmcnt(0)")
        a(f"s_branch {lab}_X")
        a.label(lab + "_F")
        a(f"v_mov_b32 v{V_TMP}, {LFLAG + 4*word}")
        a("s_mov_b32 s42, 0")
        a.label(lab + "_FL")
        a(f"ds_read_b32 v{V_TMP+1}, v{V_TMP}")
        a("s_waitcnt lgkmcnt(0)")
        a(f"v_readfirstlane_b32 s43, v{V_TMP+1}")
        a("s_add_u32 s42, s42, 1")
        a("s_cmp_gt_u32 s42, 2000000")
        a(f"s_cbranch_scc1 {lab}_X")
        a("s_cmp_eq_u32 s43, 1")
        a(f"s_cbranch_scc1 {lab}_X")
        a("s_sleep 1")
        a(f"s_branch {lab}_FL")
        a.label(lab + "_X")
    a(f"s_cmp_ge_u32 s{S_WV}, 4")
    a(f"s_cbranch_scc1 {P}_LOADER")
    a(f"s_lshr_b32 s{S_HP}, s{S_W}, 1")
    a(f"s_and_b32 s{S_TT}, s{S_W}, 1")
    a(f"s_mul_i32 s{S_PB}, s{S_HP}, {PW}")
    a(f"s_add_u32 s{S_PB}, s{S_PB}, {PRIV}")
    def xb_loads():
        a.srd(S_X, 4, 5, 2621440)
        a.srd(S_O, 10, 11, 2621440)
        a.srd(S_B2, 8, 9, 1280)
        a(f"s_lshl_b32 s40, s{S_MT}, 6")
        a(f"s_lshl_b32 s42, s{S_W}, 4")
        a("s_add_u32 s40, s40, s42")
        a(f"v_add_u32 v{V_TMP}, s40, v{V_T}")
        a(f"v_mul_u32_u24 v{V_XO}, 1280, v{V_TMP}")
        a(f"s_mul_i32 s42, s{S_JN}, 160")
        a(f"v_lshl_add_u32 v{V_B2O}, v{V_G}, 4, s42")
        a(f"v_add_u32 v{V_XO}, v{V_XO}, v{V_B2O}")
        a(f"v_lshlrev_b32 v{V_TMP}, 3, v{V_G}")
        a(f"v_sub_u32 v{V_XO4}, v{V_XO}, v{V_TMP}")
        a(f"v_sub_u32 v{V_B2O4}, v{V_B2O}, v{V_TMP}")
        a(f"buffer_load_dwordx4 {vr(V_X,4)}, v{V_XO}, s[{S_X}:{S_X+3}], 0 offen")
        a(f"buffer_load_dwordx4 {vr(V_X+4,4)}, v{V_XO}, s[{S_X}:{S_X+3}], 0 offen offset:64")
        a(f"buffer_load_dwordx2 {vr(V_X+8,2)}, v{V_XO4}, s[{S_X}:{S_X+3}], 0 offen offset:128")
        a(f"buffer_load_dwordx4 {vr(V_BB,4)}, v{V_B2O}, s[{S_B2}:{S_B2+3}], 0 offen")
        a(f"buffer_load_dwordx4 {vr(V_BB+4,4)}, v{V_B2O}, s[{S_B2}:{S_B2+3}], 0 offen offset:64")
        a(f"buffer_load_dwordx2 {vr(V_BB+8,2)}, v{V_B2O4}, s[{S_B2}:{S_B2+3}], 0 offen offset:128")
    def producer():
        if fused: poll_done(0xf, P + "_PD2", 0, 1)
        a(f"s_lshl_b32 s41, s{S_JN}, 1")
        a(f"s_add_u32 s41, s41, s{S_HP}")
        a("s_mul_i32 s42, s41, 1600")
        a.srd_off(S_G, 6, 7, "s42", 1600)
        WP = V_E
        a(f"buffer_load_dwordx4 {vr(WP,4)}, v{V_B0}, s[{S_G}:{S_G+3}], 0 offen")
        a(f"buffer_load_dwordx4 {vr(WP+4,4)}, v{V_B0}, s[{S_G}:{S_G+3}], 0 offen offset:1024")
        a("s_mul_i32 s42, s41, 6720")
        a(f"s_add_u32 s42, s42, {KVS_OFF}")
        a("s_nop 3")
        a.srd_off(S_G, 14, 15, "s42", 6720)
        KV = V_E + 8
        for i in range(7):
            a(f"buffer_load_dwordx4 {vr(KV+4*i,4)}, v{V_B0 if i < 4 else V_B1}, s[{S_G}:{S_G+3}], 0 offen offset:{(i%4)*1024}{LDF}")
        a(f"s_lshl_b32 s40, s{S_MT}, 1")
        a(f"s_add_u32 s40, s40, s{S_TT}")
        a("s_mul_i32 s40, s40, 80")
        a("s_mul_i32 s42, s41, 5")
        a("s_add_u32 s40, s40, s42")
        a("s_lshl_b32 s40, s40, 9")
        a(f"v_lshl_add_u32 v{V_TMP}, v{V_T31}, 4, s40")
        a(f"v_mul_u32_u24 v{V_TMP+1}, {3*512}, v{V_HF}")
        a(f"v_add_u32 v{V_TMP+1}, v{V_TMP+1}, v{V_TMP}")
        a("s_nop 3")
        a.srd_off(S_G, 14, 15, QBUF_OFF, QBUF_BYTES)
        QF = V_E + 36
        a(f"buffer_load_dwordx4 {vr(QF,4)}, v{V_TMP+1}, s[{S_G}:{S_G+3}], 0 offen{LDF}")
        a(f"buffer_load_dwordx4 {vr(QF+4,4)}, v{V_TMP+1}, s[{S_G}:{S_G+3}], 0 offen offset:512{LDF}")
        a(f"buffer_load_dwordx4 {vr(QF+8,4)}, v{V_TMP}, s[{S_G}:{S_G+3}], 0 offen offset:1024{LDF}")
        WPL, ZL, KVL = 0, 1600, 2880
        Z = V_E + 48
        for i in range(4): a(f"v_mov_b32 v{Z+i}, 0")
        a(f"v_add_u32 v{V_TMP+2}, s{S_PB}, v{V_B0}")
        a(f"ds_write_b128 v{V_TMP+2}, {vr(Z,4)} offset:{ZL}")
        a(f"ds_write_b128 v{V_TMP+2}, {vr(Z,4)} offset:{ZL+256}")
        T0 = V_TMP + 3
        a(f"v_bfe_u32 v{T0}, v{V_L}, 4, 1")
        a(f"v_lshlrev_b32 v{T0}, 2, v{T0}")
        a(f"v_and_b32 v{T0+1}, 3, v{V_L}")
        a(f"v_add_u32 v{T0}, v{T0}, v{T0+1}")
        a(f"v_and_b32 v{T0+1}, 1, v{T0}")
        a(f"v_lshrrev_b32 v{T0}, 1, v{T0}")
        a(f"v_bfe_u32 v{T0+2}, v{V_L}, 2, 2")
        a(f"v_mul_u32_u24 v{T0+2}, 40, v{T0+2}")
        a(f"v_lshl_add_u32 v{T0+2}, v{T0}, 3, v{T0+2}")
        a(f"v_mul_u32_u24 v{T0+3}, 960, v{T0+1}")
        a(f"v_add3_u32 v{T0+2}, v{T0+2}, v{T0+3}, s{S_PB}")
        AD01, AD20, AD21, AZ = V_E + 52, V_E + 53, V_E + 54, V_E + 55
        a(f"s_add_u32 s42, s{S_PB}, {ZL}")
        a(f"v_mov_b32 v{AZ}, s42")
        a(f"v_cmp_eq_u32 vcc, v{T0+1}, v{V_HF}")
        a(f"v_cmp_eq_u32 s[44:45], 0, v{T0+1}")
        a(f"v_add_u32 v{T0+3}, 640, v{T0+2}")
        a(f"v_subrev_u32 v{T0+4}, 160, v{T0+2}")
        a(f"v_cndmask_b32 v{AD01}, v{AZ}, v{T0+2}, vcc")
        a("s_and_b64 s[46:47], vcc, s[44:45]")
        a("s_andn2_b64 s[44:45], vcc, s[44:45]")
        a("s_nop 1")
        a(f"v_cndmask_b32 v{AD20}, v{AZ}, v{T0+3}, s[46:47]")
        a(f"v_cndmask_b32 v{AD21}, v{AZ}, v{T0+4}, s[44:45]")
        a(f"v_lshrrev_b32 v{T0}, 3, v{V_T31}")
        a(f"v_bfe_u32 v{T0+1}, v{V_T31}, 2, 1")
        a(f"v_and_b32 v{T0+2}, 3, v{V_T31}")
        a(f"v_lshl_add_u32 v{T0+3}, v{T0}, 2, v{T0+2}")
        a(f"v_mul_u32_u24 v{T0+3}, 80, v{T0+3}")
        a(f"v_mul_u32_u24 v{T0+4}, 1680, v{T0+1}")
        a(f"s_add_u32 s42, s{S_PB}, {KVL}")
        a(f"v_add3_u32 v{T0+3}, v{T0+3}, v{T0+4}, s42")
        AX3, AY3 = V_E + 56, V_E + 57
        a(f"v_cmp_eq_u32 vcc, v{T0+1}, v{V_HF}")
        a("s_nop 1")
        a(f"v_cndmask_b32 v{AX3}, v{AZ}, v{T0+3}, vcc")
        a(f"v_add_u32 v{T0+3}, 1280, v{T0+3}")
        a(f"v_lshl_add_u32 v{T0+5}, v{T0}, 2, v{T0+2}")
        a(f"v_cmp_ge_u32 s[44:45], 4, v{T0+5}")
        a("s_and_b64 vcc, vcc, s[44:45]")
        a("s_nop 1")
        a(f"v_cndmask_b32 v{AY3}, v{AZ}, v{T0+3}, vcc")
        a("s_waitcnt vmcnt(10)")
        a(f"ds_write_b128 v{V_TMP+2}, {vr(WP,4)} offset:{WPL}")
        a(f"v_cmp_gt_u32 vcc, 36, v{V_L}")
        a("s_and_saveexec_b64 s[44:45], vcc")
        a(f"ds_write_b128 v{V_TMP+2}, {vr(WP+4,4)} offset:{WPL+1024}")
        a("s_mov_b64 exec, s[44:45]")
        a(f"v_lshlrev_b32 v{V_TMP+1}, 3, v{V_L}")
        a(f"v_add_u32 v{V_TMP+1}, s{S_PB}, v{V_TMP+1}")
        a("s_waitcnt vmcnt(3)")
        KP = V_E + 60
        for i in range(7):
            a(f"v_cvt_pk_bf16_f32 v{KP+2*i}, v{KV+4*i}, v{KV+4*i+1}")
            a(f"v_cvt_pk_bf16_f32 v{KP+2*i+1}, v{KV+4*i+2}, v{KV+4*i+3}")
        for i in range(6):
            a(f"ds_write_b64 v{V_TMP+1}, {vr(KP+2*i,2)} offset:{KVL+i*512}")
        a(f"v_cmp_gt_u32 vcc, 36, v{V_L}")
        a("s_and_saveexec_b64 s[44:45], vcc")
        a(f"ds_write_b64 v{V_TMP+1}, {vr(KP+12,2)} offset:{KVL+6*512}")
        a("s_mov_b64 exec, s[44:45]")
        a("s_waitcnt lgkmcnt(0)")
        A2 = V_E + 76
        for xy in range(2):
            for s_ in range(3):
                for rd in range(2):
                    if s_ < 2: a(f"ds_read_b64_tr_b16 {vr(A2+(xy*3+s_)*4+2*rd,2)}, v{AD01} offset:{s_*320+rd*160+xy*32}")
                    else: a(f"ds_read_b64_tr_b16 {vr(A2+(xy*3+s_)*4+2*rd,2)}, v{AD20 if rd == 0 else AD21} offset:{xy*32}")
        PX, PY = V_E, V_E + 16
        a("s_waitcnt vmcnt(0) lgkmcnt(0)")
        for xy, PP in ((0, PX), (1, PY)):
            for s_ in range(3):
                c = "0" if s_ == 0 else vr(PP, 16)
                a(f"v_mfma_f32_32x32x16_bf16 {vr(PP,16)}, {vr(A2+(xy*3+s_)*4,4)}, {vr(QF+4*s_,4)}, {c}")
        A3 = V_FR
        for xy, AD in ((0, AX3), (1, AY3)):
            for s3 in range(5):
                a(f"ds_read_b128 {vr(A3+(xy*5+s3)*4,4)}, v{AD} offset:{s3*16}")
        VC = V_TMP + 9
        a(f"v_mov_b32 v{VC}, {hex(LOG2E)}")
        a("s_nop 7"); a("s_nop 3")
        stamp("before softmax")
        p_ = [PX + i for i in range(16)] + [PY + i for i in range(4)]
        EP, EM, PH = V_E + 32, V_E + 52, V_E + 100
        softmax20(a, p_, VC, EP, EM, PH, V_TMP + 3)
        X3, Y3 = V_E, V_E + 16
        a("s_waitcnt lgkmcnt(0)")
        for xy, PP in ((0, X3), (1, Y3)):
            for s3 in range(5):
                c = "0" if s3 == 0 else vr(PP, 16)
                a(f"v_mfma_f32_32x32x16_bf16 {vr(PP,16)}, {vr(A3+(xy*5+s3)*4,4)}, {vr(PH+4*s3,4)}, {c}")
        a(f"s_lshl_b32 s41, s{S_JN}, 1")
        a(f"s_add_u32 s41, s41, s{S_HP}")
        a("s_mul_i32 s41, s41, 5")
        a("s_add_u32 s41, s41, 216")
        a(f"s_lshl_b32 s40, s{S_MT}, 2")
        a(f"s_lshl_b32 s42, s{S_TT}, 1")
        a("s_add_u32 s40, s40, s42")
        a(f"v_lshrrev_b32 v{T0}, 4, v{V_T31}")
        a(f"v_add_u32 v{T0}, s40, v{T0}")
        a(f"v_mul_u32_u24 v{T0}, {KS*1024}, v{T0}")
        a(f"v_and_b32 v{T0+1}, 15, v{V_T31}")
        a(f"v_lshl_add_u32 v{T0}, v{T0+1}, 4, v{T0}")
        def caddr(dst, cexpr_reg):
            a(f"v_lshrrev_b32 v{T0+2}, 2, v{cexpr_reg}")
            a(f"v_and_b32 v{T0+3}, 3, v{cexpr_reg}")
            a(f"v_lshl_add_u32 v{dst}, v{T0+2}, 10, v{T0}")
            a(f"v_lshl_add_u32 v{dst}, v{T0+3}, 8, v{dst}")
        SA0, SA1, SA2 = V_E + 32, V_E + 33, V_E + 34
        a(f"v_lshl_add_u32 v{T0+4}, v{V_HF}, 1, s41")
        caddr(SA0, T0 + 4)
        a(f"v_add_u32 v{T0+4}, 1, v{T0+4}")
        caddr(SA1, T0 + 4)
        a(f"s_add_u32 s41, s41, 4")
        a(f"v_mov_b32 v{T0+4}, s41")
        caddr(SA2, T0 + 4)
        a.srd_off(S_G, 14, 15, ABUF_OFF, ABUF_BYTES)
        a("s_nop 7"); a("s_nop 7")
        a(f"v_add_f32 v{T0}, 0x358637bd, v{Y3+4}")
        a(f"v_rcp_f32 v{T0}, v{T0}")
        a("s_nop 0")
        OP = V_E + 36; C4 = V_E + 44
        for i in range(16): a(f"v_mul_f32 v{X3+i}, v{X3+i}, v{T0}")
        for i in range(4): a(f"v_mul_f32 v{Y3+i}, v{Y3+i}, v{T0}")
        for p in range(8): a(f"v_cvt_pk_bf16_f32 v{OP+p}, v{X3+2*p}, v{X3+2*p+1}")
        for p in range(2):
            a(f"v_cvt_pk_bf16_f32 v{C4+p}, v{Y3+2*p}, v{Y3+2*p+1}")
            a(f"v_cvt_pk_bf16_f32 v{C4+2+p}, v{Y3+2*p}, v{Y3+2*p+1}")
        a(f"buffer_store_dwordx4 {vr(OP,4)}, v{SA0}, s[{S_G}:{S_G+3}], 0 offen{SC}")
        a(f"buffer_store_dwordx4 {vr(OP+4,4)}, v{SA1}, s[{S_G}:{S_G+3}], 0 offen{SC}")
        a(f"v_permlane32_swap_b32 v{C4}, v{C4+2}")
        a(f"v_permlane32_swap_b32 v{C4+1}, v{C4+3}")
        a("s_mov_b64 s[44:45], exec")
        a("s_mov_b32 exec_hi, 0")
        a(f"buffer_store_dwordx4 {vr(C4,4)}, v{SA2}, s[{S_G}:{S_G+3}], 0 offen{SC}")
        a("s_mov_b64 exec, s[44:45]")
        stamp("o stored")
    for i in range(20): a(f"v_mov_b32 v{V_ACC+i}, 0")
    a(f"s_lshl_b32 s40, s{S_W}, 10")
    a("s_add_u32 s40, s40, 5120")
    a(f"v_add_u32 v{V_LA}, s40, v{V_B0}")
    a(f"v_add_u32 v{V_LA+1}, 0x10000, v{V_LA}")
    a(f"v_add_u32 v{V_LA+2}, 0x20000, v{V_LA}")
    a(f"v_add_u32 v{V_LB1}, 0x10000, v{V_B0}")
    a(f"v_add_u32 v{V_LB2}, 0x20000, v{V_B0}")
    LA = [V_LA, V_LA + 1, V_LA + 2]; LB = [V_B0, V_LB1, V_LB2]
    def fr(buf, k): return V_FR + buf * 24 + k * 4
    def reads(i, j, buf):
        base = (i % R) * STG + j * 9216
        L = [f"ds_read_b128 {vr(fr(buf,0),4)}, v{LA[base >> 16]} offset:{base & 0xffff}"]
        for nt in range(5):
            o = base + nt * 1024
            L.append(f"ds_read_b128 {vr(fr(buf,1+nt),4)}, v{LB[o >> 16]} offset:{o & 0xffff}")
        return L
    if PSTG == 0:
        producer()
        xb_loads()
    else:
        xb_loads()
    a("s_waitcnt lgkmcnt(0)")
    a("s_barrier")
    stamp("B0")
    NB = 4
    NK = NSTG * 4
    AST = PSTG + 3
    def prime(n0):
        for jj in range(3):
            m = n0 + jj
            for x in reads(m // 4, m % 4, m % NB): a(x)
    prime(0)
    for n in range(NK):
        i, j = divmod(n, 4)
        buf = n % NB
        m = n + 3
        seg_end = PSTG * 4
        if PSTG and n == seg_end:
            producer()
            prime(n)
        if j == 1 and i < NSTG - 1:
            if i == AST - 1: a("s_waitcnt vmcnt(0)")
            a("s_waitcnt lgkmcnt(0)")
            a("s_barrier")
            if timing:
                a(f"s_memtime s[{S_T0+2}:{S_T0+3}]")
                a("s_waitcnt lgkmcnt(0)")
                a(f"s_sub_u32 s{S_T0+2}, s{S_T0+2}, s{S_T0}")
                a(f"v_writelane_b32 v{V_STAMP}, s{S_T0+2}, {(44 if fused else 16)+i}")
            if i == AST - 1:
                L = P + "_NOARR"
                a(f"s_cmp_lg_u32 s{S_WV}, 0")
                a(f"s_cbranch_scc1 {L}")
                a(f"s_lshl_b32 s40, s{S_MT}, 7")
                a(f"s_lshl_b32 s41, s{S_JN}, 2")
                a("s_add_u32 s40, s40, s41")
                a(f"s_add_u32 s40, s40, {OFLAG_OFF}")
                a(f"v_mov_b32 v{V_TMP}, s40")
                a(f"v_mov_b32 v{V_TMP+1}, s{S_NON}")
                a("s_mov_b64 s[44:45], exec")
                a("s_mov_b64 exec, 1")
                a(f"global_store_dword v{V_TMP}, v{V_TMP+1}, s[14:15] sc0 sc1")
                a("s_mov_b64 exec, s[44:45]")
                a.label(L)
        else:
            pend_groups = min(2, NK - 1 - n)
            if PSTG and n < seg_end: pend_groups = min(pend_groups, seg_end - 1 - n)
            a(f"s_waitcnt lgkmcnt({6*pend_groups})")
        skip = (m >= NK) or (PSTG and n < seg_end and m >= seg_end)
        rl = [] if skip else reads(m // 4, m % 4, m % NB)
        for nt in range(5):
            a(f"v_mfma_f32_16x16x32_bf16 {vr(V_ACC+4*nt,4)}, {vr(fr(buf,1+nt),4)}, {vr(fr(buf,0),4)}, {vr(V_ACC+4*nt,4)}")
            if nt == 0:
                for x in rl[:3]: a(x)
            if nt == 1:
                for x in rl[3:]: a(x)
    stamp("main end")
    Rr = V_ACC
    T = V_TMP
    a("s_waitcnt vmcnt(0)")
    SB_ = V_E
    for p in range(10):
        a(f"v_lshlrev_b32 v{T}, 16, v{V_X+p}")
        a(f"v_and_b32 v{T+1}, 0xffff0000, v{V_X+p}")
        a(f"v_lshlrev_b32 v{T+2}, 16, v{V_BB+p}")
        a(f"v_and_b32 v{T+3}, 0xffff0000, v{V_BB+p}")
        a(f"v_add_f32 v{SB_+2*p}, v{T}, v{T+2}")
        a(f"v_add_f32 v{SB_+2*p+1}, v{T+1}, v{T+3}")
    for i in range(20): a(f"v_add_f32 v{Rr+i}, v{Rr+i}, v{SB_+i}")
    O = V_E + 24
    for p in range(10): a(f"v_cvt_pk_bf16_f32 v{O+p}, v{Rr+2*p}, v{Rr+2*p+1}")
    a(f"buffer_store_dwordx4 {vr(O,4)}, v{V_XO}, s[{S_O}:{S_O+3}], 0 offen")
    a(f"buffer_store_dwordx4 {vr(O+4,4)}, v{V_XO}, s[{S_O}:{S_O+3}], 0 offen offset:64")
    a(f"buffer_store_dwordx2 {vr(O+8,2)}, v{V_XO4}, s[{S_O}:{S_O+3}], 0 offen offset:128")
    if timing:
        a("s_waitcnt vmcnt(0)")
        stamp_n[0] = 31 if fused else 15
        stamp("end")
        a("s_memrealtime s[44:45]")
        a("s_waitcnt lgkmcnt(0)")
        a("s_lshl_b32 s46, s2, 7")
        a(f"s_lshl_b32 s47, s{S_WV}, 4")
        a("s_add_u32 s46, s46, s47")
        a(f"s_add_u32 s46, s46, {0x1330000}")
        a("v_mov_b32 v12, s46"); a("v_mov_b32 v14, s98"); a("v_mov_b32 v15, s44")
        a("s_mov_b64 s[44:45], exec"); a("s_mov_b64 exec, 1")
        a(f"global_store_dwordx2 v12, v[14:15], s[14:15]")
        a("s_mov_b64 exec, s[44:45]")
        a(f"s_cmp_lg_u32 s2, {0 if fused else 5}")
        a(f"s_cbranch_scc1 {P}_END")
        a(f"s_cmp_lg_u32 s{S_WV}, 0")
        a(f"s_cbranch_scc1 {P}_END")
        a(f"v_lshlrev_b32 v13, 2, v{V_L}")
        a(f"v_add_u32 v13, {0x1310000}, v13")
        a(f"global_store_dword v13, v{V_STAMP}, s[14:15]")
        a("v_mov_b32 v20, 0x1300000")
        a("global_load_dwordx4 v[24:27], v20, s[14:15]")
        a("global_load_dwordx4 v[28:31], v20, s[14:15] offset:16")
        a("global_load_dword v32, v20, s[14:15] offset:60")
        a("v_mov_b32 v21, 0x1320000")
        a("global_load_dwordx2 v[34:35], v21, s[14:15]")
        a("s_memrealtime s[44:45]")
        a("s_waitcnt vmcnt(0) lgkmcnt(0)")
        a("v_sub_u32 v36, v35, v34")
        a("v_mov_b32 v37, s98")
        a("v_sub_u32 v37, v37, v34")
        a("v_mov_b32 v38, s44")
        a("v_sub_u32 v38, v38, v34")
        a(f"v_readlane_b32 s46, v{V_STAMP}, 15")
        a("v_mov_b32 v39, s46")
        a(f"v_readlane_b32 s46, v{V_STAMP}, 2")
        a("v_mov_b32 v33, s46")
        a("v_mov_b32 v22, 0")
        a("s_mov_b64 exec, 1")
        a("global_store_dwordx4 v22, v[24:27], s[12:13]")
        a("global_store_dwordx4 v22, v[28:31], s[12:13] offset:16")
        a("global_store_dwordx4 v22, v[32:35], s[12:13] offset:32")
        a("global_store_dwordx4 v22, v[36:39], s[12:13] offset:48")
    a("s_endpgm")
    a.label(P + "_LOADER")
    a("s_waitcnt lgkmcnt(0)")
    a(f"v_mov_b32 v{V_A}, v{V_B0}")
    for mt in range(1, 4):
        a(f"v_add_u32 v{V_A+mt}, {mt*KS*1024}, v{V_B0}")
    a(f"s_mul_i32 s40, s{S_MT}, {4*KS*1024}")
    a.srd_off(S_A, 14, 15, "s40", 4*KS*1024)
    a(f"s_mul_i32 s40, s{S_JN}, 5120")
    a(f"s_add_u32 s41, s40, {BBUF_OFF}")
    a.srd_off(S_B, 14, 15, "s41", 0)
    a(f"s_sub_u32 s{S_B+2}, {BBUF_BYTES}, s40")
    a(f"s_lshl_b32 s{S_SA}, s{S_W}, 10")
    a(f"s_mul_i32 s{S_SB}, s{S_W}, 40960")
    a(f"s_mul_i32 s{S_LB}, s{S_W}, 9216")
    def set_off(i):
        if i == 0: return
        if i < 13 or i > 14:
            a(f"s_add_u32 s{S_SA}, s{S_SA}, 4096"); a(f"s_add_u32 s{S_SB}, s{S_SB}, 163840")
        elif i == 13:
            a(f"s_add_u32 s{S_SA}, s{S_SA}, 4096"); a(f"s_add_u32 s{S_SB}, s{S_SB}, 163840")
            a(f"s_cmp_lt_u32 s{S_W}, 2")
            a(f"s_cselect_b32 s{S_SA}, s{S_SA}, 0x7f000000")
            a(f"s_cselect_b32 s{S_SB}, s{S_SB}, 0x7f000000")
        else:
            a(f"s_lshl_b32 s{S_SA}, s{S_W}, 10"); a(f"s_add_u32 s{S_SA}, s{S_SA}, {54*1024}")
            a(f"s_mul_i32 s{S_SB}, s{S_W}, 40960"); a(f"s_add_u32 s{S_SB}, s{S_SB}, {54*40960}")
    def issue(i):
        set_off(i)
        base = (i % R) * STG
        fl = " sc1" if i >= 14 else LDF
        a(f"s_add_u32 m0, s{S_LB}, {base}")
        a("s_nop 0")
        for nt in range(4):
            a(f"buffer_load_dwordx4 v{V_B0}, s[{S_B}:{S_B+3}], s{S_SB} offen offset:{nt*1024}{LDF} lds")
        a(f"s_add_u32 m0, s{S_LB}, {base + 4096}")
        a("s_nop 0")
        a(f"buffer_load_dwordx4 v{V_B1}, s[{S_B}:{S_B+3}], s{S_SB} offen{LDF} lds")
        for mt in range(4):
            a(f"s_add_u32 m0, s{S_LB}, {base + 5120 + mt*1024}")
            a("s_nop 0")
            a(f"buffer_load_dwordx4 v{V_A+mt}, s[{S_A}:{S_A+3}], s{S_SA} offen{fl} lds")
    def poll():
        Lp = P + "_POLL"
        a(f"s_lshl_b32 s40, s{S_MT}, 7")
        a(f"s_add_u32 s40, s40, {OFLAG_OFF}")
        a(f"v_and_b32 v{V_TMP}, 7, v{V_L}")
        a(f"v_lshl_add_u32 v{V_TMP}, v{V_TMP}, 2, s40")
        a("s_mov_b32 s42, 0")
        a.label(Lp)
        a(f"global_load_dword v{V_TMP+1}, v{V_TMP}, s[14:15] sc1")
        a("s_waitcnt vmcnt(0)")
        a(f"v_cmp_ne_u32 vcc, s{S_NON}, v{V_TMP+1}")
        a("s_add_u32 s42, s42, 1")
        a("s_cmp_gt_u32 s42, 8000")
        a(f"s_cbranch_scc1 {Lp}_OK")
        a(f"s_cbranch_vccz {Lp}_OK")
        a("s_sleep 2")
        a(f"s_branch {Lp}")
        a.label(Lp + "_OK")
    if fused: poll_done(0xa, P + "_PD1", 4, 0)
    for i in range(R): issue(i)
    a(f"s_waitcnt vmcnt({9*(R-1)})")
    a("s_barrier")
    for i in range(NSTG - 1):
        hi = min(NSTG - 1, max(R - 1, i + 3))
        a(f"s_waitcnt vmcnt({9*(hi-(i+1))})")
        a("s_barrier")
        if i + 4 < NSTG:
            if i + 4 == 14: poll()
            issue(i + 4)
    a.label(P + "_END")
    a("s_endpgm")
    return a.text(), 256, 100, 256, LDS_K2 + 16

if __name__ == "__main__":
    import sys
    body, vg, sg, ac, lds = gen_k2(timing=True)
    open(sys.argv[1], "w").write(file_text([("k2_kernel", 256, 512, lds)], [("k2_kernel", body, vg, sg, ac)]))
```

```python
from asmlib import *
from layout import *
from k1tables import SLOT_A, TILES, LIGHTS, tile_quad, where
from common import softmax20

CS = 0
WPHI = 1024
ZERO = WPHI + 3200
CSP = 6144
XOFF = 10240; XSTG = 16384
WOFF = XOFF + 3 * XSTG; WSTG = 32768
LDS_K1 = WOFF + 3 * WSTG
PHI = XOFF
VP = PHI + 40960
PREP = VP + 24576
LOG2E = 0x3fb8aa3b
ONES2 = 0x3f803f80

def gen_k1(timing=False, dis='', pfx="K1", SC=' sc0 sc1', OSC='', fused=False):
    a = Asm()
    S_X, S_W0 = 16, 20
    S_WS = 36
    S_T = 40
    S_WV, S_MT, S_GI, S_HP, S_TQ = 48, 49, 50, 51, 52
    S_XRD, S_WRD = 53, 54
    S_XSO = 55
    S_WSO = 56
    S_WSTEP = 60
    S_I = 64; S_M0X, S_M0W = 65, 66; S_SIG = 67
    S_PTR = 68
    S_M2 = 80
    S_ROLE = 86; S_CSK = 87
    S_ZFW = 91; S_RSO = 92; S_ZW = 93; S_PLB = 87
    S_N, S_CNT, S_B = S_M2 + 3, S_M2 + 4, S_M2 + 5
    S_CSPUB, S_C2W, S_NM = 88, 89, 90
    S_T0 = 94
    V_L = 1; V_T31 = 2; V_HF = 3
    V_XV = 4; V_WV = 5
    V_XA = 9
    V_WB = 11; V_WC = 15
    V_STAMP = 19
    V_TMP = 20
    V_XF = 30; V_WF = 54
    V_ONES = 102
    V_ACC = 104
    V_E = 168
    V_NON = 168 + 75
    V_M = 248
    V_MN0, V_RS0, V_MN1, V_RS1 = 248, 249, 250, 251
    P = pfx

    stamp_n = [0]
    def stamp(name):
        if not timing: return
        i = stamp_n[0]; stamp_n[0] += 1
        a(f"s_memtime s[{S_T0+2}:{S_T0+3}]")
        a("s_waitcnt lgkmcnt(0)")
        a(f"s_sub_u32 s{S_T0+2}, s{S_T0+2}, s{S_T0}")
        a(f"v_writelane_b32 v{V_STAMP}, s{S_T0+2}, {i}")
    def pst(lane):
        if timing and 'P' in dis:
            a(f"s_memtime s[{S_T0+2}:{S_T0+3}]")
            a("s_waitcnt lgkmcnt(0)")
            a(f"s_sub_u32 s{S_T0+2}, s{S_T0+2}, s{S_T0}")
            a(f"v_writelane_b32 v{V_STAMP}, s{S_T0+2}, {lane}")
    def xf(buf, tt): return V_XF + buf * 8 + tt * 4
    def wf(buf, T): return V_WF + buf * 16 + T * 4
    def acc(i): return V_ACC + 16 * i
    def flag_add(kind):
        if kind == 'x': a(f"s_lshl_b32 s{S_T+4}, s{S_MT}, 2")
        elif kind == 'c':
            a(f"s_lshl_b32 s{S_T+4}, s{S_ROLE}, 2"); a(f"s_add_u32 s{S_T+4}, s{S_T+4}, 64")
        else: a(f"s_mov_b32 s{S_T+4}, 128")
        a(f"v_mov_b32 v{V_TMP+8}, s{S_T+4}")
        a(f"v_mov_b32 v{V_TMP+9}, 1")
        a(f"s_mov_b64 s[{S_T+6}:{S_T+7}], exec")
        a("s_mov_b64 exec, 1")
        a(f"global_atomic_add v{V_TMP+8}, v{V_TMP+9}, s[{S_PTR+2}:{S_PTR+3}] sc1")
        a(f"s_mov_b64 exec, s[{S_T+6}:{S_T+7}]")

    def advance_slot():
        a(f"s_add_u32 s{S_XRD}, s{S_XRD}, {XSTG}")
        a(f"s_add_u32 s{S_WRD}, s{S_WRD}, {WSTG}")
        a(f"s_cmp_eq_u32 s{S_XRD}, {XOFF+3*XSTG}")
        a(f"s_cselect_b32 s{S_XRD}, {XOFF}, s{S_XRD}")
        a(f"s_cselect_b32 s{S_WRD}, 0, s{S_WRD}")
    def dma_stage(sx, sw):
        a(f"s_add_u32 m0, s{S_M0X}, s{sx}")
        a(f"s_add_u32 s{S_T}, s{S_XSO}, 81920")
        a(f"buffer_load_dwordx4 v{V_XV}, s[{S_X}:{S_X+3}], s{S_XSO} offen lds")
        a(f"s_add_u32 m0, m0, 8192")
        a(f"s_add_u32 s{S_T+1}, s{S_M0W}, s{sw}")
        a(f"buffer_load_dwordx4 v{V_XV}, s[{S_X}:{S_X+3}], s{S_T} offen lds")
        for p in range(4):
            a(f"s_add_u32 m0, s{S_T+1}, {p*8192}")
            a("s_nop 0")
            a(f"buffer_load_dwordx4 v{V_WV+p}, s[{S_W0+4*p}:{S_W0+4*p+3}], s{S_WSO+p} offen lds")
        next_sigma()
    def next_sigma(xonly=False, wonly=False):
        if not wonly: a(f"s_add_u32 s{S_XSO}, s{S_XSO}, 128")
        if not xonly:
            for p in range(4): a(f"s_add_u32 s{S_WSO+p}, s{S_WSO+p}, s{S_WSTEP+p}")
        if xonly:
            a(f"s_cmp_eq_u32 s{S_XSO}, 1280"); a(f"s_cselect_b32 s{S_XSO}, 0, s{S_XSO}")
            return
        a(f"s_add_u32 s{S_SIG}, s{S_SIG}, 1")
        a(f"s_cmp_eq_u32 s{S_SIG}, 10")
        a(f"s_cselect_b32 s{S_SIG}, 0, s{S_SIG}")
        if not wonly: a(f"s_cselect_b32 s{S_XSO}, 0, s{S_XSO}")
        for p in range(4): a(f"s_cselect_b32 s{S_WSO+p}, 0, s{S_WSO+p}")
    def dma_x_now(st):
        a(f"s_add_u32 m0, s{S_M0X}, {XOFF + st*XSTG}")
        a(f"s_add_u32 s{S_T}, s{S_XSO}, 81920")
        a(f"buffer_load_dwordx4 v{V_XV}, s[{S_X}:{S_X+3}], s{S_XSO} offen lds")
        a(f"s_add_u32 m0, m0, 8192")
        a("s_nop 0")
        a(f"buffer_load_dwordx4 v{V_XV}, s[{S_X}:{S_X+3}], s{S_T} offen lds")
    def dma_w_now(st):
        for p in range(4):
            a(f"s_add_u32 m0, s{S_M0W}, {st*WSTG + p*8192}")
            a("s_nop 0")
            a(f"buffer_load_dwordx4 v{V_WV+p}, s[{S_W0+4*p}:{S_W0+4*p+3}], s{S_WSO+p} offen lds")
    def prologue_w():
        for p in range(4): a(f"s_mul_i32 s{S_WSO+p}, s{S_SIG}, s{S_WSTEP+p}")
        dma_w_now(0)
        next_sigma()
    def prologue_w2():
        dma_x_now(1); dma_w_now(1)
        next_sigma()

    def xrow_stats():
        R = V_E + 64
        S1, S2, ON = V_TMP + 2, V_TMP + 3, V_TMP + 4
        a(f"v_mov_b32 v{ON}, {hex(ONES2)}")
        a(f"v_mov_b32 v{S1}, 0"); a(f"v_mov_b32 v{S2}, 0")
        for i in range(8):
            a(f"v_dot2_f32_bf16 v{S1}, v{R+i}, v{ON}, v{S1}")
            a(f"v_dot2_f32_bf16 v{S2}, v{R+i}, v{R+i}, v{S2}")
        for dpp in ("row_shr:1", "row_shr:2", "row_shr:4", "row_shr:8", "row_bcast:15 row_mask:0xa", "row_bcast:31 row_mask:0xc"):
            a("s_nop 1")
            a(f"v_add_f32_dpp v{S1}, v{S1}, v{S1} {dpp}" + (" row_mask:0xf" if "mask" not in dpp else "") + " bank_mask:0xf")
            a(f"v_add_f32_dpp v{S2}, v{S2}, v{S2} {dpp}" + (" row_mask:0xf" if "mask" not in dpp else "") + " bank_mask:0xf")
        a(f"v_mul_f32 v{V_E+72}, 0xbacccccd, v{S1}")
        a(f"v_mul_f32 v{S2}, 0x3acccccd, v{S2}")
        a(f"v_fma_f32 v{S2}, -v{V_E+72}, v{V_E+72}, v{S2}")
        a(f"v_max_f32 v{S2}, 0, v{S2}")
        a(f"v_add_f32 v{S2}, 0x3727c5ac, v{S2}")
        a(f"v_rsq_f32 v{V_E+73}, v{S2}")
        a(f"s_lshl_b32 s{S_T}, s{S_MT}, 7")
        a(f"s_lshl_b32 s{S_T+1}, s{S_ROLE}, 3")
        a(f"s_add_u32 s{S_T}, s{S_T}, s{S_T+1}")
        a(f"s_add_u32 s{S_T}, s{S_T}, s{S_WV}")
        a(f"s_lshl_b32 s{S_T}, s{S_T}, 4")
        a(f"s_add_u32 s{S_RSO}, s{S_T}, {STATG_OFF}")
    def xrow_store():
        a(f"v_mov_b32 v{V_E+74}, v{V_NON}")
        a(f"v_mov_b32 v{V_TMP+8}, s{S_RSO}")
        a(f"s_mov_b64 s[{S_T+6}:{S_T+7}], exec")
        a("s_mov_b32 exec_lo, 0"); a("s_mov_b32 exec_hi, 0x80000000")
        a(f"global_store_dwordx4 v{V_TMP+8}, {vr(V_E+72,4)}, s[{S_PTR}:{S_PTR+1}]{SC}")
        a(f"s_mov_b64 exec, s[{S_T+6}:{S_T+7}]")

    def dma_pieces(sx, sw):
        G = []
        G.append([f"s_add_u32 m0, s{S_M0X}, s{sx}", f"s_add_u32 s{S_T}, s{S_XSO}, 81920",
                  f"buffer_load_dwordx4 v{V_XV}, s[{S_X}:{S_X+3}], s{S_XSO} offen lds"])
        G.append([f"s_add_u32 m0, s{S_M0X}, s{sx}", f"s_add_u32 m0, m0, 8192", f"s_add_u32 s{S_T}, s{S_XSO}, 81920",
                  f"buffer_load_dwordx4 v{V_XV}, s[{S_X}:{S_X+3}], s{S_T} offen lds"])
        for p in range(4):
            G.append([f"s_add_u32 s{S_T+1}, s{S_M0W}, s{sw}", f"s_add_u32 m0, s{S_T+1}, {p*8192}", "s_nop 0",
                      f"buffer_load_dwordx4 v{V_WV+p}, s[{S_W0+4*p}:{S_W0+4*p+3}], s{S_WSO+p} offen lds"])
        return G

    def prep_issue():
        SB = S_B
        a(f"s_cmp_lt_u32 s{SB}, {KS_H}")
        a(f"s_cselect_b32 s{S_WS}, s{S_PTR+8}, s{S_PTR+10}")
        a(f"s_cselect_b32 s{S_WS+1}, s{S_PTR+9}, s{S_PTR+11}")
        a(f"s_mov_b32 s{S_WS+2}, {640*1280}")
        a(f"s_cselect_b32 s{S_WS+2}, {1728*1280}, s{S_WS+2}")
        a(f"s_mov_b32 s{S_WS+3}, 0x00020000")
        a(f"s_cselect_b64 s[{S_T+6}:{S_T+7}], -1, 0")
        a(f"s_and_b32 s{S_WS+1}, s{S_WS+1}, 0xffff")
        a(f"s_cmp_ge_u32 s{SB}, {KS}")
        a(f"s_cselect_b32 s{S_WS+2}, 0, s{S_WS+2}")
        a(f"s_mul_i32 s{S_T+5}, s{S_WV}, 5120")
        a(f"s_add_u32 s{S_T+4}, s{S_M2+2}, {WOFF}")
        a(f"s_add_u32 s{S_T+4}, s{S_T+4}, s{S_T+5}")
        a(f"s_sub_u32 s{S_T+5}, s{S_T+5}, {6*5120}")
        a(f"s_add_u32 s{S_T+5}, s{S_T+5}, s{S_M2+1}")
        a(f"s_cmp_lt_u32 s{S_WV}, 6")
        a(f"s_cselect_b32 s{S_PLB}, s{S_T+4}, s{S_T+5}")
        a(f"s_mul_i32 s{S_T+4}, s{S_WV}, 160")
        a(f"s_lshl_b32 s{S_T}, s{SB}, 2")
        E = V_E
        for i in range(5):
            a(f"v_add_u32 v{E}, {64*i}, v{V_L}")
            a(f"v_mul_u32_u24 v{E+1}, 6554, v{E}")
            a(f"v_lshrrev_b32 v{E+1}, 16, v{E+1}")
            a(f"v_mul_u32_u24 v{E+2}, 10, v{E+1}")
            a(f"v_sub_u32 v{E+2}, v{E}, v{E+2}")
            a(f"v_bfe_u32 v{E+3}, v{E+1}, 2, 2")
            a(f"v_and_b32 v{E+4}, 3, v{E+1}")
            a(f"v_lshrrev_b32 v{E+7}, 4, v{E+1}")
            a(f"v_lshl_add_u32 v{E+4}, v{E+7}, 2, v{E+4}")
            a(f"v_add_u32 v{E+8}, s{S_T}, v{E+3}")
            a(f"v_lshl_add_u32 v{E+9}, v{E+8}, 3, v{E+4}")
            a(f"v_subrev_u32 v{E+10}, 216, v{E+8}")
            a(f"v_mul_u32_u24 v{E+11}, 13108, v{E+10}")
            a(f"v_lshrrev_b32 v{E+11}, 16, v{E+11}")
            a(f"v_mul_u32_u24 v{E+12}, 5, v{E+11}")
            a(f"v_sub_u32 v{E+12}, v{E+10}, v{E+12}")
            a(f"v_and_b32 v{E+13}, 1, v{E+12}")
            a(f"v_lshlrev_b32 v{E+13}, 3, v{E+13}")
            a(f"v_bfe_u32 v{E+14}, v{E+12}, 1, 1")
            a(f"v_mad_u32_u24 v{E+13}, v{E+14}, 20, v{E+13}")
            a(f"v_lshlrev_b32 v{E+14}, 4, v{E+7}")
            a(f"v_add_u32 v{E+14}, 16, v{E+14}")
            a(f"v_cmp_eq_u32 vcc, 4, v{E+12}")
            a("s_nop 1")
            a(f"v_cndmask_b32 v{E+13}, v{E+13}, v{E+14}, vcc")
            a(f"v_mad_u32_u24 v{E+13}, v{E+11}, 40, v{E+13}")
            a(f"v_add_u32 v{E+13}, v{E+13}, v{E+4}")
            a(f"v_cndmask_b32 v{E+9}, v{E+13}, v{E+9}, s[{S_T+6}:{S_T+7}]")
            a(f"v_mul_u32_u24 v{E+9}, 1280, v{E+9}")
            a(f"v_lshl_add_u32 v{E+9}, v{E+2}, 4, v{E+9}")
            a(f"v_add_u32 v{E+16+i}, s{S_T+4}, v{E+9}")
        for i in range(5):
            a(f"s_add_u32 m0, s{S_PLB}, {i*1024}")
            a("s_nop 0")
            a(f"buffer_load_dwordx4 v{V_E+16+i}, s[{S_WS}:{S_WS+3}], 0 offen lds")
    def prep_finish():
        SB = S_B
        L = a.newlabel(P + "_pf")
        a(f"s_cmp_ge_u32 s{SB}, {KS}")
        a(f"s_cbranch_scc1 {L}")
        a(f"v_lshrrev_b32 v{V_TMP}, 2, v{V_L}")
        a(f"v_mul_u32_u24 v{V_TMP}, 160, v{V_TMP}")
        a(f"v_and_b32 v{V_TMP+1}, 3, v{V_L}")
        a(f"v_lshl_add_u32 v{V_TMP+2}, v{V_TMP+1}, 4, v{V_TMP}")
        a(f"v_lshl_add_u32 v{V_TMP+3}, v{V_TMP+1}, 3, v{V_TMP}")
        a(f"v_add_u32 v{V_TMP+2}, s{S_PLB}, v{V_TMP+2}")
        a(f"v_add_u32 v{V_TMP+3}, s{S_PLB}, v{V_TMP+3}")
        OB = V_XF
        for nt in range(5):
            for rd in range(2):
                if nt < 4:
                    a(f"ds_read_b64_tr_b16 {vr(OB+4*nt+2*rd,2)}, v{V_TMP+2} offset:{64*(nt//2)+8*(nt%2)+rd*2560}")
                else:
                    a(f"ds_read_b64_tr_b16 {vr(OB+4*nt+2*rd,2)}, v{V_TMP+3} offset:{128+rd*2560}")
        a.srd_off(S_WS, S_PTR, S_PTR + 1, BBUF_OFF, BBUF_BYTES)
        a(f"s_mul_i32 s{S_T}, s{SB}, 40")
        a(f"s_mul_i32 s{S_T+1}, s{S_WV}, 5")
        a(f"s_add_u32 s{S_T}, s{S_T}, s{S_T+1}")
        a(f"s_lshl_b32 s{S_T}, s{S_T}, 10")
        a(f"v_lshlrev_b32 v{V_TMP+4}, 4, v{V_L}")
        a(f"v_add_u32 v{V_TMP+4}, s{S_T}, v{V_TMP+4}")
        a(f"v_add_u32 v{V_TMP+7}, 4096, v{V_TMP+4}")
        a("s_waitcnt lgkmcnt(0)")
        for nt in range(4):
            a(f"buffer_store_dwordx4 {vr(OB+4*nt,4)}, v{V_TMP+4}, s[{S_WS}:{S_WS+3}], 0 offen offset:{nt*1024}{OSC}")
        a(f"buffer_store_dwordx4 {vr(OB+16,4)}, v{V_TMP+7}, s[{S_WS}:{S_WS+3}], 0 offen{OSC}")
        a.label(L)
    def tag_store(off_sgpr):
        a(f"v_mov_b32 v{V_TMP+8}, s{off_sgpr}")
        a(f"v_mov_b32 v{V_TMP+9}, s100")
        a(f"s_mov_b64 s[{S_T+6}:{S_T+7}], exec")
        a("s_mov_b64 exec, 1")
        a(f"global_store_dword v{V_TMP+8}, v{V_TMP+9}, s[{S_PTR}:{S_PTR+1}] sc0 sc1")
        a(f"s_mov_b64 exec, s[{S_T+6}:{S_T+7}]")
    def bias_issue():
        a(f"s_sub_u32 s{S_T}, s{S_N}, 2")
        a(f"s_max_i32 s{S_T}, s{S_T}, 0")
        a(f"s_min_u32 s{S_T}, s{S_T}, 26")
        a(f"s_lshl_b32 s{S_T+1}, s{S_T}, 7")
        a.srd_off(S_WS, S_PTR + 6, S_PTR + 7, f"s{S_T+1}", 128)
        a(f"v_lshlrev_b32 v{V_TMP+8}, 4, v{V_HF}")
        for T in range(2):
            for p in range(2):
                a(f"buffer_load_dwordx4 {vr(V_E+52+(T*2+p)*4,4)}, v{V_TMP+8}, s[{S_WS}:{S_WS+3}], 0 offen offset:{(4*T+2*p)*16}")
    def run_main(typ, ntile, lab, trail, hooks):
        nTT = 1 if typ == 'A' else 2
        ACS = V_E
        ool = []
        def read_list(ks, buf):
            L = []
            for tt in range(nTT):
                L.append(f"v_xad_u32 v{V_TMP+tt}, v{V_XA+tt}, {ks*16}, s{S_XRD}")
                L.append(f"ds_read_b128 {vr(xf(buf,tt),4)}, v{V_TMP+tt}")
            for T in range(ntile):
                for rd in range(2):
                    L.append(f"ds_read_b64_tr_b16 {vr(wf(buf,T)+2*rd,2)}, v{V_WC+T} offset:{ks*2048+rd*512}")
            return [] if 'r' in dis else L
        nreads = nTT + 2 * ntile
        def upd_w():
            for T in range(ntile): a(f"v_add_u32 v{V_WC+T}, s{S_WRD}, v{V_WB+T}")
        def side(name, tests, fn, else_fn=None):
            if 'S' in dis:
                if else_fn: else_fn()
                return
            L = a.newlabel(lab + "_" + name)
            a(f"s_cmp_lg_u32 s{tests[0][0]}, {tests[0][1]}")
            a(f"s_cbranch_scc1 {L}e")
            fn()
            if else_fn:
                a(f"s_branch {L}x")
            a.label(L + "e")
            if else_fn:
                else_fn()
                a.label(L + "x")
        def dummy():
            a(f"buffer_load_dword v{V_ONES}, v{V_ONES+1}, s[{S_X}:{S_X+3}], 0 offen")
        pend = []
        def kstep(i, ks):
            n = i * 4 + ks
            buf = n % 3; nb = (n + 2) % 3
            nks = (ks + 2) & 3
            last_reads = (n + 2) >= 40
            if ks == 2:
                assert not pend
                a("s_waitcnt lgkmcnt(0)")
                if i == 9:
                    a("s_barrier")
                    hooks['post9']()
                if i < 9:
                    def st(lane):
                        if timing and 'W' in dis:
                            a(f"s_memtime s[{S_T0+2}:{S_T0+3}]")
                            a("s_waitcnt lgkmcnt(0)")
                            a(f"s_sub_u32 s{S_T0+2}, s{S_T0+2}, s{S_T0}")
                            a(f"v_writelane_b32 v{V_STAMP}, s{S_T0+2}, {lane}")
                    st(32 + 3 * i)
                    a(f"s_waitcnt vmcnt({[7, 8, 8, 8, 8, 8, 8, 8, 6 if typ == 'B' else 1][i]})")
                    st(33 + 3 * i)
                    a("s_barrier")
                    st(34 + 3 * i)
                    if i == 3: nonce_check()
                    a(f"s_mov_b32 s{S_M2+1}, s{S_XRD}"); a(f"s_mov_b32 s{S_M2+2}, s{S_WRD}")
                    advance_slot()
                    upd_w()
                    if i == 7 and typ == 'B': pend.append(prep_issue)
                    if i <= 6 and 'd' not in dis:
                        for g in dma_pieces(S_M2 + 1, S_M2 + 2): pend.append(g)
                        pend.append(next_sigma)
                        if i == 0:
                            pend.append(nonce_load)
                        elif i == 1 and typ == 'B':
                            pend.append(lambda: side("zs", [(S_ZW, 1)], zstore, dummy))
                        elif i == 3:
                            pend.append(xrow_store)
                        elif i == 4:
                            pend.append(lambda: side("c2", [(S_C2W, 1)], c2, dummy))
                        elif i == 5 and typ == 'B':
                            pend.append(lambda: side("zf", [(S_ZFW, 1)], lambda: flag_add('z'), dummy))
                        else:
                            pend.append(dummy)
            else:
                a(f"s_waitcnt lgkmcnt({0 if n == 39 else nreads})")
            rl = [] if last_reads else read_list(nks, nb)
            mf = []
            for T in range(ntile):
                for tt in range(nTT):
                    j = T * nTT + tt
                    if 'm' not in dis:
                        mf.append(f"v_mfma_f32_32x32x16_bf16 {vr(acc(j),16)}, {vr(wf(buf,T),4)}, {vr(xf(buf,tt),4)}, {'0' if n == 0 else vr(acc(j),16)}")
            half = (len(rl) + 1) // 2
            groups = [rl[:half], rl[half:]] + [[] for _ in range(8)]
            nm = max(2, len(mf))
            for j in range(nm):
                if j < len(mf): a(mf[j])
                for x in groups[j]: a(x)
                npop = 0
                if n < 2: npop = 2 if nm < 4 else 1
                elif j >= nm - 2: npop = 1
                if n == 1 and j == nm - 1: npop = 99
                for _ in range(npop):
                    if not pend: break
                    g = pend.pop(0)
                    if callable(g): g()
                    else:
                        for x in g: a(x)
                    if pend and callable(pend[0]) and pend[0] is next_sigma:
                        pend.pop(0)()
            if i == 0:
                def cs(buf=buf):
                    for T in range(ntile):
                        c = vr(ACS + 16 * T, 16)
                        a(f"v_mfma_f32_32x32x16_bf16 {c}, {vr(V_M+4,4)}, {vr(wf(buf,T),4)}, {'0' if (typ == 'A' or ks < 2) else c}")
                if typ == 'A':
                    side("cs", [(S_CSK, ks)], cs)
                else:
                    side("cs", [(S_CSK, ks & 1)], cs)
            if i == 1 and ks == 0:
                def cw():
                    nT_ = 4 if typ == 'A' else 2
                    a(f"s_mul_i32 s{S_T}, s{S_HP}, {nT_*128}")
                    a(f"s_lshl_b32 s{S_T+1}, s{S_TQ}, 10")
                    a(f"s_add_u32 s{S_T}, s{S_T}, s{S_T+1}")
                    a(f"v_lshlrev_b32 v{V_TMP+8}, 7, v{V_HF}")
                    a(f"v_lshl_add_u32 v{V_TMP+8}, v{V_T31}, 2, v{V_TMP+8}")
                    a(f"v_add_u32 v{V_TMP+8}, s{S_T}, v{V_TMP+8}")
                    a(f"v_cmp_eq_u32 vcc, 1, v{V_HF}")
                    a("s_nop 1")
                    for T in range(0, nT_, 2):
                        hi = ACS + 16 * (T + 1) if T + 1 < ntile else ACS + 16 * T
                        a(f"v_cndmask_b32 v{V_TMP+9}, v{ACS+16*T}, v{hi}, vcc")
                        a(f"ds_write_b32 v{V_TMP+8}, v{V_TMP+9} offset:{CSP+T*128}")
                side("cw", [(S_CSPUB, 1)], cw)
            if i == 8 and ks == 2:
                gran_issue(typ)
                if typ == 'B': bias_issue()
            if (i, ks) in hooks: hooks[(i, ks)]()
        def zstore():
            a.srd_off(S_WS, S_PTR, S_PTR + 1, KVS_OFF, KVS_BYTES)
            a(f"s_lshl_b32 s{S_T}, s{S_B}, 3")
            a(f"s_add_u32 s{S_T}, s{S_T}, s{S_WV}")
            a(f"s_lshl_b32 s{S_T}, s{S_T}, 10")
            a(f"v_lshlrev_b32 v{V_TMP+8}, 4, v{V_L}")
            for e in range(4): a(f"v_mov_b32 v{V_TMP+4+e}, 0")
            a(f"buffer_store_dwordx4 {vr(V_TMP+4,4)}, v{V_TMP+8}, s[{S_WS}:{S_WS+3}], s{S_T} offen{SC}")
        def c2():
            ncon = 4 if typ == 'A' else 2
            a(f"v_lshlrev_b32 v{V_TMP+8}, 2, v0")
            for c in range(ncon):
                a(f"ds_read_b32 v{ACS+c}, v{V_TMP+8} offset:{CSP+c*1024}")
            a(f"s_mul_i32 s{S_T}, s{S_ROLE}, 20480")
            a(f"s_lshl_b32 s{S_T+1}, s{S_MT}, 11")
            a(f"s_add_u32 s{S_T}, s{S_T}, s{S_T+1}")
            a(f"s_add_u32 s{S_T}, s{S_T}, {CSG_OFF}")
            a(f"v_lshl_add_u32 v{V_TMP+8}, v0, 3, s{S_T}")
            a("s_waitcnt lgkmcnt(0)")
            for c in range(1, ncon): a(f"v_add_f32 v{ACS}, v{ACS}, v{ACS+c}")
            a(f"v_mov_b32 v{ACS+1}, v{V_NON}")
            a(f"global_store_dwordx2 v{V_TMP+8}, {vr(ACS,2)}, s[{S_PTR}:{S_PTR+1}]{SC}")
        def nonce_load():
            a(f"global_load_dword v{V_NON}, v{V_ONES+1}, s[{S_PTR+2}:{S_PTR+3}] sc1")
        def nonce_check():
            L = a.newlabel(lab + "_nc")
            a(f"v_readfirstlane_b32 s{S_T}, v{V_NON}")
            a(f"s_cmp_lg_u32 s{S_T}, 0")
            a(f"s_cbranch_scc1 {L}ok")
            a(f"s_mov_b32 s{S_T+2}, 0")
            a.label(L)
            a("s_sleep 4")
            nonce_load()
            a("s_waitcnt vmcnt(0)")
            a(f"v_readfirstlane_b32 s{S_T}, v{V_NON}")
            a(f"s_add_u32 s{S_T+2}, s{S_T+2}, 1")
            a(f"s_cmp_gt_u32 s{S_T+2}, 4000")
            a(f"s_cbranch_scc1 {L}ok")
            a(f"s_cmp_eq_u32 s{S_T}, 0")
            a(f"s_cbranch_scc1 {L}")
            a.label(L + "ok")
            a(f"s_mov_b32 s100, s{S_T}")
        a("s_waitcnt lgkmcnt(0)")
        a("s_barrier")
        stamp(typ + " first barrier")
        a(f"s_mov_b32 s{S_M2+1}, {XOFF + 2*XSTG}"); a(f"s_mov_b32 s{S_M2+2}, {2*WSTG}")
        for g in dma_pieces(S_M2 + 1, S_M2 + 2): pend.append(g)
        pend.append(next_sigma)
        pend.append(trail)
        upd_w()
        for x in read_list(0, 0): a(x)
        for x in read_list(1, 1): a(x)
        for i in range(10):
            if timing and 'T' in dis:
                a(f"s_memtime s[{S_T0+2}:{S_T0+3}]")
                a("s_waitcnt lgkmcnt(0)")
                a(f"s_sub_u32 s{S_T0+2}, s{S_T0+2}, s{S_T0}")
                a(f"v_writelane_b32 v{V_STAMP}, s{S_T0+2}, {16+i}")
            for ks in range(4): kstep(i, ks)
        a(f"s_branch {lab}_EXIT")
        k = 0
        while k < len(ool):
            L, fn = ool[k]; k += 1
            a.label(L); fn(); a(f"s_branch {L}r")
        a.label(lab + "_EXIT")

    V_FL = V_M + 2
    def gran_issue(typ):
        for tt in range(1 if typ == 'A' else 2):
            a(f"v_lshrrev_b32 v{V_TMP+8}, 7, v{V_XA+tt}")
            a(f"s_lshl_b32 s{S_T}, s{S_MT}, 7")
            a(f"v_add_u32 v{V_TMP+8}, s{S_T}, v{V_TMP+8}")
            a(f"v_lshlrev_b32 v{V_TMP+8}, 4, v{V_TMP+8}")
            a(f"v_add_u32 v{V_TMP+8}, {STATG_OFF}, v{V_TMP+8}")
            a(f"global_load_dwordx4 {vr(V_E+24+4*tt,4)}, v{V_TMP+8}, s[{S_PTR}:{S_PTR+1}] sc1")
        L = a.newlabel(P + "_csl")
        a(f"s_cmp_ge_u32 s{S_WV}, 4"); a(f"s_cbranch_scc1 {L}")
        a(f"s_mul_i32 s{S_T}, s{S_ROLE}, 20480")
        a(f"s_add_u32 s{S_T}, s{S_T}, {CSG_OFF}")
        a(f"v_lshl_add_u32 v{V_TMP+8}, v0, 3, s{S_T}")
        for j in range(10):
            if j % 2 == 0 and j: a(f"v_add_u32 v{V_TMP+8}, 4096, v{V_TMP+8}")
            a(f"global_load_dwordx2 {vr(V_E+32+2*j,2)}, v{V_TMP+8}, s[{S_PTR}:{S_PTR+1}] offset:{(j%2)*2048} sc1")
        a.label(L)
    def gran_check(typ):
        Lp = a.newlabel(P + "_gr"); Lok = Lp + "ok"
        a(f"s_mov_b32 s{S_T+2}, 0")
        a.label(Lp)
        a("s_waitcnt vmcnt(0)")
        a(f"v_cmp_ne_u32 vcc, v{V_E+24+2}, v{V_NON}")
        if typ == 'B':
            a(f"v_cmp_ne_u32 s[{S_T}:{S_T+1}], v{V_E+28+2}, v{V_NON}")
            a(f"s_or_b64 vcc, vcc, s[{S_T}:{S_T+1}]")
        L = a.newlabel(P + "_grc")
        a(f"s_cmp_ge_u32 s{S_WV}, 4"); a(f"s_cbranch_scc1 {L}")
        for j in range(10):
            a(f"v_cmp_ne_u32 s[{S_T}:{S_T+1}], v{V_E+32+2*j+1}, v{V_NON}")
            a(f"s_or_b64 vcc, vcc, s[{S_T}:{S_T+1}]")
        a.label(L)
        a(f"s_add_u32 s{S_T+2}, s{S_T+2}, 1")
        a(f"s_cmp_gt_u32 s{S_T+2}, 4000")
        a(f"s_cbranch_scc1 {Lok}")
        a(f"s_cbranch_vccz {Lok}")
        a("s_sleep 4")
        gran_issue(typ)
        a(f"s_branch {Lp}")
        a.label(Lok)
        for tt in range(1 if typ == 'A' else 2):
            a(f"v_mov_b32 v{V_M+2*tt}, v{V_E+24+4*tt}")
            a(f"v_mov_b32 v{V_M+2*tt+1}, v{V_E+24+4*tt+1}")
    def stats_part1(typ):
        if 'S' not in dis: gran_check(typ)
        else: a("s_waitcnt vmcnt(0)")
        L = a.newlabel(P + "_cs2")
        a(f"s_cmp_ge_u32 s{S_WV}, 4"); a(f"s_cbranch_scc1 {L}")
        for j in range(1, 10):
            a(f"v_add_f32 v{V_E+32}, v{V_E+32}, v{V_E+32+2*j}")
        a(f"v_lshlrev_b32 v{V_TMP+8}, 2, v0")
        a(f"ds_write_b32 v{V_TMP+8}, v{V_E+32} offset:{CS}")
        a.label(L)

    a("s_cmp_ge_u32 s2, 256")
    a(f"s_cbranch_scc1 {P}_END")
    a("s_load_dwordx4 s[4:7], s[0:1], 0")
    a("s_load_dwordx4 s[8:11], s[0:1], 16")
    a("s_load_dwordx4 s[12:15], s[0:1], 40")
    a(f"s_load_dwordx2 s[{S_PTR+8}:{S_PTR+9}], s[0:1], 56")
    a(f"s_load_dwordx4 s[{S_T}:{S_T+3}], s[0:1], 80")
    if timing: a(f"s_memtime s[{S_T0}:{S_T0+1}]")
    if timing: a("s_memrealtime s[98:99]")
    a(f"v_and_b32 v{V_L}, 63, v0")
    a(f"v_lshrrev_b32 v{V_TMP}, 6, v0")
    a(f"v_and_b32 v{V_T31}, 31, v0")
    a(f"v_readfirstlane_b32 s{S_WV}, v{V_TMP}")
    a(f"v_bfe_u32 v{V_HF}, v0, 5, 1")
    a(f"s_and_b32 s{S_T+4}, s2, 7")
    a(f"s_lshr_b32 s{S_T+5}, s2, 3")
    a(f"s_and_b32 s{S_T+6}, s{S_T+4}, 1")
    a(f"s_lshl_b32 s{S_T+6}, s{S_T+6}, 3")
    a(f"s_and_b32 s{S_T+7}, s{S_T+5}, 7")
    a(f"s_add_u32 s{S_MT}, s{S_T+6}, s{S_T+7}")
    a(f"s_lshr_b32 s{S_T+4}, s{S_T+4}, 1")
    a(f"s_lshl_b32 s{S_T+4}, s{S_T+4}, 2")
    a(f"s_lshr_b32 s{S_T+5}, s{S_T+5}, 3")
    a(f"s_add_u32 s{S_ROLE}, s{S_T+4}, s{S_T+5}")
    a(f"s_lshr_b32 s{S_GI}, s{S_ROLE}, 1")
    a(f"s_and_b32 s{S_M2}, s{S_ROLE}, 1")
    a(f"s_sub_u32 s{S_SIG}, s{S_MT}, 10")
    a(f"s_cmp_lt_u32 s{S_MT}, 10")
    a(f"s_cselect_b32 s{S_SIG}, s{S_MT}, s{S_SIG}")
    if 'R' in dis: a(f"s_mov_b32 s{S_SIG}, 0")
    if 'H' in dis:
        a(f"s_and_b32 s{S_SIG}, s{S_MT}, 1"); a(f"s_mul_i32 s{S_SIG}, s{S_SIG}, 5")
    a(f"s_lshl_b32 s{S_XSO}, s{S_SIG}, 7")
    V_ROW, V_S8 = V_TMP + 1, V_TMP + 4
    a(f"v_lshrrev_b32 v{V_TMP}, 3, v{V_L}")
    a(f"s_lshl_b32 s{S_T+4}, s{S_WV}, 3")
    a(f"v_add_u32 v{V_ROW}, s{S_T+4}, v{V_TMP}")
    a(f"v_bfe_u32 v{V_TMP+2}, v{V_ROW}, 1, 3")
    a(f"v_and_b32 v{V_TMP+3}, 7, v{V_L}")
    a(f"v_xor_b32 v{V_TMP+2}, v{V_TMP+2}, v{V_TMP+3}")
    a(f"v_and_b32 v{V_TMP+8}, 3, v{V_TMP+2}")
    a(f"v_lshrrev_b32 v{V_TMP+2}, 2, v{V_TMP+2}")
    a(f"v_lshl_add_u32 v{V_TMP+2}, v{V_TMP+8}, 1, v{V_TMP+2}")
    a(f"v_mul_u32_u24 v{V_XV}, 1280, v{V_ROW}")
    a(f"v_lshl_add_u32 v{V_XV}, v{V_TMP+2}, 4, v{V_XV}")
    a(f"v_bfe_u32 v{V_S8}, v{V_L}, 4, 1")
    a(f"v_lshlrev_b32 v{V_S8}, 2, v{V_S8}")
    a(f"v_xor_b32 v{V_S8}, v{V_S8}, v{V_TMP+3}")
    a(f"s_lshl_b32 s{S_M0X}, s{S_WV}, 10")
    a(f"s_add_u32 s{S_M0W}, s{S_M0X}, {WOFF}")
    a(f"s_mov_b32 s{S_XRD}, {XOFF}"); a(f"s_mov_b32 s{S_WRD}, 0")
    a(f"s_mul_i32 s{S_T+4}, s{S_MT}, 163840")
    a(f"s_lshl_b32 s{S_T+5}, s{S_ROLE}, 3")
    a(f"s_add_u32 s{S_T+5}, s{S_T+5}, s{S_WV}")
    a(f"s_mul_i32 s{S_T+5}, s{S_T+5}, 1280")
    a(f"v_lshlrev_b32 v{V_M+6}, 4, v{V_L}")
    a(f"v_add_u32 v{V_TMP+8}, 1024, v{V_M+6}")
    a(f"v_cmp_gt_u32 vcc, 16, v{V_L}")
    a(f"v_mov_b32 v{V_TMP+7}, 0x7f000000")
    a("s_waitcnt lgkmcnt(0)")
    pst(32)
    a.srd_off(S_X, 4, 5, f"s{S_T+4}", 163840)
    a(f"v_cndmask_b32 v{V_M+7}, v{V_TMP+7}, v{V_TMP+8}, vcc")
    a(f"s_mov_b64 s[{S_PTR}:{S_PTR+1}], s[{S_T+2}:{S_T+3}]")
    a(f"s_mov_b64 s[{S_PTR+2}:{S_PTR+3}], s[{S_T}:{S_T+1}]")
    a(f"s_mov_b32 s{S_RSO}, s{S_T+5}")
    a(f"s_cmp_eq_u32 s2, 70"); a(f"s_cselect_b32 s{S_NM}, 1, 0")
    a(f"s_cmp_eq_u32 s{S_WV}, 7"); a(f"s_cselect_b32 s{S_NM}, s{S_NM}, 0")
    a(f"s_cmp_eq_u32 s{S_NM}, 0")
    a(f"s_cbranch_scc1 {P}_NM0")
    a(f"v_mov_b32 v{V_TMP+8}, {EPOCH_OFF}")
    a(f"global_load_dword v{V_NON}, v{V_TMP+8}, s[{S_PTR}:{S_PTR+1}] sc1")
    a.label(P + "_NM0")
    a(f"buffer_load_dwordx4 {vr(V_E+64,4)}, v{V_M+6}, s[{S_X}:{S_X+3}], s{S_RSO} offen")
    a(f"buffer_load_dwordx4 {vr(V_E+68,4)}, v{V_M+7}, s[{S_X}:{S_X+3}], s{S_RSO} offen")
    dma_x_now(0)
    pst(33)
    a(f"s_mov_b64 s[{S_PTR+4}:{S_PTR+5}], s[8:9]")
    a(f"s_mov_b64 s[{S_PTR+6}:{S_PTR+7}], s[14:15]")
    a(f"s_mov_b64 s[{S_PTR+10}:{S_PTR+11}], s[10:11]")
    a(f"s_cmp_eq_u32 s{S_M2}, 1")
    a(f"s_cbranch_scc1 {P}_B")

    V_U, V_ROW0, V_RSW = V_M + 0, V_M + 1, V_M + 2
    def common_setup():
        a(f"v_bfe_u32 v{V_U}, v{V_L}, 4, 1")
        a(f"v_lshlrev_b32 v{V_U}, 2, v{V_U}")
        a(f"v_and_b32 v{V_TMP+8}, 3, v{V_L}")
        a(f"v_add_u32 v{V_U}, v{V_U}, v{V_TMP+8}")
        a(f"v_bfe_u32 v{V_ROW0}, v{V_L}, 2, 2")
        a(f"v_bfe_u32 v{V_RSW}, v{V_L}, 3, 1")
        a(f"v_lshlrev_b32 v{V_RSW}, 2, v{V_RSW}")
        a(f"v_lshl_add_u32 v{V_ROW0}, v{V_HF}, 3, v{V_ROW0}")
    def cs_roles():
        a(f"s_cmp_lt_u32 s{S_MT}, 10")
        a(f"s_cselect_b32 s{S_CSK}, s{S_TQ}, 99")
        a(f"s_cselect_b32 s{S_CSPUB}, 1, 0")
        a(f"s_cselect_b32 s{S_C2W}, 1, 0")
        a(f"s_cmp_lt_u32 s{S_WV}, 4"); a(f"s_cselect_b32 s{S_C2W}, s{S_C2W}, 0")
        a(f"v_mov_b32 v{V_ONES+1}, 0")
    def after_setup():
        pst(35)
        prologue_w2()
        for i in range(4): a(f"v_mov_b32 v{V_M+4+i}, {hex(ONES2)}")
        pst(36)
        a("s_waitcnt vmcnt(12)")
        xrow_stats()
        a("s_waitcnt vmcnt(6)")
        pst(37)
        L = a.newlabel(P + "_nm")
        a(f"s_cmp_eq_u32 s{S_NM}, 0")
        a(f"s_cbranch_scc1 {L}")
        a(f"v_add_u32 v{V_NON}, 1, v{V_NON}")
        a(f"v_max_u32 v{V_NON}, 1, v{V_NON}")
        a(f"v_mov_b32 v{V_TMP+7}, 0")
        a(f"v_mov_b32 v{V_TMP+8}, {EPOCH_OFF}")
        a("s_mov_b64 exec, 1")
        a(f"global_store_dword v{V_TMP+7}, v{V_NON}, s[{S_PTR+2}:{S_PTR+3}] sc0 sc1")
        a(f"global_store_dword v{V_TMP+8}, v{V_NON}, s[{S_PTR}:{S_PTR+1}] sc0 sc1")
        a("s_mov_b64 exec, -1")
        a.label(L)

    a(f"s_lshr_b32 s{S_HP}, s{S_WV}, 2")
    a(f"s_and_b32 s{S_TQ}, s{S_WV}, 3")
    for p in range(4):
        a.srd(S_W0 + 4 * p, 6, 7, 640 * 3840)
        a(f"s_mov_b32 s{S_WSTEP+p}, {64*3840}")
    a(f"s_mul_i32 s{S_T}, s{S_GI}, 160")
    a(f"s_lshl_b32 s{S_T+1}, s{S_GI}, 7")
    a(f"v_mul_u32_u24 v{V_TMP+5}, 3840, v{V_ROW}")
    a(f"v_lshl_add_u32 v{V_TMP+6}, v{V_S8}, 4, v{V_TMP+5}")
    a(f"s_add_u32 s{S_T+2}, s{S_T}, 1280")
    a(f"v_add_u32 v{V_WV}, s{S_T+2}, v{V_TMP+6}")
    a(f"s_add_u32 s{S_T+2}, s{S_T}, {2560+32}")
    a(f"v_add_u32 v{V_WV+2}, s{S_T+2}, v{V_TMP+6}")
    a(f"v_add_u32 v{V_WV+3}, s{S_T+1}, v{V_TMP+6}")
    a(f"v_and_b32 v{V_TMP+7}, 1, v{V_S8}")
    a(f"v_lshl_add_u32 v{V_TMP+7}, v{V_TMP+7}, 4, v{V_TMP+5}")
    a(f"v_mov_b32 v{V_TMP+8}, 2560")
    a(f"v_mov_b32 v{V_TMP+9}, {1280+128}")
    a(f"v_cmp_gt_u32 vcc, 4, v{V_S8}")
    a("s_nop 1")
    a(f"v_cndmask_b32 v{V_TMP+8}, v{V_TMP+8}, v{V_TMP+9}, vcc")
    a(f"v_add3_u32 v{V_WV+1}, v{V_TMP+7}, v{V_TMP+8}, s{S_T}")
    prologue_w()
    pst(34)
    a(f"s_mul_i32 s{S_T}, s{S_GI}, 3200")
    a.srd_off(S_WS, S_PTR + 4, S_PTR + 5, f"s{S_T}", 3200)
    common_setup()
    a(f"v_and_b32 v{V_TMP+1}, 3, v{V_U}")
    a(f"v_lshlrev_b32 v{V_TMP+1}, 3, v{V_TMP+1}")
    a(f"v_cmp_lt_u32 vcc, 3, v{V_U}")
    for T in range(4):
        cs = []
        for hp in (0, 1):
            TT = T if T < len(TILES[hp]) else 0
            ent = []
            for u in range(8):
                q, hf = u >> 1, u & 1
                c, hi = tile_quad(hp, TT, q, hf)
                ent.append((SLOT_A[c] << 1) | hi)
            cs.append((sum(ent[s] << (8 * s) for s in range(4)), sum(ent[4 + s] << (8 * s) for s in range(4))))
        a(f"s_cmp_eq_u32 s{S_HP}, 0")
        a(f"s_mov_b32 s{S_T+2}, {hex(cs[1][0])}")
        a(f"s_cselect_b32 s{S_T+2}, {hex(cs[0][0])}, s{S_T+2}")
        a(f"s_mov_b32 s{S_T+3}, {hex(cs[1][1])}")
        a(f"s_cselect_b32 s{S_T+3}, {hex(cs[0][1])}, s{S_T+3}")
        a(f"v_mov_b32 v{V_TMP+2}, s{S_T+2}")
        a(f"v_mov_b32 v{V_TMP+3}, s{S_T+3}")
        a(f"v_cndmask_b32 v{V_TMP+2}, v{V_TMP+2}, v{V_TMP+3}, vcc")
        a(f"v_lshrrev_b32 v{V_TMP+2}, v{V_TMP+1}, v{V_TMP+2}")
        a(f"v_and_b32 v{V_TMP+3}, 1, v{V_TMP+2}")
        a(f"v_bfe_u32 v{V_TMP+4}, v{V_TMP+2}, 1, 3")
        a(f"v_bfe_u32 v{V_TMP+5}, v{V_TMP+2}, 4, 2")
        a(f"v_xor_b32 v{V_TMP+4}, v{V_TMP+4}, v{V_RSW}")
        a(f"v_lshlrev_b32 v{V_TMP+4}, 4, v{V_TMP+4}")
        a(f"v_lshl_add_u32 v{V_TMP+4}, v{V_TMP+3}, 3, v{V_TMP+4}")
        a(f"v_lshl_add_u32 v{V_TMP+4}, v{V_TMP+5}, 13, v{V_TMP+4}")
        a(f"v_lshl_add_u32 v{V_TMP+4}, v{V_ROW0}, 7, v{V_TMP+4}")
        a(f"v_add_u32 v{V_WB+T}, {WOFF}, v{V_TMP+4}")
    def x_addr(tts, rowbase_sgpr_shift, sg):
        a(f"v_bfe_u32 v{V_TMP+1}, v{V_T31}, 1, 3")
        a(f"v_lshlrev_b32 v{V_TMP+2}, 2, v{V_HF}")
        a(f"v_xor_b32 v{V_TMP+1}, v{V_TMP+1}, v{V_TMP+2}")
        a(f"s_lshl_b32 s{S_T}, s{sg}, {rowbase_sgpr_shift}")
        for tt in range(tts):
            a(f"v_add_u32 v{V_TMP+2}, s{S_T}, v{V_T31}")
            if tt: a(f"v_add_u32 v{V_TMP+2}, {32*tt}, v{V_TMP+2}")
            a(f"v_lshlrev_b32 v{V_TMP+2}, 7, v{V_TMP+2}")
            a(f"v_lshl_add_u32 v{V_XA+tt}, v{V_TMP+1}, 4, v{V_TMP+2}")
    x_addr(1, 5, S_TQ)
    cs_roles()
    a(f"v_lshlrev_b32 v{V_TMP+1}, 2, v0")
    a(f"v_mov_b32 v{V_TMP+2}, 0")
    a(f"v_cmp_gt_u32 vcc, 320, v0")
    a(f"s_and_saveexec_b64 s[{S_T+6}:{S_T+7}], vcc")
    a(f"ds_write_b32 v{V_TMP+1}, v{V_TMP+2} offset:{ZERO}")
    a(f"s_mov_b64 exec, s[{S_T+6}:{S_T+7}]")
    after_setup()
    def trailA():
        a(f"v_lshlrev_b32 v{V_TMP+8}, 4, v0")
        a(f"buffer_load_dwordx4 {vr(V_E+76,4)}, v{V_TMP+8}, s[{S_WS}:{S_WS+3}], 0 offen")
    V_MN, V_RS, V_C = V_MN0, V_RS0, V_M + 2
    CSR = V_E
    A2 = V_E + 48
    V_VPA, V_PHA, V_QA, V_A2A, V_CSA = V_M + 3, V_M + 4, V_M + 5, V_M + 6, V_M + 7
    def wphi_lds():
        a(f"v_lshlrev_b32 v{V_TMP+8}, 4, v0")
        a(f"v_cmp_gt_u32 vcc, 200, v0")
        a(f"s_and_saveexec_b64 s[{S_T+6}:{S_T+7}], vcc")
        a(f"ds_write_b128 v{V_TMP+8}, {vr(V_E+76,4)} offset:{WPHI}")
        a(f"s_mov_b64 exec, s[{S_T+6}:{S_T+7}]")
    def a_addr():
        T0 = V_TMP + 2
        a(f"v_bfe_u32 v{T0}, v{V_L}, 4, 1")
        a(f"v_lshlrev_b32 v{T0}, 2, v{T0}")
        a(f"v_and_b32 v{T0+1}, 3, v{V_L}")
        a(f"v_add_u32 v{T0}, v{T0}, v{T0+1}")
        a(f"v_and_b32 v{T0+1}, 1, v{T0}")
        a(f"v_lshrrev_b32 v{T0}, 1, v{T0}")
        a(f"v_bfe_u32 v{T0+2}, v{V_L}, 2, 2")
        a(f"v_mul_u32_u24 v{T0+2}, 40, v{T0+2}")
        a(f"v_lshl_add_u32 v{T0+2}, v{T0}, 3, v{T0+2}")
        a(f"s_mul_i32 s{S_T}, s{S_HP}, 1600")
        a(f"v_mul_u32_u24 v{T0+3}, 800, v{T0+1}")
        a(f"v_add3_u32 v{T0+2}, v{T0+2}, v{T0+3}, s{S_T}")
        a(f"v_add_u32 v{T0+2}, {WPHI}, v{T0+2}")
        a(f"v_mov_b32 v{T0+3}, {ZERO}")
        a(f"v_cmp_eq_u32 vcc, v{T0+1}, v{V_HF}")
        a(f"s_mul_i32 s{S_T}, s{S_HP}, 512")
        a(f"v_lshl_add_u32 v{V_CSA}, v{V_HF}, 4, s{S_T}")
        a(f"v_cndmask_b32 v{V_A2A}, v{T0+3}, v{T0+2}, vcc")
        a(f"v_lshrrev_b32 v{T0}, 7, v{V_XA}")
        a(f"s_lshl_b32 s{S_T}, s{S_HP}, 1")
        a(f"v_add_u32 v{T0+1}, s{S_T}, v{V_HF}")
        a(f"v_mul_u32_u24 v{V_VPA}, 192, v{T0}")
        a(f"v_mad_u32_u24 v{V_VPA}, v{T0+1}, 48, v{V_VPA}")
        a(f"v_add_u32 v{V_VPA}, {VP}, v{V_VPA}")
        a(f"v_mul_u32_u24 v{V_PHA}, 320, v{T0}")
        a(f"v_mul_u32_u24 v{T0+2}, 80, v{T0+1}")
        a(f"v_add_u32 v{V_PHA}, v{V_PHA}, v{T0+2}")
        a(f"s_lshl_b32 s{S_T}, s{S_MT}, 2")
        a(f"s_add_u32 s{S_T}, s{S_T}, s{S_TQ}")
        a(f"s_mul_i32 s{S_T}, s{S_T}, 80")
        a(f"s_lshl_b32 s{S_T+1}, s{S_GI}, 3")
        a(f"s_add_u32 s{S_T}, s{S_T}, s{S_T+1}")
        a(f"s_lshl_b32 s{S_T}, s{S_T}, 9")
        a(f"v_lshl_add_u32 v{V_QA}, v{V_T31}, 4, s{S_T}")
    def a_h91():
        stats_part1('A')
    def a_post9():
        for T in range(3):
            for q in range(4):
                a(f"ds_read_b128 {vr(CSR+16*T+4*q,4)}, v{V_CSA} offset:{CS+T*128+q*32}")
        for xy in range(2):
            for s_ in range(3):
                for rd in range(2):
                    a(f"ds_read_b64_tr_b16 {vr(A2+(xy*3+s_)*4+2*rd,2)}, v{V_A2A} offset:{s_*320+rd*160+xy*32}")
    hooksA = {(2, 3): wphi_lds, (5, 3): a_addr, (9, 1): a_h91, 'post9': a_post9}
    a(f"s_cmp_lg_u32 s{S_HP}, 0")
    a(f"s_cbranch_scc1 {P}A_H1")
    run_main('A', 4, P + "A0", trailA, hooksA)
    a(f"s_branch {P}A_EPI")
    a.label(P + "A_H1")
    run_main('A', 3, P + "A1", trailA, hooksA)
    a.label(P + "A_EPI")
    stamp("A main loop end")
    def qregs(lg):
        T, p = where(0, lg)
        return [acc(T) + 4 * p + r for r in range(4)]
    def cs_of(r): return CSR + (r - V_ACC)
    kv_ = sum([qregs(('k', i)) for i in range(5)], [])
    vv = sum([qregs(('v', i)) for i in range(5)], [])
    a("s_nop 7"); a("s_nop 3")
    for r in kv_: a(f"v_fmac_f32 v{r}, v{cs_of(r)}, v{V_MN}")
    KF = V_XF
    for p in range(10):
        a(f"v_cvt_pk_bf16_f32 v{KF+p}, v{kv_[2*p]}, v{kv_[2*p+1]}")
    a(f"v_mov_b32 v{KF+10}, 0"); a(f"v_mov_b32 v{KF+11}, 0")
    a(f"v_mul_f32 v{V_C}, {hex(LOG2E)}, v{V_RS}")
    PX, PY = V_XF + 24, V_XF + 40
    a("s_nop 0")
    for xy, PP in ((0, PX), (1, PY)):
        for s_ in range(3):
            c = "0" if s_ == 0 else vr(PP, 16)
            a(f"v_mfma_f32_32x32x16_bf16 {vr(PP,16)}, {vr(A2+(xy*3+s_)*4,4)}, {vr(KF+4*s_,4)}, {c}")
    CL3 = V_XF + 56
    for q in range(4):
        a(f"ds_read_b128 {vr(CL3+4*q,4)}, v{V_CSA} offset:{CS+3*128+q*32}")
    a.srd_off(S_WS, S_PTR, S_PTR + 1, QBUF_OFF, QBUF_BYTES)
    def store_light(src, csr, addr, pk):
        for p in range(4):
            for e in range(2):
                r = src + 2 * p + e
                a(f"v_fmac_f32 v{r}, v{csr+2*p+e}, v{V_MN}")
                a(f"v_mul_f32 v{r}, v{r}, v{V_RS}")
            a(f"v_cvt_pk_bf16_f32 v{pk+p}, v{src+2*p}, v{src+2*p+1}")
        a(f"buffer_store_dwordx4 {vr(pk,4)}, v{addr}, s[{S_WS}:{S_WS+3}], 0 offen{OSC}")
    l00, l01 = LIGHTS[0][0][0][1], LIGHTS[0][0][1][1]; l10, l11 = LIGHTS[1][0][0][1], LIGHTS[1][0][1][1]
    assert l01 - l00 == l11 - l10
    a(f"s_cmp_eq_u32 s{S_HP}, 0")
    a(f"s_mov_b32 s{S_T}, {l10*512}")
    a(f"s_cselect_b32 s{S_T}, {l00*512}, s{S_T}")
    a(f"v_mul_u32_u24 v{V_TMP+5}, {(l01-l00)*512}, v{V_HF}")
    a(f"v_add3_u32 v{V_TMP+5}, v{V_TMP+5}, v{V_QA}, s{S_T}")
    store_light(acc(0), CSR, V_TMP + 5, A2)
    a(f"s_cmp_lg_u32 s{S_HP}, 0")
    a(f"s_cbranch_scc1 {P}A_noT3")
    (m0, m1), (n0, n1) = LIGHTS[0][1], LIGHTS[0][2]
    a(f"v_mul_u32_u24 v{V_TMP+5}, {(m1[1]-m0[1])*512}, v{V_HF}")
    a(f"v_add_u32 v{V_TMP+5}, v{V_TMP+5}, v{V_QA}")
    a(f"v_add_u32 v{V_TMP+6}, {n0[1]*512}, v{V_TMP+5}")
    assert n1[1] - n0[1] == m1[1] - m0[1]
    if m0[1]: a(f"v_add_u32 v{V_TMP+5}, {m0[1]*512}, v{V_TMP+5}")
    a("s_waitcnt lgkmcnt(0)")
    store_light(acc(3), CL3, V_TMP + 5, A2 + 4)
    store_light(acc(3) + 8, CL3 + 8, V_TMP + 6, A2 + 8)
    a.label(P + "A_noT3")
    a("s_barrier")
    VPK = V_XF + 12
    for p in range(10):
        for e in range(2):
            r = vv[2 * p + e]
            a(f"v_fmac_f32 v{r}, v{cs_of(r)}, v{V_MN}")
            a(f"v_mul_f32 v{r}, v{r}, v{V_RS}")
        a(f"v_cvt_pk_bf16_f32 v{VPK+p}, v{vv[2*p]}, v{vv[2*p+1]}")
    a(f"v_mov_b32 v{VPK+10}, 0x3f80")
    a(f"v_mov_b32 v{VPK+11}, 0")
    for j in range(3):
        a(f"ds_write_b128 v{V_VPA}, {vr(VPK+4*j,4)} offset:{16*j}")
    stamp("A before softmax")
    p_ = [PX + i for i in range(16)] + [PY + i for i in range(4)]
    EP = CSR; EM = CSR + 20
    PH = V_XF
    softmax20(a, p_, V_C, EP, EM, PH, V_TMP)
    for j in range(5):
        a(f"ds_write_b128 v{V_PHA}, {vr(PH+4*j,4)} offset:{PHI+16*j}")
    stamp("A after softmax")
    a(f"v_mov_b32 v{V_TMP+4}, 0")
    a(f"global_load_dword v{V_TMP+5}, v{V_TMP+4}, s[{S_PTR+2}:{S_PTR+3}] offset:128 sc1")
    a(f"s_lshr_b32 s{S_T}, s{S_WV}, 1")
    a(f"s_and_b32 s{S_T+1}, s{S_WV}, 1")
    W0 = acc(1)
    V_MNL, V_RSL, V_QAL = V_MN, V_RS, V_QA
    a(f"v_bfe_u32 v{W0}, v{V_L}, 2, 2")
    a(f"v_lshl_add_u32 v{W0}, v{V_HF}, 3, v{W0}")
    a(f"v_bfe_u32 v{W0+1}, v{V_L}, 4, 1")
    a(f"v_lshlrev_b32 v{W0+1}, 2, v{W0+1}")
    a(f"v_and_b32 v{W0+2}, 3, v{V_L}")
    a(f"v_add_u32 v{W0+1}, v{W0+1}, v{W0+2}")
    a(f"s_mul_i32 s{S_T+2}, s{S_T}, 48")
    a(f"s_add_u32 s{S_T+2}, s{S_T+2}, {VP}")
    a(f"v_mul_u32_u24 v{W0+2}, 192, v{W0}")
    a(f"v_lshl_add_u32 v{W0+2}, v{W0+1}, 3, v{W0+2}")
    a(f"v_add_u32 v{W0+2}, s{S_T+2}, v{W0+2}")
    a(f"s_mul_i32 s{S_T+2}, s{S_T}, 80")
    a(f"s_lshl_b32 s{S_T+3}, s{S_T+1}, 6")
    a(f"s_add_u32 s{S_T+2}, s{S_T+2}, s{S_T+3}")
    a(f"v_mul_u32_u24 v{W0+3}, 320, v{W0}")
    a(f"v_lshl_add_u32 v{W0+3}, v{W0+1}, 3, v{W0+3}")
    a(f"v_add_u32 v{W0+3}, s{S_T+2}, v{W0+3}")
    a.srd_off(S_WS, S_PTR, S_PTR + 1, KVS_OFF, KVS_BYTES)
    a(f"s_lshl_b32 s{S_T+2}, s{S_GI}, 2")
    a(f"s_add_u32 s{S_T+2}, s{S_T+2}, s{S_T}")
    a(f"s_mul_i32 s{S_T+2}, s{S_T+2}, 3360")
    a(f"s_lshl_b32 s{S_T+3}, s{S_T+1}, 7")
    a(f"s_add_u32 s{S_T+2}, s{S_T+2}, s{S_T+3}")
    a(f"v_mul_u32_u24 v{W0}, 640, v{V_HF}")
    a(f"v_lshl_add_u32 v{W0}, v{V_T31}, 2, v{W0}")
    a(f"v_add_u32 v{W0}, s{S_T+2}, v{W0}")
    a("s_waitcnt lgkmcnt(0)")
    a("s_barrier")
    stamp("A phi barrier")
    KA, KB = V_XF, V_XF + 32
    for kk in range(8):
        for rd in range(2):
            a(f"ds_read_b64_tr_b16 {vr(KA+4*kk+2*rd,2)}, v{W0+2} offset:{kk*3072+rd*768}")
            a(f"ds_read_b64_tr_b16 {vr(KB+4*kk+2*rd,2)}, v{W0+3} offset:{PHI+kk*5120+rd*1280}")
    KVD = V_E
    for kk in range(8):
        a(f"s_waitcnt lgkmcnt({min(15, 4*(7-kk))})")
        c = "0" if kk == 0 else vr(KVD, 16)
        a(f"v_mfma_f32_32x32x16_bf16 {vr(KVD,16)}, {vr(KA+4*kk,4)}, {vr(KB+4*kk,4)}, {c}")
    stamp("A kv mfma issued")
    a(f"s_mov_b32 s{S_T+5}, 0")
    a.label(P + "A_POLL")
    a("s_waitcnt vmcnt(0)")
    a(f"s_add_u32 s{S_T+5}, s{S_T+5}, 1")
    a(f"s_cmp_gt_u32 s{S_T+5}, 4000")
    a(f"s_cbranch_scc1 {P}A_GO")
    a(f"v_readfirstlane_b32 s{S_T+4}, v{V_TMP+5}")
    a(f"s_cmp_ge_u32 s{S_T+4}, 14")
    a(f"s_cbranch_scc1 {P}A_GO")
    a("s_sleep 2")
    a(f"global_load_dword v{V_TMP+5}, v{V_TMP+4}, s[{S_PTR+2}:{S_PTR+3}] offset:128 sc1")
    a(f"s_branch {P}A_POLL")
    a.label(P + "A_GO")
    a(f"s_cmp_eq_u32 s{S_T+1}, 0")
    a(f"s_cselect_b32 s{S_T+4}, 32, 8")
    a(f"v_cmp_gt_u32 vcc, s{S_T+4}, v{V_T31}")
    a(f"s_and_b64 exec, exec, vcc")
    a("s_nop 7"); a("s_nop 3")
    for q in range(2):
        for r in range(4):
            a(f"buffer_atomic_add_f32 v{KVD+4*q+r}, v{W0}, s[{S_WS}:{S_WS+3}], 0 offen offset:{(8*q+r)*160}")
    a(f"buffer_atomic_add_f32 v{KVD+8}, v{W0}, s[{S_WS}:{S_WS+3}], 0 offen offset:{16*160}")
    a(f"v_cmp_eq_u32 vcc, 0, v{V_HF}")
    a(f"s_and_b64 exec, exec, vcc")
    for r in range(1, 4):
        a(f"buffer_atomic_add_f32 v{KVD+8+r}, v{W0}, s[{S_WS}:{S_WS+3}], 0 offen offset:{(16+r)*160}")
    a("s_mov_b64 exec, -1")
    stamp("A atomics issued")
    a(f"s_branch {P}_DONE")

    a.label(P + "_B")
    a(f"s_and_b32 s{S_HP}, s{S_WV}, 3")
    a(f"s_lshr_b32 s{S_TQ}, s{S_WV}, 2")
    a(f"s_lshl_b32 s{S_T}, s{S_GI}, 2")
    a(f"s_sub_u32 s{S_T+1}, s{S_GI}, 5")
    a(f"s_max_i32 s{S_T+1}, s{S_T+1}, 0")
    a(f"s_sub_u32 s{S_N}, s{S_T}, s{S_T+1}")
    a(f"s_cmp_lt_u32 s{S_GI}, 5")
    a(f"s_cselect_b32 s{S_CNT}, 4, 3")
    for p in range(4):
        a(f"s_cmp_lt_u32 {p}, s{S_CNT}")
        a(f"s_cselect_b32 s{S_T}, {p}, 0")
        a(f"s_add_u32 s{S_T}, s{S_T}, s{S_N}")
        a(f"s_add_u32 s{S_T+2}, s{S_T}, 8")
        a(f"s_sub_u32 s{S_T+3}, s{S_T}, 2")
        a(f"s_cmp_lt_u32 s{S_T}, 2")
        a(f"s_cselect_b32 s{S_W0+4*p}, s6, s12")
        a(f"s_cselect_b32 s{S_W0+4*p+1}, s7, s13")
        a(f"s_mov_b32 s{S_W0+4*p+2}, {640*3456}")
        a(f"s_cselect_b32 s{S_W0+4*p+2}, {640*3840}, s{S_W0+4*p+2}")
        a(f"s_mov_b32 s{S_W0+4*p+3}, 0x00020000")
        a(f"s_mov_b32 s{S_T+1}, 3456")
        a(f"s_cselect_b32 s{S_T+1}, 3840, s{S_T+1}")
        a(f"s_cselect_b32 s{S_T+2}, s{S_T+2}, s{S_T+3}")
        a(f"s_and_b32 s{S_W0+4*p+1}, s{S_W0+4*p+1}, 0xffff")
        a(f"s_lshl_b32 s{S_WSTEP+p}, s{S_T+1}, 6")
        a(f"s_lshl_b32 s{S_T+2}, s{S_T+2}, 7")
        a(f"v_mul_lo_u32 v{V_TMP+5}, v{V_ROW}, s{S_T+1}")
        a(f"v_lshl_add_u32 v{V_TMP+5}, v{V_S8}, 4, v{V_TMP+5}")
        a(f"v_add_u32 v{V_WV+p}, s{S_T+2}, v{V_TMP+5}")
    prologue_w()
    a(f"s_add_u32 s{S_N}, s{S_N}, s{S_HP}")
    common_setup()
    a(f"v_and_b32 v{V_TMP+1}, 1, v{V_U}")
    a(f"v_bfe_u32 v{V_TMP+2}, v{V_U}, 1, 1")
    a(f"v_bfe_u32 v{V_TMP+3}, v{V_U}, 2, 1")
    a(f"v_lshl_add_u32 v{V_TMP+1}, v{V_TMP+3}, 1, v{V_TMP+1}")
    a(f"s_lshl_b32 s{S_T}, s{S_HP}, 13")
    a(f"s_add_u32 s{S_T}, s{S_T}, {WOFF}")
    for T in range(2):
        a(f"v_add_u32 v{V_TMP+4}, {4*T}, v{V_TMP+1}")
        a(f"v_xor_b32 v{V_TMP+4}, v{V_TMP+4}, v{V_RSW}")
        a(f"v_lshlrev_b32 v{V_TMP+4}, 4, v{V_TMP+4}")
        a(f"v_lshl_add_u32 v{V_TMP+4}, v{V_TMP+2}, 3, v{V_TMP+4}")
        a(f"v_lshl_add_u32 v{V_TMP+4}, v{V_ROW0}, 7, v{V_TMP+4}")
        a(f"v_add_u32 v{V_WB+T}, s{S_T}, v{V_TMP+4}")
    x_addr(2, 6, S_TQ)
    cs_roles()
    a(f"s_lshl_b32 s{S_B}, s{S_MT}, 3")
    a(f"s_add_u32 s{S_B}, s{S_B}, s{S_GI}")
    after_setup()
    a(f"s_cmp_lt_u32 s{S_B}, 14")
    a(f"s_cselect_b32 s{S_ZW}, 1, 0")
    a(f"s_cmp_eq_u32 s{S_WV}, 2")
    a(f"s_cselect_b32 s{S_ZFW}, s{S_ZW}, 0")
    def trailB():
        a(f"buffer_load_dword v{V_ONES}, v{V_ONES+1}, s[{S_X}:{S_X+3}], 0 offen")
    CSR = V_E
    def b_post9():
        a(f"s_mul_i32 s{S_T}, s{S_HP}, 256")
        a(f"v_lshl_add_u32 v{V_TMP+8}, v{V_HF}, 4, s{S_T}")
        for T in range(2):
            for q in range(4):
                a(f"ds_read_b128 {vr(CSR+16*T+4*q,4)}, v{V_TMP+8} offset:{CS+T*128+q*32}")
    run_main('B', 2, P + "B", trailB, {(9, 1): lambda: stats_part1('B'), 'post9': b_post9})
    stamp("B main loop end")
    prep_finish()
    stamp("B prep done")
    a(f"s_cmp_ge_u32 s{S_HP}, s{S_CNT}")
    a(f"s_cbranch_scc1 {P}B_EPI_DONE")
    a(f"s_cmp_lt_u32 s{S_N}, 2")
    a(f"s_cbranch_scc1 {P}B_QLINE")
    a(f"s_sub_u32 s{S_T}, s{S_N}, 2")
    BIA = V_E + 52
    a(f"s_lshl_b32 s{S_T+1}, s{S_MT}, 3")
    a(f"s_lshl_b32 s{S_T+2}, s{S_TQ}, 2")
    a(f"s_add_u32 s{S_T+1}, s{S_T+1}, s{S_T+2}")
    a(f"s_mul_i32 s{S_T+1}, s{S_T+1}, {KS}")
    a(f"s_lshl_b32 s{S_T+2}, s{S_T}, 1")
    a(f"s_add_u32 s{S_T+1}, s{S_T+1}, s{S_T+2}")
    a(f"s_lshl_b32 s{S_T+1}, s{S_T+1}, 10")
    a(f"v_lshrrev_b32 v{V_TMP+5}, 4, v{V_T31}")
    a(f"v_mul_u32_u24 v{V_TMP+5}, {KS*1024}, v{V_TMP+5}")
    a(f"v_and_b32 v{V_TMP+6}, 15, v{V_T31}")
    a(f"v_lshl_add_u32 v{V_TMP+6}, v{V_HF}, 4, v{V_TMP+6}")
    a(f"v_lshl_add_u32 v{V_TMP+5}, v{V_TMP+6}, 4, v{V_TMP+5}")
    a(f"v_add_u32 v{V_TMP+5}, s{S_T+1}, v{V_TMP+5}")
    a(f"v_add_u32 v{V_TMP+6}, {2*KS*1024}, v{V_TMP+5}")
    a("s_waitcnt lgkmcnt(0)")
    MR = [(V_MN0, V_RS0), (V_MN1, V_RS1)]
    for tt in range(2):
        for T in range(2):
            A_ = acc(T * 2 + tt)
            for i in range(16):
                a(f"v_fmac_f32 v{A_+i}, v{CSR+16*T+i}, v{MR[tt][0]}")
    BF = V_XF + 20
    for T in range(2):
        for p in range(2):
            for j in range(4):
                src = BIA + (T * 2 + p) * 4 + j
                a(f"v_lshlrev_b32 v{BF+16*T+8*p+2*j}, 16, v{src}")
                a(f"v_and_b32 v{BF+16*T+8*p+2*j+1}, 0xffff0000, v{src}")
    a.srd_off(S_WS, S_PTR, S_PTR + 1, ABUF_OFF, ABUF_BYTES)
    OPK = V_E
    for tt in range(2):
        for T in range(2):
            A_ = acc(T * 2 + tt)
            for i in range(16):
                a(f"v_fma_f32 v{A_+i}, v{A_+i}, v{MR[tt][1]}, v{BF+16*T+i}")
                a(f"v_max_f32 v{A_+i}, 0, v{A_+i}")
                a(f"v_mul_f32 v{A_+i}, v{A_+i}, v{A_+i}")
            for p in range(2):
                o = OPK + ((tt * 2 + T) * 2 + p) * 4
                for j in range(4):
                    a(f"v_cvt_pk_bf16_f32 v{o+j}, v{A_+8*p+2*j}, v{A_+8*p+2*j+1}")
                a(f"buffer_store_dwordx4 {vr(o,4)}, v{V_TMP+5+tt}, s[{S_WS}:{S_WS+3}], 0 offen offset:{T*1024+p*512}{OSC}")
    a(f"s_branch {P}B_EPI_DONE")
    a.label(P + "B_QLINE")
    a.srd_off(S_WS, S_PTR, S_PTR + 1, QBUF_OFF, QBUF_BYTES)
    a(f"s_lshl_b32 s{S_T+1}, s{S_MT}, 2")
    a(f"s_lshl_b32 s{S_T+2}, s{S_TQ}, 1")
    a(f"s_add_u32 s{S_T+1}, s{S_T+1}, s{S_T+2}")
    a(f"s_mul_i32 s{S_T+1}, s{S_T+1}, 80")
    a(f"s_lshl_b32 s{S_T+2}, s{S_N}, 3")
    a(f"s_add_u32 s{S_T+1}, s{S_T+1}, s{S_T+2}")
    a(f"s_add_u32 s{S_T+1}, s{S_T+1}, 64")
    a(f"s_lshl_b32 s{S_T+1}, s{S_T+1}, 9")
    a(f"v_lshlrev_b32 v{V_TMP+5}, 9, v{V_HF}")
    a(f"v_lshl_add_u32 v{V_TMP+5}, v{V_T31}, 4, v{V_TMP+5}")
    a(f"v_add_u32 v{V_TMP+5}, s{S_T+1}, v{V_TMP+5}")
    a(f"v_add_u32 v{V_TMP+6}, {80*512}, v{V_TMP+5}")
    a("s_waitcnt lgkmcnt(0)")
    OPK = V_XF + 20
    for tt in range(2):
        for T in range(2):
            A_ = acc(T * 2 + tt)
            for i in range(16):
                a(f"v_fmac_f32 v{A_+i}, v{CSR+16*T+i}, v{MR[tt][0]}")
                a(f"v_mul_f32 v{A_+i}, v{A_+i}, v{MR[tt][1]}")
            for p in range(2):
                o = OPK + ((tt * 2 + T) * 2 + p) * 4
                for j in range(4):
                    a(f"v_cvt_pk_bf16_f32 v{o+j}, v{A_+8*p+2*j}, v{A_+8*p+2*j+1}")
                a(f"buffer_store_dwordx4 {vr(o,4)}, v{V_TMP+5+tt}, s[{S_WS}:{S_WS+3}], 0 offen offset:{(4*T+2*p)*512}{OSC}")
    a.label(P + "B_EPI_DONE")
    stamp("B epi done")
    a.label(P + "_DONE")
    if fused:
        a("s_mov_b64 exec, -1")
        a(f"v_mov_b32 v{V_TMP}, {159936}")
        a(f"v_mov_b32 v{V_TMP+2}, 0"); a(f"v_mov_b32 v{V_TMP+3}, 0")
        a(f"ds_write_b64 v{V_TMP}, {vr(V_TMP+2,2)}")
        a("s_waitcnt vmcnt(0) lgkmcnt(0)")
        a("s_barrier")
        L = P + "_dn"
        a(f"s_cmp_lg_u32 s{S_WV}, 0"); a(f"s_cbranch_scc1 {L}")
        a(f"s_lshl_b32 s{S_T}, s{S_MT}, 4"); a(f"s_add_u32 s{S_T}, s{S_T}, s{S_ROLE}")
        a(f"s_lshl_b32 s{S_T}, s{S_T}, 2"); a(f"s_add_u32 s{S_T}, s{S_T}, {DONE_OFF}")
        tag_store(S_T)
        a.label(L)
        a(f"s_mov_b32 s59, s100")
        a(f"s_mov_b32 s60, s{S_MT}"); a(f"s_mov_b32 s61, s{S_ROLE}")
        return a.text(), 256, 102, 256, LDS_K1
    if timing:
        a("s_mov_b64 exec, -1")
        a("s_waitcnt vmcnt(0)")
        stamp_n[0] = 15
        stamp("end")
        a("s_memrealtime s[44:45]")
        a("s_waitcnt lgkmcnt(0)")
        a("s_lshl_b32 s46, s2, 7")
        a(f"s_lshl_b32 s47, s{S_WV}, 4")
        a("s_add_u32 s46, s46, s47")
        a(f"s_add_u32 s46, s46, {0x1320000}")
        a("v_mov_b32 v12, s46"); a("v_mov_b32 v14, s98"); a("v_mov_b32 v15, s44")
        a("s_mov_b64 s[44:45], exec"); a("s_mov_b64 exec, 1")
        a(f"global_store_dwordx2 v12, v[14:15], s[{S_PTR}:{S_PTR+1}]")
        a("s_mov_b64 exec, s[44:45]")
        a("s_cmp_eq_u32 s2, 0")
        a(f"s_cselect_b32 s40, {0x1300000}, 0")
        a("s_cmp_eq_u32 s2, 64")
        a(f"s_cselect_b32 s40, {0x1300000+4096}, s40")
        a("s_cmp_eq_u32 s40, 0")
        a(f"s_cbranch_scc1 {P}_END")
        a(f"s_lshl_b32 s41, s{S_WV}, 9")
        a("s_add_u32 s40, s40, s41")
        a(f"v_lshlrev_b32 v13, 2, v{V_L}")
        a("v_add_u32 v13, s40, v13")
        a(f"global_store_dword v13, v{V_STAMP}, s[{S_PTR}:{S_PTR+1}]")
    a.label(P + "_END")
    a("s_endpgm")
    return a.text(), 256, 102, 256, LDS_K1

if __name__ == "__main__":
    import sys
    body, vg, sg, ac, lds = gen_k1(timing=True, dis=sys.argv[2] if len(sys.argv) > 2 else '', SC={'a': ' sc0 sc1', 'b': ' sc1', 'c': '', 'd': ' sc0'}[sys.argv[3] if len(sys.argv) > 3 else 'a'])
    open(sys.argv[1], "w").write(file_text([("k1_kernel", 256, 512, lds)], [("k1_kernel", body, vg, sg, ac)]))
```

```python
from asmlib import *
from layout import *
from common import *

R = 7
STG = 20480
PRIV = R * STG
PW = 6240
LDS_K2 = PRIV + 2 * PW
NSTG = 19

def gen_k2(timing=False, pfx="K2", SC=" sc0 sc1", fused=False, PSTG=0, dis=''):
    a = Asm()
    P = pfx
    S_A, S_B, S_X, S_O, S_B2, S_G = 16, 20, 24, 28, 32, 36
    S_T = 40
    S_WV, S_MT, S_JN, S_W, S_HP, S_TT, S_PB = 48, 49, 50, 51, 52, 53, 54
    S_SA, S_SB, S_LB, S_NON = 56, 57, 58, 59
    S_ROT = 61
    S_T0 = 94
    V_L, V_T, V_G, V_T31, V_HF = 1, 2, 3, 4, 5
    V_A = 6
    V_B0, V_B1 = 10, 11
    V_XO, V_B2O, V_XO4, V_B2O4 = 12, 13, 14, 15
    V_LA = 16
    V_STAMP = 19
    V_TMP = 20
    V_X = 30; V_BB = 40
    V_LB1, V_LB2 = 50, 51
    V_ACC = 52
    V_FR = 72
    V_E = 112
    DA = 20
    LDF = " sc1" if fused else ""
    stamp_n = [0]
    def stamp(name):
        if not timing: return
        i = stamp_n[0]; stamp_n[0] += 1
        a(f"s_memtime s[{S_T0+2}:{S_T0+3}]")
        a("s_waitcnt lgkmcnt(0)")
        a(f"s_sub_u32 s{S_T0+2}, s{S_T0+2}, s{S_T0}")
        a(f"v_writelane_b32 v{V_STAMP}, s{S_T0+2}, {32+i if fused else i}")
    if not fused:
        a("s_cmp_ge_u32 s2, 256")
        a(f"s_cbranch_scc1 {P}_END")
    a("s_load_dwordx2 s[4:5], s[0:1], 0")
    a("s_load_dwordx2 s[6:7], s[0:1], 16")
    a("s_load_dwordx4 s[8:11], s[0:1], 64")
    a("s_load_dwordx4 s[12:15], s[0:1], 80")
    if timing and not fused:
        a(f"s_memtime s[{S_T0}:{S_T0+1}]")
        a("s_memrealtime s[98:99]")
    a(f"v_and_b32 v{V_L}, 63, v0")
    a(f"v_lshrrev_b32 v{V_TMP}, 6, v0")
    a(f"v_and_b32 v{V_T}, 15, v0")
    a(f"v_readfirstlane_b32 s{S_WV}, v{V_TMP}")
    a(f"v_bfe_u32 v{V_G}, v0, 4, 2")
    a(f"v_and_b32 v{V_T31}, 31, v0")
    a(f"v_bfe_u32 v{V_HF}, v0, 5, 1")
    a(f"s_and_b32 s{S_W}, s{S_WV}, 3")
    if fused:
        a("s_lshl_b32 s40, s60, 1")
        a("s_lshr_b32 s41, s61, 3")
        a(f"s_add_u32 s{S_MT}, s40, s41")
        a(f"s_and_b32 s{S_JN}, s61, 7")
    else:
        a("s_and_b32 s40, s2, 7")
        a("s_lshr_b32 s41, s2, 3")
        a("s_lshr_b32 s42, s40, 1")
        a("s_lshl_b32 s42, s42, 3")
        a("s_lshr_b32 s43, s41, 2")
        a(f"s_add_u32 s{S_MT}, s42, s43")
        a("s_and_b32 s40, s40, 1")
        a("s_lshl_b32 s40, s40, 2")
        a("s_and_b32 s41, s41, 3")
        a(f"s_add_u32 s{S_JN}, s40, s41")
        if '1' in dis:
            a(f"s_mov_b32 s{S_MT}, 0"); a(f"s_mov_b32 s{S_JN}, 0")
        if '2' in dis:
            a("s_lshr_b32 s41, s2, 3"); a(f"s_lshr_b32 s{S_MT}, s41, 2"); a(f"s_and_b32 s{S_JN}, s41, 3")
    a(f"s_and_b32 s40, s{S_MT}, 7")
    a("s_mul_i32 s40, s40, 7")
    a(f"s_and_b32 s41, s{S_JN}, 3")
    a("s_mul_i32 s41, s41, 14")
    a("s_add_u32 s40, s40, s41")
    a("s_sub_u32 s41, s40, 54")
    a("s_cmp_lt_u32 s40, 54")
    a(f"s_cselect_b32 s{S_ROT}, s40, s41")
    if 'F' not in dis: a(f"s_mov_b32 s{S_ROT}, 0")
    for key, mul in (('2', 12), ('3', 8), ('4', 16)):
        if 'R' + key in dis:
            a(f"s_add_u32 s40, s{S_MT}, s{S_JN}"); a("s_and_b32 s40, s40, 1"); a(f"s_mul_i32 s{S_ROT}, s40, {mul}")
    if 'Q' in dis:
        a(f"s_and_b32 s40, s{S_MT}, 1"); a(f"s_and_b32 s41, s{S_JN}, 1"); a("s_lshl_b32 s41, s41, 1"); a("s_add_u32 s40, s40, s41"); a(f"s_mul_i32 s{S_ROT}, s40, 8")
    a(f"v_lshlrev_b32 v{V_B0}, 4, v{V_L}")
    a(f"v_add_u32 v{V_B1}, 4096, v{V_B0}")
    a("s_waitcnt lgkmcnt(0)")
    if not fused:
        a(f"s_add_u32 s44, s14, {EPOCH_OFF}")
        a("s_addc_u32 s45, s15, 0")
        a(f"s_load_dword s{S_NON}, s[44:45], 0")
    LFLAG = LDS_K2
    def poll_done(mask, lab, leader, word):
        a(f"s_cmp_lg_u32 s{S_WV}, {leader}")
        a(f"s_cbranch_scc1 {lab}_F")
        a(f"v_add_u32 v{V_TMP}, {DONE_OFF}, v{V_B0}")
        a("s_mov_b32 s42, 0")
        a.label(lab)
        a(f"global_load_dwordx4 {vr(V_TMP+2,4)}, v{V_TMP}, s[14:15] sc1")
        a("s_waitcnt vmcnt(0)")
        first = True
        for e in range(4):
            if mask >> e & 1:
                if first: a(f"v_cmp_ne_u32 vcc, s{S_NON}, v{V_TMP+2+e}"); first = False
                else:
                    a(f"v_cmp_ne_u32 s[44:45], s{S_NON}, v{V_TMP+2+e}")
                    a("s_or_b64 vcc, vcc, s[44:45]")
        a("s_add_u32 s42, s42, 1")
        a("s_cmp_gt_u32 s42, 4000")
        a(f"s_cbranch_scc1 {lab}_OK")
        a(f"s_cbranch_vccz {lab}_OK")
        a("s_sleep 6")
        a(f"s_branch {lab}")
        a.label(lab + "_OK")
        a(f"v_mov_b32 v{V_TMP}, {LFLAG + 4*word}")
        a(f"v_mov_b32 v{V_TMP+1}, 1")
        a(f"ds_write_b32 v{V_TMP}, v{V_TMP+1}")
        a("s_waitcnt lgkmcnt(0)")
        a(f"s_branch {lab}_X")
        a.label(lab + "_F")
        a(f"v_mov_b32 v{V_TMP}, {LFLAG + 4*word}")
        a("s_mov_b32 s42, 0")
        a.label(lab + "_FL")
        a(f"ds_read_b32 v{V_TMP+1}, v{V_TMP}")
        a("s_waitcnt lgkmcnt(0)")
        a(f"v_readfirstlane_b32 s43, v{V_TMP+1}")
        a("s_add_u32 s42, s42, 1")
        a("s_cmp_gt_u32 s42, 2000000")
        a(f"s_cbranch_scc1 {lab}_X")
        a("s_cmp_eq_u32 s43, 1")
        a(f"s_cbranch_scc1 {lab}_X")
        a("s_sleep 1")
        a(f"s_branch {lab}_FL")
        a.label(lab + "_X")
    a(f"s_cmp_ge_u32 s{S_WV}, 4")
    a(f"s_cbranch_scc1 {P}_LOADER")
    a(f"s_lshr_b32 s{S_HP}, s{S_W}, 1")
    a(f"s_and_b32 s{S_TT}, s{S_W}, 1")
    a(f"s_mul_i32 s{S_PB}, s{S_HP}, {PW}")
    a(f"s_add_u32 s{S_PB}, s{S_PB}, {PRIV}")
    def xb_loads():
        a.srd(S_X, 4, 5, 2621440)
        a.srd(S_O, 10, 11, 2621440)
        a.srd(S_B2, 8, 9, 1280)
        a(f"s_lshl_b32 s40, s{S_MT}, 6")
        a(f"s_lshl_b32 s42, s{S_W}, 4")
        a("s_add_u32 s40, s40, s42")
        a(f"v_add_u32 v{V_TMP}, s40, v{V_T}")
        a(f"v_mul_u32_u24 v{V_XO}, 1280, v{V_TMP}")
        a(f"s_mul_i32 s42, s{S_JN}, 160")
        a(f"v_lshl_add_u32 v{V_B2O}, v{V_G}, 4, s42")
        a(f"v_add_u32 v{V_XO}, v{V_XO}, v{V_B2O}")
        a(f"v_lshlrev_b32 v{V_TMP}, 3, v{V_G}")
        a(f"v_sub_u32 v{V_XO4}, v{V_XO}, v{V_TMP}")
        a(f"v_sub_u32 v{V_B2O4}, v{V_B2O}, v{V_TMP}")
        a(f"buffer_load_dwordx4 {vr(V_X,4)}, v{V_XO}, s[{S_X}:{S_X+3}], 0 offen")
        a(f"buffer_load_dwordx4 {vr(V_X+4,4)}, v{V_XO}, s[{S_X}:{S_X+3}], 0 offen offset:64")
        a(f"buffer_load_dwordx2 {vr(V_X+8,2)}, v{V_XO4}, s[{S_X}:{S_X+3}], 0 offen offset:128")
        a(f"buffer_load_dwordx4 {vr(V_BB,4)}, v{V_B2O}, s[{S_B2}:{S_B2+3}], 0 offen")
        a(f"buffer_load_dwordx4 {vr(V_BB+4,4)}, v{V_B2O}, s[{S_B2}:{S_B2+3}], 0 offen offset:64")
        a(f"buffer_load_dwordx2 {vr(V_BB+8,2)}, v{V_B2O4}, s[{S_B2}:{S_B2+3}], 0 offen offset:128")
    a_load_fn = [None]
    def producer_loads():
        a(f"s_lshl_b32 s41, s{S_JN}, 1")
        a(f"s_add_u32 s41, s41, s{S_HP}")
        a("s_mul_i32 s42, s41, 1600")
        a.srd_off(S_G, 6, 7, "s42", 1600)
        WP = V_E
        a(f"buffer_load_dwordx4 {vr(WP,4)}, v{V_B0}, s[{S_G}:{S_G+3}], 0 offen")
        a(f"buffer_load_dwordx4 {vr(WP+4,4)}, v{V_B0}, s[{S_G}:{S_G+3}], 0 offen offset:1024")
        a("s_mul_i32 s42, s41, 6720")
        a(f"s_add_u32 s42, s42, {KVS_OFF}")
        a("s_nop 3")
        a.srd_off(S_G, 14, 15, "s42", 6720)
        KV = V_E + 8
        for i in range(7):
            a(f"buffer_load_dwordx4 {vr(KV+4*i,4)}, v{V_B0 if i < 4 else V_B1}, s[{S_G}:{S_G+3}], 0 offen offset:{(i%4)*1024}{LDF}")
        a(f"s_lshl_b32 s40, s{S_MT}, 1")
        a(f"s_add_u32 s40, s40, s{S_TT}")
        a("s_mul_i32 s40, s40, 80")
        a("s_mul_i32 s42, s41, 5")
        a("s_add_u32 s40, s40, s42")
        a("s_lshl_b32 s40, s40, 9")
        a(f"v_lshl_add_u32 v{V_TMP}, v{V_T31}, 4, s40")
        a(f"v_mul_u32_u24 v{V_TMP+1}, {3*512}, v{V_HF}")
        a(f"v_add_u32 v{V_TMP+1}, v{V_TMP+1}, v{V_TMP}")
        a("s_nop 3")
        a.srd_off(S_G, 14, 15, QBUF_OFF, QBUF_BYTES)
        QF = V_E + 36
        a(f"buffer_load_dwordx4 {vr(QF,4)}, v{V_TMP+1}, s[{S_G}:{S_G+3}], 0 offen{LDF}")
        a(f"buffer_load_dwordx4 {vr(QF+4,4)}, v{V_TMP+1}, s[{S_G}:{S_G+3}], 0 offen offset:512{LDF}")
        a(f"buffer_load_dwordx4 {vr(QF+8,4)}, v{V_TMP}, s[{S_G}:{S_G+3}], 0 offen offset:1024{LDF}")
    def producer():
        WP = V_E; KV = V_E + 8; QF = V_E + 36
        WPL, ZL, KVL = 0, 1600, 2880
        Z = V_E + 48
        for i in range(4): a(f"v_mov_b32 v{Z+i}, 0")
        a(f"v_add_u32 v{V_TMP+2}, s{S_PB}, v{V_B0}")
        a(f"ds_write_b128 v{V_TMP+2}, {vr(Z,4)} offset:{ZL}")
        a(f"ds_write_b128 v{V_TMP+2}, {vr(Z,4)} offset:{ZL+256}")
        T0 = V_TMP + 3
        a(f"v_bfe_u32 v{T0}, v{V_L}, 4, 1")
        a(f"v_lshlrev_b32 v{T0}, 2, v{T0}")
        a(f"v_and_b32 v{T0+1}, 3, v{V_L}")
        a(f"v_add_u32 v{T0}, v{T0}, v{T0+1}")
        a(f"v_and_b32 v{T0+1}, 1, v{T0}")
        a(f"v_lshrrev_b32 v{T0}, 1, v{T0}")
        a(f"v_bfe_u32 v{T0+2}, v{V_L}, 2, 2")
        a(f"v_mul_u32_u24 v{T0+2}, 40, v{T0+2}")
        a(f"v_lshl_add_u32 v{T0+2}, v{T0}, 3, v{T0+2}")
        a(f"v_mul_u32_u24 v{T0+3}, 960, v{T0+1}")
        a(f"v_add3_u32 v{T0+2}, v{T0+2}, v{T0+3}, s{S_PB}")
        AD01, AD20, AD21, AZ = V_E + 52, V_E + 53, V_E + 54, V_E + 55
        a(f"s_add_u32 s42, s{S_PB}, {ZL}")
        a(f"v_mov_b32 v{AZ}, s42")
        a(f"v_cmp_eq_u32 vcc, v{T0+1}, v{V_HF}")
        a(f"v_cmp_eq_u32 s[44:45], 0, v{T0+1}")
        a(f"v_add_u32 v{T0+3}, 640, v{T0+2}")
        a(f"v_subrev_u32 v{T0+4}, 160, v{T0+2}")
        a(f"v_cndmask_b32 v{AD01}, v{AZ}, v{T0+2}, vcc")
        a("s_and_b64 s[46:47], vcc, s[44:45]")
        a("s_andn2_b64 s[44:45], vcc, s[44:45]")
        a("s_nop 1")
        a(f"v_cndmask_b32 v{AD20}, v{AZ}, v{T0+3}, s[46:47]")
        a(f"v_cndmask_b32 v{AD21}, v{AZ}, v{T0+4}, s[44:45]")
        a(f"v_lshrrev_b32 v{T0}, 3, v{V_T31}")
        a(f"v_bfe_u32 v{T0+1}, v{V_T31}, 2, 1")
        a(f"v_and_b32 v{T0+2}, 3, v{V_T31}")
        a(f"v_lshl_add_u32 v{T0+3}, v{T0}, 2, v{T0+2}")
        a(f"v_mul_u32_u24 v{T0+3}, 80, v{T0+3}")
        a(f"v_mul_u32_u24 v{T0+4}, 1680, v{T0+1}")
        a(f"s_add_u32 s42, s{S_PB}, {KVL}")
        a(f"v_add3_u32 v{T0+3}, v{T0+3}, v{T0+4}, s42")
        AX3, AY3 = V_E + 56, V_E + 57
        a(f"v_cmp_eq_u32 vcc, v{T0+1}, v{V_HF}")
        a("s_nop 1")
        a(f"v_cndmask_b32 v{AX3}, v{AZ}, v{T0+3}, vcc")
        a(f"v_add_u32 v{T0+3}, 1280, v{T0+3}")
        a(f"v_lshl_add_u32 v{T0+5}, v{T0}, 2, v{T0+2}")
        a(f"v_cmp_ge_u32 s[44:45], 4, v{T0+5}")
        a("s_and_b64 vcc, vcc, s[44:45]")
        a("s_nop 1")
        a(f"v_cndmask_b32 v{AY3}, v{AZ}, v{T0+3}, vcc")
        a("s_waitcnt vmcnt(20)")
        a(f"ds_write_b128 v{V_TMP+2}, {vr(WP,4)} offset:{WPL}")
        a(f"v_cmp_gt_u32 vcc, 36, v{V_L}")
        a("s_and_saveexec_b64 s[44:45], vcc")
        a(f"ds_write_b128 v{V_TMP+2}, {vr(WP+4,4)} offset:{WPL+1024}")
        a("s_mov_b64 exec, s[44:45]")
        a(f"v_lshlrev_b32 v{V_TMP+1}, 3, v{V_L}")
        a(f"v_add_u32 v{V_TMP+1}, s{S_PB}, v{V_TMP+1}")
        a("s_waitcnt vmcnt(13)")
        KP = V_E + 60
        for i in range(7):
            a(f"v_cvt_pk_bf16_f32 v{KP+2*i}, v{KV+4*i}, v{KV+4*i+1}")
            a(f"v_cvt_pk_bf16_f32 v{KP+2*i+1}, v{KV+4*i+2}, v{KV+4*i+3}")
        for i in range(6):
            a(f"ds_write_b64 v{V_TMP+1}, {vr(KP+2*i,2)} offset:{KVL+i*512}")
        a(f"v_cmp_gt_u32 vcc, 36, v{V_L}")
        a("s_and_saveexec_b64 s[44:45], vcc")
        a(f"ds_write_b64 v{V_TMP+1}, {vr(KP+12,2)} offset:{KVL+6*512}")
        a("s_mov_b64 exec, s[44:45]")
        a("s_waitcnt lgkmcnt(0)")
        A2 = V_E + 76
        for xy in range(2):
            for s_ in range(3):
                for rd in range(2):
                    if s_ < 2: a(f"ds_read_b64_tr_b16 {vr(A2+(xy*3+s_)*4+2*rd,2)}, v{AD01} offset:{s_*320+rd*160+xy*32}")
                    else: a(f"ds_read_b64_tr_b16 {vr(A2+(xy*3+s_)*4+2*rd,2)}, v{AD20 if rd == 0 else AD21} offset:{xy*32}")
        PX, PY = V_E, V_E + 16
        a("s_waitcnt vmcnt(10) lgkmcnt(0)")
        for xy, PP in ((0, PX), (1, PY)):
            for s_ in range(3):
                c = "0" if s_ == 0 else vr(PP, 16)
                a(f"v_mfma_f32_32x32x16_bf16 {vr(PP,16)}, {vr(A2+(xy*3+s_)*4,4)}, {vr(QF+4*s_,4)}, {c}")
        A3 = V_FR
        for xy, AD in ((0, AX3), (1, AY3)):
            for s3 in range(5):
                a(f"ds_read_b128 {vr(A3+(xy*5+s3)*4,4)}, v{AD} offset:{s3*16}")
        VC = V_TMP + 9
        a(f"v_mov_b32 v{VC}, {hex(LOG2E)}")
        a("s_nop 7"); a("s_nop 3")
        stamp("before softmax")
        p_ = [PX + i for i in range(16)] + [PY + i for i in range(4)]
        EP, EM, PH = V_E + 32, V_E + 52, V_E + 76
        softmax20(a, p_, VC, EP, EM, PH, V_TMP + 3)
        X3, Y3 = V_E, V_E + 16
        a("s_waitcnt lgkmcnt(0)")
        for xy, PP in ((0, X3), (1, Y3)):
            for s3 in range(5):
                c = "0" if s3 == 0 else vr(PP, 16)
                a(f"v_mfma_f32_32x32x16_bf16 {vr(PP,16)}, {vr(A3+(xy*5+s3)*4,4)}, {vr(PH+4*s3,4)}, {c}")
        a(f"s_lshl_b32 s41, s{S_JN}, 1")
        a(f"s_add_u32 s41, s41, s{S_HP}")
        a("s_mul_i32 s41, s41, 5")
        a("s_add_u32 s41, s41, 216")
        a(f"s_lshl_b32 s40, s{S_MT}, 2")
        a(f"s_lshl_b32 s42, s{S_TT}, 1")
        a("s_add_u32 s40, s40, s42")
        a(f"v_lshrrev_b32 v{T0}, 4, v{V_T31}")
        a(f"v_add_u32 v{T0}, s40, v{T0}")
        a(f"v_mul_u32_u24 v{T0}, {KS*1024}, v{T0}")
        a(f"v_and_b32 v{T0+1}, 15, v{V_T31}")
        a(f"v_lshl_add_u32 v{T0}, v{T0+1}, 4, v{T0}")
        def caddr(dst, cexpr_reg):
            a(f"v_lshrrev_b32 v{T0+2}, 2, v{cexpr_reg}")
            a(f"v_and_b32 v{T0+3}, 3, v{cexpr_reg}")
            a(f"v_lshl_add_u32 v{dst}, v{T0+2}, 10, v{T0}")
            a(f"v_lshl_add_u32 v{dst}, v{T0+3}, 8, v{dst}")
        SA0, SA1, SA2 = V_E + 32, V_E + 33, V_E + 34
        a(f"v_lshl_add_u32 v{T0+4}, v{V_HF}, 1, s41")
        caddr(SA0, T0 + 4)
        a(f"v_add_u32 v{T0+4}, 1, v{T0+4}")
        caddr(SA1, T0 + 4)
        a(f"s_add_u32 s41, s41, 4")
        a(f"v_mov_b32 v{T0+4}, s41")
        caddr(SA2, T0 + 4)
        a.srd_off(S_G, 14, 15, ABUF_OFF, ABUF_BYTES)
        a("s_nop 7"); a("s_nop 7")
        a(f"v_add_f32 v{T0}, 0x358637bd, v{Y3+4}")
        a(f"v_rcp_f32 v{T0}, v{T0}")
        a("s_nop 0")
        OP = V_E + 36; C4 = V_E + 44
        for i in range(16): a(f"v_mul_f32 v{X3+i}, v{X3+i}, v{T0}")
        for i in range(4): a(f"v_mul_f32 v{Y3+i}, v{Y3+i}, v{T0}")
        for p in range(8): a(f"v_cvt_pk_bf16_f32 v{OP+p}, v{X3+2*p}, v{X3+2*p+1}")
        for p in range(2):
            a(f"v_cvt_pk_bf16_f32 v{C4+p}, v{Y3+2*p}, v{Y3+2*p+1}")
            a(f"v_cvt_pk_bf16_f32 v{C4+2+p}, v{Y3+2*p}, v{Y3+2*p+1}")
        for n in range(10, 20): a_load_fn[0](n)
        a(f"buffer_store_dwordx4 {vr(OP,4)}, v{SA0}, s[{S_G}:{S_G+3}], 0 offen{SC}")
        a(f"buffer_store_dwordx4 {vr(OP+4,4)}, v{SA1}, s[{S_G}:{S_G+3}], 0 offen{SC}")
        a(f"v_permlane32_swap_b32 v{C4}, v{C4+2}")
        a(f"v_permlane32_swap_b32 v{C4+1}, v{C4+3}")
        a("s_mov_b64 s[44:45], exec")
        a("s_mov_b32 exec_hi, 0")
        a(f"buffer_store_dwordx4 {vr(C4,4)}, v{SA2}, s[{S_G}:{S_G+3}], 0 offen{SC}")
        a("s_mov_b64 exec, s[44:45]")
        stamp("o stored")
    def ks_of(n):
        i, j = divmod(n, 4)
        if i < 13: return 4 * i + j
        if i == 13: return 52 + j if j < 2 else None
        return 54 + 4 * (i - 14) + j
    def af(n):
        sl = n % DA
        return 216 + 4 * sl if sl < 10 else 176 + 4 * (sl - 10)
    def a_load(n):
        k = ks_of(n)
        fl = " sc1" if n >= 56 else LDF
        if k is not None and k < 54:
            a(f"s_add_u32 s41, s{S_ROT}, {k}")
            a("s_sub_u32 s42, s41, 54")
            a("s_cmp_lt_u32 s41, 54")
            a("s_cselect_b32 s41, s41, s42")
            a("s_lshl_b32 s41, s41, 10")
        else:
            a(f"s_mov_b32 s41, {0x7f000000 if k is None else k*1024}")
        a(f"buffer_load_dwordx4 {vr(af(n),4)}, v{V_B0}, s[{S_A}:{S_A+3}], s41 offen{fl}")
    a(f"s_lshl_b32 s40, s{S_MT}, 2")
    a(f"s_add_u32 s40, s40, s{S_W}")
    a(f"s_mul_i32 s40, s40, {KS*1024}")
    a.srd_off(S_A, 14, 15, "s40", KS * 1024)
    producer_loads()
    a("s_barrier")
    for n in range(10): a_load(n)
    for i in range(20): a(f"v_mov_b32 v{V_ACC+i}, 0")
    a(f"v_add_u32 v{V_LB1}, 0x10000, v{V_B0}")
    a(f"v_add_u32 v{V_LB2}, 0x20000, v{V_B0}")
    LB = [V_B0, V_LB1, V_LB2]
    def fr(buf, k): return V_FR + buf * 20 + k * 4
    def reads(i, j, buf):
        base = (i % R) * STG + j * 5120
        L = []
        for nt in range(5):
            o = base + nt * 1024
            L.append(f"ds_read_b128 {vr(fr(buf,nt),4)}, v{LB[o >> 16]} offset:{o & 0xffff}")
        return L
    a_load_fn[0] = a_load
    producer()
    xb_loads()
    a("s_waitcnt lgkmcnt(0)")
    a("s_barrier")
    stamp("B0")
    NB = 4
    NK = NSTG * 4
    NO = 56
    NOI = 45
    def prime(n0):
        for jj in range(3):
            m = n0 + jj
            for x in reads(m // 4, m % 4, m % NB): a(x)
    prime(0)
    order = [("A", n) for n in range(20)] + [("st", k) for k in range(3)] + [("xb", k) for k in range(6)]
    for n in range(NK):
        i, j = divmod(n, 4)
        buf = n % NB
        m = n + 3
        if j == 1 and i < NSTG - 1:
            a("s_waitcnt lgkmcnt(0)")
            a("s_barrier")
            if timing:
                a(f"s_memtime s[{S_T0+2}:{S_T0+3}]")
                a("s_waitcnt lgkmcnt(0)")
                a(f"s_sub_u32 s{S_T0+2}, s{S_T0+2}, s{S_T0}")
                a(f"v_writelane_b32 v{V_STAMP}, s{S_T0+2}, {16+i}")
        else:
            a(f"s_waitcnt lgkmcnt({5*min(2, NK - 1 - n)})")
        if True:
            pos = order.index(("A", n))
            need = pos
            if n == 20: need = max(pos, order.index(("xb", 5)))
            a(f"s_waitcnt vmcnt({min(63, len(order) - 1 - need)})")
        rl = [] if (m >= NK or 'r' in dis) else reads(m // 4, m % 4, m % NB)
        for nt in range(5):
            if 'm' not in dis: a(f"v_mfma_f32_16x16x32_bf16 {vr(V_ACC+4*nt,4)}, {vr(fr(buf,nt),4)}, {vr(af(n),4)}, {vr(V_ACC+4*nt,4)}")
            if nt == 0:
                for x in rl[:3]: a(x)
            if nt == 1:
                for x in rl[3:]: a(x)
        nxt = [x for x in range(NK) if ("A", x) not in order]
        lim = n + DA
        todo = [x for x in nxt if x <= lim and (x < NO or n >= NOI)]
        for x in todo[:4]:
            a_load(x); order.append(("A", x))
    stamp("main end")
    Rr = V_ACC
    T = V_TMP
    a("s_waitcnt vmcnt(0)")
    SB_ = V_E
    for p in range(10):
        a(f"v_lshlrev_b32 v{T}, 16, v{V_X+p}")
        a(f"v_and_b32 v{T+1}, 0xffff0000, v{V_X+p}")
        a(f"v_lshlrev_b32 v{T+2}, 16, v{V_BB+p}")
        a(f"v_and_b32 v{T+3}, 0xffff0000, v{V_BB+p}")
        a(f"v_add_f32 v{SB_+2*p}, v{T}, v{T+2}")
        a(f"v_add_f32 v{SB_+2*p+1}, v{T+1}, v{T+3}")
    for i in range(20): a(f"v_add_f32 v{Rr+i}, v{Rr+i}, v{SB_+i}")
    O = V_E + 24
    for p in range(10): a(f"v_cvt_pk_bf16_f32 v{O+p}, v{Rr+2*p}, v{Rr+2*p+1}")
    a(f"buffer_store_dwordx4 {vr(O,4)}, v{V_XO}, s[{S_O}:{S_O+3}], 0 offen")
    a(f"buffer_store_dwordx4 {vr(O+4,4)}, v{V_XO}, s[{S_O}:{S_O+3}], 0 offen offset:64")
    a(f"buffer_store_dwordx2 {vr(O+8,2)}, v{V_XO4}, s[{S_O}:{S_O+3}], 0 offen offset:128")
    if timing:
        a("s_waitcnt vmcnt(0)")
        stamp_n[0] = 31 if fused else 15
        stamp("end")
        a("s_memrealtime s[44:45]")
        a("s_waitcnt lgkmcnt(0)")
        a("s_lshl_b32 s46, s2, 7")
        a(f"s_lshl_b32 s47, s{S_WV}, 4")
        a("s_add_u32 s46, s46, s47")
        a(f"s_add_u32 s46, s46, {0x1330000}")
        a("v_mov_b32 v12, s46"); a("v_mov_b32 v14, s98"); a("v_mov_b32 v15, s44")
        a("s_mov_b64 s[44:45], exec"); a("s_mov_b64 exec, 1")
        a(f"global_store_dwordx2 v12, v[14:15], s[14:15]")
        a("s_mov_b64 exec, s[44:45]")
        a(f"s_cmp_lg_u32 s2, {0 if fused else 5}")
        a(f"s_cbranch_scc1 {P}_END")
        a(f"s_cmp_lg_u32 s{S_WV}, 0")
        a(f"s_cbranch_scc1 {P}_END")
        a(f"v_lshlrev_b32 v13, 2, v{V_L}")
        a(f"v_add_u32 v13, {0x1310000}, v13")
        a(f"global_store_dword v13, v{V_STAMP}, s[14:15]")
        a("v_mov_b32 v20, 0x1300000")
        a("global_load_dwordx4 v[24:27], v20, s[14:15]")
        a("global_load_dwordx4 v[28:31], v20, s[14:15] offset:16")
        a("global_load_dword v32, v20, s[14:15] offset:60")
        a("v_mov_b32 v21, 0x1320000")
        a("global_load_dwordx2 v[34:35], v21, s[14:15]")
        a("s_memrealtime s[44:45]")
        a("s_waitcnt vmcnt(0) lgkmcnt(0)")
        a("v_sub_u32 v36, v35, v34")
        a("v_mov_b32 v37, s98")
        a("v_sub_u32 v37, v37, v34")
        a("v_mov_b32 v38, s44")
        a("v_sub_u32 v38, v38, v34")
        a(f"v_readlane_b32 s46, v{V_STAMP}, 15")
        a("v_mov_b32 v39, s46")
        a(f"v_readlane_b32 s46, v{V_STAMP}, 2")
        a("v_mov_b32 v33, s46")
        a("v_mov_b32 v22, 0")
        a("s_mov_b64 exec, 1")
        a("global_store_dwordx4 v22, v[24:27], s[12:13]")
        a("global_store_dwordx4 v22, v[28:31], s[12:13] offset:16")
        a("global_store_dwordx4 v22, v[32:35], s[12:13] offset:32")
        a("global_store_dwordx4 v22, v[36:39], s[12:13] offset:48")
    a("s_endpgm")
    a.label(P + "_LOADER")
    a("s_waitcnt lgkmcnt(0)")
    a(f"s_mul_i32 s40, s{S_JN}, 5120")
    a(f"s_add_u32 s41, s40, {BBUF_OFF}")
    a.srd_off(S_B, 14, 15, "s41", 0)
    a(f"s_sub_u32 s{S_B+2}, {BBUF_BYTES}, s40")
    a(f"s_mul_i32 s{S_SB}, s{S_W}, 40960")
    a(f"s_mul_i32 s{S_LB}, s{S_W}, 5120")
    def set_off(i):
        if i <= 13:
            a(f"s_add_u32 s40, s{S_W}, {4*i}")
            a(f"s_add_u32 s41, s40, s{S_ROT}")
            a("s_sub_u32 s42, s41, 54")
            a("s_cmp_lt_u32 s41, 54")
            a("s_cselect_b32 s41, s41, s42")
            a(f"s_mul_i32 s{S_SB}, s41, 40960")
            if i == 13:
                a("s_cmp_lt_u32 s40, 54")
                a(f"s_cselect_b32 s{S_SB}, s{S_SB}, 0x7f000000")
        else:
            a(f"s_add_u32 s40, s{S_W}, {54 + 4*(i-14)}")
            a(f"s_mul_i32 s{S_SB}, s40, 40960")
    def issue(i):
        set_off(i)
        base = (i % R) * STG
        a(f"s_add_u32 m0, s{S_LB}, {base}")
        a("s_nop 0")
        for nt in range(4):
            a(f"buffer_load_dwordx4 v{V_B0}, s[{S_B}:{S_B+3}], s{S_SB} offen offset:{nt*1024}{LDF} lds")
        a(f"s_add_u32 m0, s{S_LB}, {base + 4096}")
        a("s_nop 0")
        a(f"buffer_load_dwordx4 v{V_B1}, s[{S_B}:{S_B+3}], s{S_SB} offen{LDF} lds")
    a("s_barrier")
    for i in range(R):
        if i >= 3: a("s_waitcnt vmcnt(10)")
        issue(i)
    a("s_barrier")
    def poll_issue():
        L = P + "_PI"
        a(f"s_cmp_lg_u32 s{S_WV}, 4")
        a(f"s_cbranch_scc1 {L}")
        a(f"s_lshl_b32 s40, s{S_MT}, 7")
        a(f"s_add_u32 s40, s40, {OFLAG_OFF}")
        a(f"v_and_b32 v{V_TMP}, 7, v{V_L}")
        a(f"v_lshl_add_u32 v{V_TMP}, v{V_TMP}, 2, s40")
        a(f"global_load_dword v{V_TMP+1}, v{V_TMP}, s[14:15] sc1")
        a.label(L)
    def poll():
        Lp = P + "_POLL"
        a(f"s_cmp_lg_u32 s{S_WV}, 4")
        a(f"s_cbranch_scc1 {Lp}_OK")
        a("s_waitcnt vmcnt(10)")
        a(f"v_cmp_ne_u32 vcc, s{S_NON}, v{V_TMP+1}")
        a(f"s_cbranch_vccz {Lp}_OK")
        a("s_mov_b32 s42, 0")
        a.label(Lp)
        a("s_sleep 2")
        a(f"global_load_dword v{V_TMP+1}, v{V_TMP}, s[14:15] sc1")
        a("s_waitcnt vmcnt(0)")
        a(f"v_cmp_ne_u32 vcc, s{S_NON}, v{V_TMP+1}")
        a("s_add_u32 s42, s42, 1")
        a("s_cmp_gt_u32 s42, 8000")
        a(f"s_cbranch_scc1 {Lp}_OK")
        a(f"s_cbranch_vccnz {Lp}")
        a.label(Lp + "_OK")
    for i in range(NSTG - 1):
        hi = min(NSTG - 1, R - 1 + i)
        a(f"s_waitcnt vmcnt({5*(hi-(i+1))})")
        if i + 1 == 12: poll()
        a("s_barrier")
        if i + 1 == 6:
            L = P + "_NOARR"
            a(f"s_cmp_lg_u32 s{S_WV}, 4")
            a(f"s_cbranch_scc1 {L}")
            a(f"s_lshl_b32 s40, s{S_MT}, 7")
            a(f"s_lshl_b32 s41, s{S_JN}, 2")
            a("s_add_u32 s40, s40, s41")
            a(f"s_add_u32 s40, s40, {OFLAG_OFF}")
            a(f"v_mov_b32 v{V_TMP}, s40")
            a(f"v_mov_b32 v{V_TMP+1}, s{S_NON}")
            a("s_mov_b64 s[44:45], exec")
            a("s_mov_b64 exec, 1")
            a(f"global_store_dword v{V_TMP}, v{V_TMP+1}, s[14:15] sc0 sc1")
            a("s_mov_b64 exec, s[44:45]")
            a.label(L)
        if i + 1 == 10: poll_issue()
        if i + R < NSTG: issue(i + R)
    a.label(P + "_END")
    a("s_endpgm")
    return a.text(), 256, 100, 256, LDS_K2

if __name__ == "__main__":
    import sys
    body, vg, sg, ac, lds = gen_k2(timing=True)
    open(sys.argv[1], "w").write(file_text([("k2_kernel", 256, 512, lds)], [("k2_kernel", body, vg, sg, ac)]))
```

```python
import sys
from asmlib import *
import k1, k2d as k2c
NAME = "parallel_sum__linear_kernel_hedgehog__dense_activation_squared_relu__prompt_kernel"
def build(path, timing=False, OSC=' sc1', fused=False, PSTG=0, dis2=''):
    if not fused:
        b1, v1, s1, a1, l1 = k1.gen_k1(timing=timing, OSC=OSC)
        b2, v2, s2, a2, l2 = k2c.gen_k2(timing=timing, PSTG=PSTG, dis=dis2)
        txt = file_text([("k1_kernel", 256, 512, l1), ("k2_kernel", 256, 512, l2)], [("k1_kernel", b1, v1, s1, a1), ("k2_kernel", b2, v2, s2, a2)])
    else:
        b1, v1, s1, a1, l1 = k1.gen_k1(timing=timing, OSC=OSC, fused=True)
        b2, v2, s2, a2, l2 = k2c.gen_k2(timing=timing, fused=True, PSTG=PSTG)
        body = b1 + b2 + "K1_END:\n    s_endpgm\n"
        txt = file_text([("f_kernel", 256, 512, max(l1, l2))], [("f_kernel", body, 256, 102, 256)])
    open(path, "w").write(txt)
if __name__ == "__main__":
    import argparse
    ap = argparse.ArgumentParser()
    ap.add_argument("out"); ap.add_argument("-t", action="store_true"); ap.add_argument("-f", action="store_true"); ap.add_argument("-p", type=int, default=0); ap.add_argument("-d2", default="")
    a = ap.parse_args()
    build(a.out, timing=a.t, fused=a.f, PSTG=a.p, dis2=a.d2)
```

```python
from asmlib import *
from layout import *
from k1tables import SLOT_A, TILES, LIGHTS, tile_quad, where
from common import softmax20

CS = 0
WPHI = 1024
ZERO = WPHI + 3200
CSP = 6144
XOFF = 10240; XSTG = 16384
WOFF = XOFF + 3 * XSTG; WSTG = 32768
LDS_K1 = WOFF + 3 * WSTG
PHI = XOFF
VP = PHI + 40960
PREP = VP + 24576
LOG2E = 0x3fb8aa3b
ONES2 = 0x3f803f80

def gen_k1(timing=False, dis='', pfx="K1", SC=' sc0 sc1', OSC='', fused=False, PRIO=0):
    a = Asm()
    S_X, S_W0 = 16, 20
    S_WS = 36
    S_T = 40
    S_WV, S_MT, S_GI, S_HP, S_TQ = 48, 49, 50, 51, 52
    S_XRD, S_WRD = 53, 54
    S_XSO = 55
    S_WSO = 56
    S_WSTEP = 60
    S_I = 64; S_M0X, S_M0W = 65, 66; S_SIG = 67
    S_PTR = 68
    S_M2 = 80
    S_ROLE = 86; S_CSK = 87
    S_ZFW = 91; S_RSO = 92; S_ZW = 93; S_PLB = 87
    S_N, S_CNT, S_B = S_M2 + 3, S_M2 + 4, S_M2 + 5
    S_CSPUB, S_C2W, S_NM = 88, 89, 90
    S_T0 = 94
    V_L = 1; V_T31 = 2; V_HF = 3
    V_XV = 4; V_WV = 5
    V_XA = 9
    V_WB = 11; V_WC = 15
    V_STAMP = 19
    V_TMP = 20
    V_XF = 30; V_WF = 54
    V_ONES = 102
    V_ACC = 104
    V_E = 168
    V_NON = 168 + 75
    V_M = 248
    V_MN0, V_RS0, V_MN1, V_RS1 = 248, 249, 250, 251
    P = pfx

    stamp_n = [0]
    def stamp(name):
        if not timing: return
        i = stamp_n[0]; stamp_n[0] += 1
        a(f"s_memtime s[{S_T0+2}:{S_T0+3}]")
        a("s_waitcnt lgkmcnt(0)")
        a(f"s_sub_u32 s{S_T0+2}, s{S_T0+2}, s{S_T0}")
        a(f"v_writelane_b32 v{V_STAMP}, s{S_T0+2}, {i}")
    def pst(lane):
        if timing and 'P' in dis:
            a(f"s_memtime s[{S_T0+2}:{S_T0+3}]")
            a("s_waitcnt lgkmcnt(0)")
            a(f"s_sub_u32 s{S_T0+2}, s{S_T0+2}, s{S_T0}")
            a(f"v_writelane_b32 v{V_STAMP}, s{S_T0+2}, {lane}")
    def xf(buf, tt): return V_XF + buf * 8 + tt * 4
    def wf(buf, T): return V_WF + buf * 16 + T * 4
    def acc(i): return V_ACC + 16 * i
    def flag_add(kind):
        if kind == 'x': a(f"s_lshl_b32 s{S_T+4}, s{S_MT}, 2")
        elif kind == 'c':
            a(f"s_lshl_b32 s{S_T+4}, s{S_ROLE}, 2"); a(f"s_add_u32 s{S_T+4}, s{S_T+4}, 64")
        else: a(f"s_mov_b32 s{S_T+4}, 128")
        a(f"v_mov_b32 v{V_TMP+8}, s{S_T+4}")
        a(f"v_mov_b32 v{V_TMP+9}, 1")
        a(f"s_mov_b64 s[{S_T+6}:{S_T+7}], exec")
        a("s_mov_b64 exec, 1")
        a(f"global_atomic_add v{V_TMP+8}, v{V_TMP+9}, s[{S_PTR+2}:{S_PTR+3}] sc1")
        a(f"s_mov_b64 exec, s[{S_T+6}:{S_T+7}]")

    def advance_slot():
        a(f"s_add_u32 s{S_XRD}, s{S_XRD}, {XSTG}")
        a(f"s_add_u32 s{S_WRD}, s{S_WRD}, {WSTG}")
        a(f"s_cmp_eq_u32 s{S_XRD}, {XOFF+3*XSTG}")
        a(f"s_cselect_b32 s{S_XRD}, {XOFF}, s{S_XRD}")
        a(f"s_cselect_b32 s{S_WRD}, 0, s{S_WRD}")
    def dma_stage(sx, sw):
        a(f"s_add_u32 m0, s{S_M0X}, s{sx}")
        a(f"s_add_u32 s{S_T}, s{S_XSO}, 81920")
        a(f"buffer_load_dwordx4 v{V_XV}, s[{S_X}:{S_X+3}], s{S_XSO} offen lds")
        a(f"s_add_u32 m0, m0, 8192")
        a(f"s_add_u32 s{S_T+1}, s{S_M0W}, s{sw}")
        a(f"buffer_load_dwordx4 v{V_XV}, s[{S_X}:{S_X+3}], s{S_T} offen lds")
        for p in range(4):
            a(f"s_add_u32 m0, s{S_T+1}, {p*8192}")
            a("s_nop 0")
            a(f"buffer_load_dwordx4 v{V_WV+p}, s[{S_W0+4*p}:{S_W0+4*p+3}], s{S_WSO+p} offen lds")
        next_sigma()
    def next_sigma(xonly=False, wonly=False):
        if not wonly: a(f"s_add_u32 s{S_XSO}, s{S_XSO}, 128")
        if not xonly:
            for p in range(4): a(f"s_add_u32 s{S_WSO+p}, s{S_WSO+p}, s{S_WSTEP+p}")
        if xonly:
            a(f"s_cmp_eq_u32 s{S_XSO}, 1280"); a(f"s_cselect_b32 s{S_XSO}, 0, s{S_XSO}")
            return
        a(f"s_add_u32 s{S_SIG}, s{S_SIG}, 1")
        a(f"s_cmp_eq_u32 s{S_SIG}, 10")
        a(f"s_cselect_b32 s{S_SIG}, 0, s{S_SIG}")
        if not wonly: a(f"s_cselect_b32 s{S_XSO}, 0, s{S_XSO}")
        for p in range(4): a(f"s_cselect_b32 s{S_WSO+p}, 0, s{S_WSO+p}")
    def dma_x_now(st):
        a(f"s_add_u32 m0, s{S_M0X}, {XOFF + st*XSTG}")
        a(f"s_add_u32 s{S_T}, s{S_XSO}, 81920")
        a(f"buffer_load_dwordx4 v{V_XV}, s[{S_X}:{S_X+3}], s{S_XSO} offen lds")
        a(f"s_add_u32 m0, m0, 8192")
        a("s_nop 0")
        a(f"buffer_load_dwordx4 v{V_XV}, s[{S_X}:{S_X+3}], s{S_T} offen lds")
    def dma_w_now(st):
        for p in range(4):
            a(f"s_add_u32 m0, s{S_M0W}, {st*WSTG + p*8192}")
            a("s_nop 0")
            a(f"buffer_load_dwordx4 v{V_WV+p}, s[{S_W0+4*p}:{S_W0+4*p+3}], s{S_WSO+p} offen lds")
    def prologue_w():
        for p in range(4): a(f"s_mul_i32 s{S_WSO+p}, s{S_SIG}, s{S_WSTEP+p}")
        dma_w_now(0)
        next_sigma()
    def prologue_w2():
        dma_x_now(1); dma_w_now(1)
        next_sigma()

    def xrow_stats():
        R = V_E + 64
        S1, S2, ON = V_TMP + 2, V_TMP + 3, V_TMP + 4
        a(f"v_mov_b32 v{ON}, {hex(ONES2)}")
        a(f"v_mov_b32 v{S1}, 0"); a(f"v_mov_b32 v{S2}, 0")
        for i in range(8):
            a(f"v_dot2_f32_bf16 v{S1}, v{R+i}, v{ON}, v{S1}")
            a(f"v_dot2_f32_bf16 v{S2}, v{R+i}, v{R+i}, v{S2}")
        for dpp in ("row_shr:1", "row_shr:2", "row_shr:4", "row_shr:8", "row_bcast:15 row_mask:0xa", "row_bcast:31 row_mask:0xc"):
            a("s_nop 1")
            a(f"v_add_f32_dpp v{S1}, v{S1}, v{S1} {dpp}" + (" row_mask:0xf" if "mask" not in dpp else "") + " bank_mask:0xf")
            a(f"v_add_f32_dpp v{S2}, v{S2}, v{S2} {dpp}" + (" row_mask:0xf" if "mask" not in dpp else "") + " bank_mask:0xf")
        a(f"v_mul_f32 v{V_E+72}, 0xbacccccd, v{S1}")
        a(f"v_mul_f32 v{S2}, 0x3acccccd, v{S2}")
        a(f"v_fma_f32 v{S2}, -v{V_E+72}, v{V_E+72}, v{S2}")
        a(f"v_max_f32 v{S2}, 0, v{S2}")
        a(f"v_add_f32 v{S2}, 0x3727c5ac, v{S2}")
        a(f"v_rsq_f32 v{V_E+73}, v{S2}")
        a(f"s_lshl_b32 s{S_T}, s{S_MT}, 7")
        a(f"s_lshl_b32 s{S_T+1}, s{S_ROLE}, 3")
        a(f"s_add_u32 s{S_T}, s{S_T}, s{S_T+1}")
        a(f"s_add_u32 s{S_T}, s{S_T}, s{S_WV}")
        a(f"s_lshl_b32 s{S_T}, s{S_T}, 4")
        a(f"s_add_u32 s{S_RSO}, s{S_T}, {STATG_OFF}")
    def xrow_store():
        a(f"v_mov_b32 v{V_E+74}, v{V_NON}")
        a(f"v_mov_b32 v{V_TMP+8}, s{S_RSO}")
        a(f"s_mov_b64 s[{S_T+6}:{S_T+7}], exec")
        a("s_mov_b32 exec_lo, 0"); a("s_mov_b32 exec_hi, 0x80000000")
        a(f"global_store_dwordx4 v{V_TMP+8}, {vr(V_E+72,4)}, s[{S_PTR}:{S_PTR+1}]{SC}")
        a(f"s_mov_b64 exec, s[{S_T+6}:{S_T+7}]")

    def dma_pieces(sx, sw):
        G = []
        G.append([f"s_add_u32 m0, s{S_M0X}, s{sx}", f"s_add_u32 s{S_T}, s{S_XSO}, 81920",
                  f"buffer_load_dwordx4 v{V_XV}, s[{S_X}:{S_X+3}], s{S_XSO} offen lds"])
        G.append([f"s_add_u32 m0, s{S_M0X}, s{sx}", f"s_add_u32 m0, m0, 8192", f"s_add_u32 s{S_T}, s{S_XSO}, 81920",
                  f"buffer_load_dwordx4 v{V_XV}, s[{S_X}:{S_X+3}], s{S_T} offen lds"])
        for p in range(4):
            G.append([f"s_add_u32 s{S_T+1}, s{S_M0W}, s{sw}", f"s_add_u32 m0, s{S_T+1}, {p*8192}", "s_nop 0",
                      f"buffer_load_dwordx4 v{V_WV+p}, s[{S_W0+4*p}:{S_W0+4*p+3}], s{S_WSO+p} offen lds"])
        return G

    def prep_issue():
        SB = S_B
        a(f"s_cmp_lt_u32 s{SB}, {KS_H}")
        a(f"s_cselect_b32 s{S_WS}, s{S_PTR+8}, s{S_PTR+10}")
        a(f"s_cselect_b32 s{S_WS+1}, s{S_PTR+9}, s{S_PTR+11}")
        a(f"s_mov_b32 s{S_WS+2}, {640*1280}")
        a(f"s_cselect_b32 s{S_WS+2}, {1728*1280}, s{S_WS+2}")
        a(f"s_mov_b32 s{S_WS+3}, 0x00020000")
        a(f"s_cselect_b64 s[{S_T+6}:{S_T+7}], -1, 0")
        a(f"s_and_b32 s{S_WS+1}, s{S_WS+1}, 0xffff")
        a(f"s_cmp_ge_u32 s{SB}, {KS}")
        a(f"s_cselect_b32 s{S_WS+2}, 0, s{S_WS+2}")
        a(f"s_mul_i32 s{S_T+5}, s{S_WV}, 5120")
        a(f"s_add_u32 s{S_T+4}, s{S_M2+2}, {WOFF}")
        a(f"s_add_u32 s{S_T+4}, s{S_T+4}, s{S_T+5}")
        a(f"s_sub_u32 s{S_T+5}, s{S_T+5}, {6*5120}")
        a(f"s_add_u32 s{S_T+5}, s{S_T+5}, s{S_M2+1}")
        a(f"s_cmp_lt_u32 s{S_WV}, 6")
        a(f"s_cselect_b32 s{S_PLB}, s{S_T+4}, s{S_T+5}")
        a(f"s_mul_i32 s{S_T+4}, s{S_WV}, 160")
        a(f"s_lshl_b32 s{S_T}, s{SB}, 2")
        E = V_E
        for i in range(5):
            a(f"v_add_u32 v{E}, {64*i}, v{V_L}")
            a(f"v_mul_u32_u24 v{E+1}, 6554, v{E}")
            a(f"v_lshrrev_b32 v{E+1}, 16, v{E+1}")
            a(f"v_mul_u32_u24 v{E+2}, 10, v{E+1}")
            a(f"v_sub_u32 v{E+2}, v{E}, v{E+2}")
            a(f"v_bfe_u32 v{E+3}, v{E+1}, 2, 2")
            a(f"v_and_b32 v{E+4}, 3, v{E+1}")
            a(f"v_lshrrev_b32 v{E+7}, 4, v{E+1}")
            a(f"v_lshl_add_u32 v{E+4}, v{E+7}, 2, v{E+4}")
            a(f"v_add_u32 v{E+8}, s{S_T}, v{E+3}")
            a(f"v_lshl_add_u32 v{E+9}, v{E+8}, 3, v{E+4}")
            a(f"v_subrev_u32 v{E+10}, 216, v{E+8}")
            a(f"v_mul_u32_u24 v{E+11}, 13108, v{E+10}")
            a(f"v_lshrrev_b32 v{E+11}, 16, v{E+11}")
            a(f"v_mul_u32_u24 v{E+12}, 5, v{E+11}")
            a(f"v_sub_u32 v{E+12}, v{E+10}, v{E+12}")
            a(f"v_and_b32 v{E+13}, 1, v{E+12}")
            a(f"v_lshlrev_b32 v{E+13}, 3, v{E+13}")
            a(f"v_bfe_u32 v{E+14}, v{E+12}, 1, 1")
            a(f"v_mad_u32_u24 v{E+13}, v{E+14}, 20, v{E+13}")
            a(f"v_lshlrev_b32 v{E+14}, 4, v{E+7}")
            a(f"v_add_u32 v{E+14}, 16, v{E+14}")
            a(f"v_cmp_eq_u32 vcc, 4, v{E+12}")
            a("s_nop 1")
            a(f"v_cndmask_b32 v{E+13}, v{E+13}, v{E+14}, vcc")
            a(f"v_mad_u32_u24 v{E+13}, v{E+11}, 40, v{E+13}")
            a(f"v_add_u32 v{E+13}, v{E+13}, v{E+4}")
            a(f"v_cndmask_b32 v{E+9}, v{E+13}, v{E+9}, s[{S_T+6}:{S_T+7}]")
            a(f"v_mul_u32_u24 v{E+9}, 1280, v{E+9}")
            a(f"v_lshl_add_u32 v{E+9}, v{E+2}, 4, v{E+9}")
            a(f"v_add_u32 v{E+16+i}, s{S_T+4}, v{E+9}")
        for i in range(5):
            a(f"s_add_u32 m0, s{S_PLB}, {i*1024}")
            a("s_nop 0")
            a(f"buffer_load_dwordx4 v{V_E+16+i}, s[{S_WS}:{S_WS+3}], 0 offen lds")
    def prep_finish():
        SB = S_B
        L = a.newlabel(P + "_pf")
        a(f"s_cmp_ge_u32 s{SB}, {KS}")
        a(f"s_cbranch_scc1 {L}")
        a(f"v_lshrrev_b32 v{V_TMP}, 2, v{V_L}")
        a(f"v_mul_u32_u24 v{V_TMP}, 160, v{V_TMP}")
        a(f"v_and_b32 v{V_TMP+1}, 3, v{V_L}")
        a(f"v_lshl_add_u32 v{V_TMP+2}, v{V_TMP+1}, 4, v{V_TMP}")
        a(f"v_lshl_add_u32 v{V_TMP+3}, v{V_TMP+1}, 3, v{V_TMP}")
        a(f"v_add_u32 v{V_TMP+2}, s{S_PLB}, v{V_TMP+2}")
        a(f"v_add_u32 v{V_TMP+3}, s{S_PLB}, v{V_TMP+3}")
        OB = V_XF
        for nt in range(5):
            for rd in range(2):
                if nt < 4:
                    a(f"ds_read_b64_tr_b16 {vr(OB+4*nt+2*rd,2)}, v{V_TMP+2} offset:{64*(nt//2)+8*(nt%2)+rd*2560}")
                else:
                    a(f"ds_read_b64_tr_b16 {vr(OB+4*nt+2*rd,2)}, v{V_TMP+3} offset:{128+rd*2560}")
        a.srd_off(S_WS, S_PTR, S_PTR + 1, BBUF_OFF, BBUF_BYTES)
        a(f"s_mul_i32 s{S_T}, s{SB}, 40")
        a(f"s_mul_i32 s{S_T+1}, s{S_WV}, 5")
        a(f"s_add_u32 s{S_T}, s{S_T}, s{S_T+1}")
        a(f"s_lshl_b32 s{S_T}, s{S_T}, 10")
        a(f"v_lshlrev_b32 v{V_TMP+4}, 4, v{V_L}")
        a(f"v_add_u32 v{V_TMP+4}, s{S_T}, v{V_TMP+4}")
        a(f"v_add_u32 v{V_TMP+7}, 4096, v{V_TMP+4}")
        a("s_waitcnt lgkmcnt(0)")
        for nt in range(4):
            a(f"buffer_store_dwordx4 {vr(OB+4*nt,4)}, v{V_TMP+4}, s[{S_WS}:{S_WS+3}], 0 offen offset:{nt*1024}{OSC}")
        a(f"buffer_store_dwordx4 {vr(OB+16,4)}, v{V_TMP+7}, s[{S_WS}:{S_WS+3}], 0 offen{OSC}")
        a.label(L)
    def tag_store(off_sgpr):
        a(f"v_mov_b32 v{V_TMP+8}, s{off_sgpr}")
        a(f"v_mov_b32 v{V_TMP+9}, s100")
        a(f"s_mov_b64 s[{S_T+6}:{S_T+7}], exec")
        a("s_mov_b64 exec, 1")
        a(f"global_store_dword v{V_TMP+8}, v{V_TMP+9}, s[{S_PTR}:{S_PTR+1}] sc0 sc1")
        a(f"s_mov_b64 exec, s[{S_T+6}:{S_T+7}]")
    def bias_issue():
        a(f"s_sub_u32 s{S_T}, s{S_N}, 2")
        a(f"s_max_i32 s{S_T}, s{S_T}, 0")
        a(f"s_min_u32 s{S_T}, s{S_T}, 26")
        a(f"s_lshl_b32 s{S_T+1}, s{S_T}, 7")
        a.srd_off(S_WS, S_PTR + 6, S_PTR + 7, f"s{S_T+1}", 128)
        a(f"v_lshlrev_b32 v{V_TMP+8}, 4, v{V_HF}")
        for T in range(2):
            for p in range(2):
                a(f"buffer_load_dwordx4 {vr(V_E+52+(T*2+p)*4,4)}, v{V_TMP+8}, s[{S_WS}:{S_WS+3}], 0 offen offset:{(4*T+2*p)*16}")
    def run_main(typ, ntile, lab, trail, hooks):
        nTT = 1 if typ == 'A' else 2
        ACS = V_E
        ool = []
        def read_list(ks, buf):
            L = []
            for tt in range(nTT):
                L.append(f"v_xad_u32 v{V_TMP+tt}, v{V_XA+tt}, {ks*16}, s{S_XRD}")
                L.append(f"ds_read_b128 {vr(xf(buf,tt),4)}, v{V_TMP+tt}")
            for T in range(ntile):
                for rd in range(2):
                    L.append(f"ds_read_b64_tr_b16 {vr(wf(buf,T)+2*rd,2)}, v{V_WC+T} offset:{ks*2048+rd*512}")
            return [] if 'r' in dis else L
        nreads = nTT + 2 * ntile
        def upd_w():
            for T in range(ntile): a(f"v_add_u32 v{V_WC+T}, s{S_WRD}, v{V_WB+T}")
        def side(name, tests, fn, else_fn=None):
            if 'S' in dis:
                if else_fn: else_fn()
                return
            L = a.newlabel(lab + "_" + name)
            a(f"s_cmp_lg_u32 s{tests[0][0]}, {tests[0][1]}")
            a(f"s_cbranch_scc1 {L}e")
            fn()
            if else_fn:
                a(f"s_branch {L}x")
            a.label(L + "e")
            if else_fn:
                else_fn()
                a.label(L + "x")
        def dummy():
            a(f"buffer_load_dword v{V_ONES}, v{V_ONES+1}, s[{S_X}:{S_X+3}], 0 offen")
        pend = []
        def kstep(i, ks):
            n = i * 4 + ks
            buf = n % 3; nb = (n + 2) % 3
            nks = (ks + 2) & 3
            last_reads = (n + 2) >= 40
            if ks == 2:
                assert not pend
                a("s_waitcnt lgkmcnt(0)")
                if i == 9:
                    a("s_barrier")
                    hooks['post9']()
                if i < 9:
                    def st(lane):
                        if timing and 'W' in dis:
                            a(f"s_memtime s[{S_T0+2}:{S_T0+3}]")
                            a("s_waitcnt lgkmcnt(0)")
                            a(f"s_sub_u32 s{S_T0+2}, s{S_T0+2}, s{S_T0}")
                            a(f"v_writelane_b32 v{V_STAMP}, s{S_T0+2}, {lane}")
                    st(32 + 3 * i)
                    a(f"s_waitcnt vmcnt({[7, 8, 8, 8, 8, 8, 8, 8, 6 if typ == 'B' else 1][i]})")
                    st(33 + 3 * i)
                    a("s_barrier")
                    st(34 + 3 * i)
                    if i == 3: nonce_check()
                    a(f"s_mov_b32 s{S_M2+1}, s{S_XRD}"); a(f"s_mov_b32 s{S_M2+2}, s{S_WRD}")
                    advance_slot()
                    upd_w()
                    if i == 7 and typ == 'B': pend.append(prep_issue)
                    if i <= 6 and 'd' not in dis:
                        for g in dma_pieces(S_M2 + 1, S_M2 + 2): pend.append(g)
                        pend.append(next_sigma)
                        if i == 0:
                            pend.append(nonce_load)
                        elif i == 1 and typ == 'B':
                            pend.append(lambda: side("zs", [(S_ZW, 1)], zstore, dummy))
                        elif i == 3:
                            pend.append(xrow_store)
                        elif i == 4:
                            pend.append(lambda: side("c2", [(S_C2W, 1)], c2, dummy))
                        elif i == 5 and typ == 'B':
                            pend.append(lambda: side("zf", [(S_ZFW, 1)], lambda: flag_add('z'), dummy))
                        else:
                            pend.append(dummy)
            else:
                a(f"s_waitcnt lgkmcnt({0 if n == 39 else nreads})")
            rl = [] if last_reads else read_list(nks, nb)
            mf = []
            for T in range(ntile):
                for tt in range(nTT):
                    j = T * nTT + tt
                    if 'm' not in dis:
                        mf.append(f"v_mfma_f32_32x32x16_bf16 {vr(acc(j),16)}, {vr(wf(buf,T),4)}, {vr(xf(buf,tt),4)}, {'0' if n == 0 else vr(acc(j),16)}")
            half = (len(rl) + 1) // 2
            groups = [rl[:half], rl[half:]] + [[] for _ in range(8)]
            nm = max(2, len(mf))
            for j in range(nm):
                if j < len(mf): a(mf[j])
                for x in groups[j]: a(x)
                npop = 0
                if n < 2: npop = 2 if nm < 4 else 1
                elif j >= nm - 2: npop = 1
                if n == 1 and j == nm - 1: npop = 99
                for _ in range(npop):
                    if not pend: break
                    g = pend.pop(0)
                    if callable(g): g()
                    else:
                        for x in g: a(x)
                    if pend and callable(pend[0]) and pend[0] is next_sigma:
                        pend.pop(0)()
            if i == 0:
                def cs(buf=buf):
                    for T in range(ntile):
                        c = vr(ACS + 16 * T, 16)
                        a(f"v_mfma_f32_32x32x16_bf16 {c}, {vr(V_M+4,4)}, {vr(wf(buf,T),4)}, {'0' if (typ == 'A' or ks < 2) else c}")
                if typ == 'A':
                    side("cs", [(S_CSK, ks)], cs)
                else:
                    side("cs", [(S_CSK, ks & 1)], cs)
            if i == 1 and ks == 0:
                def cw():
                    nT_ = 4 if typ == 'A' else 2
                    a(f"s_mul_i32 s{S_T}, s{S_HP}, {nT_*128}")
                    a(f"s_lshl_b32 s{S_T+1}, s{S_TQ}, 10")
                    a(f"s_add_u32 s{S_T}, s{S_T}, s{S_T+1}")
                    a(f"v_lshlrev_b32 v{V_TMP+8}, 7, v{V_HF}")
                    a(f"v_lshl_add_u32 v{V_TMP+8}, v{V_T31}, 2, v{V_TMP+8}")
                    a(f"v_add_u32 v{V_TMP+8}, s{S_T}, v{V_TMP+8}")
                    a(f"v_cmp_eq_u32 vcc, 1, v{V_HF}")
                    a("s_nop 1")
                    for T in range(0, nT_, 2):
                        hi = ACS + 16 * (T + 1) if T + 1 < ntile else ACS + 16 * T
                        a(f"v_cndmask_b32 v{V_TMP+9}, v{ACS+16*T}, v{hi}, vcc")
                        a(f"ds_write_b32 v{V_TMP+8}, v{V_TMP+9} offset:{CSP+T*128}")
                side("cw", [(S_CSPUB, 1)], cw)
            if i == 8 and ks == 2:
                gran_issue(typ)
                if typ == 'B': bias_issue()
            if (i, ks) in hooks: hooks[(i, ks)]()
        def zstore():
            a.srd_off(S_WS, S_PTR, S_PTR + 1, KVS_OFF, KVS_BYTES)
            a(f"s_lshl_b32 s{S_T}, s{S_B}, 3")
            a(f"s_add_u32 s{S_T}, s{S_T}, s{S_WV}")
            a(f"s_lshl_b32 s{S_T}, s{S_T}, 10")
            a(f"v_lshlrev_b32 v{V_TMP+8}, 4, v{V_L}")
            for e in range(4): a(f"v_mov_b32 v{V_TMP+4+e}, 0")
            a(f"buffer_store_dwordx4 {vr(V_TMP+4,4)}, v{V_TMP+8}, s[{S_WS}:{S_WS+3}], s{S_T} offen{SC}")
        def c2():
            ncon = 4 if typ == 'A' else 2
            a(f"v_lshlrev_b32 v{V_TMP+8}, 2, v0")
            for c in range(ncon):
                a(f"ds_read_b32 v{ACS+c}, v{V_TMP+8} offset:{CSP+c*1024}")
            a(f"s_mul_i32 s{S_T}, s{S_ROLE}, 20480")
            a(f"s_lshl_b32 s{S_T+1}, s{S_MT}, 11")
            a(f"s_add_u32 s{S_T}, s{S_T}, s{S_T+1}")
            a(f"s_add_u32 s{S_T}, s{S_T}, {CSG_OFF}")
            a(f"v_lshl_add_u32 v{V_TMP+8}, v0, 3, s{S_T}")
            a("s_waitcnt lgkmcnt(0)")
            for c in range(1, ncon): a(f"v_add_f32 v{ACS}, v{ACS}, v{ACS+c}")
            a(f"v_mov_b32 v{ACS+1}, v{V_NON}")
            a(f"global_store_dwordx2 v{V_TMP+8}, {vr(ACS,2)}, s[{S_PTR}:{S_PTR+1}]{SC}")
        def nonce_load():
            a(f"global_load_dword v{V_NON}, v{V_ONES+1}, s[{S_PTR+2}:{S_PTR+3}] sc1")
        def nonce_check():
            L = a.newlabel(lab + "_nc")
            a(f"v_readfirstlane_b32 s{S_T}, v{V_NON}")
            a(f"s_cmp_lg_u32 s{S_T}, 0")
            a(f"s_cbranch_scc1 {L}ok")
            a(f"s_mov_b32 s{S_T+2}, 0")
            a.label(L)
            a("s_sleep 4")
            nonce_load()
            a("s_waitcnt vmcnt(0)")
            a(f"v_readfirstlane_b32 s{S_T}, v{V_NON}")
            a(f"s_add_u32 s{S_T+2}, s{S_T+2}, 1")
            a(f"s_cmp_gt_u32 s{S_T+2}, 4000")
            a(f"s_cbranch_scc1 {L}ok")
            a(f"s_cmp_eq_u32 s{S_T}, 0")
            a(f"s_cbranch_scc1 {L}")
            a.label(L + "ok")
            a(f"s_mov_b32 s100, s{S_T}")
        a("s_waitcnt lgkmcnt(0)")
        a("s_barrier")
        stamp(typ + " first barrier")
        a(f"s_mov_b32 s{S_M2+1}, {XOFF + 2*XSTG}"); a(f"s_mov_b32 s{S_M2+2}, {2*WSTG}")
        for g in dma_pieces(S_M2 + 1, S_M2 + 2): pend.append(g)
        pend.append(next_sigma)
        pend.append(trail)
        upd_w()
        for x in read_list(0, 0): a(x)
        for x in read_list(1, 1): a(x)
        for i in range(10):
            if timing and 'T' in dis:
                a(f"s_memtime s[{S_T0+2}:{S_T0+3}]")
                a("s_waitcnt lgkmcnt(0)")
                a(f"s_sub_u32 s{S_T0+2}, s{S_T0+2}, s{S_T0}")
                a(f"v_writelane_b32 v{V_STAMP}, s{S_T0+2}, {16+i}")
            for ks in range(4): kstep(i, ks)
        a(f"s_branch {lab}_EXIT")
        k = 0
        while k < len(ool):
            L, fn = ool[k]; k += 1
            a.label(L); fn(); a(f"s_branch {L}r")
        a.label(lab + "_EXIT")

    V_FL = V_M + 2
    def gran_issue(typ):
        for tt in range(1 if typ == 'A' else 2):
            a(f"v_lshrrev_b32 v{V_TMP+8}, 7, v{V_XA+tt}")
            a(f"s_lshl_b32 s{S_T}, s{S_MT}, 7")
            a(f"v_add_u32 v{V_TMP+8}, s{S_T}, v{V_TMP+8}")
            a(f"v_lshlrev_b32 v{V_TMP+8}, 4, v{V_TMP+8}")
            a(f"v_add_u32 v{V_TMP+8}, {STATG_OFF}, v{V_TMP+8}")
            a(f"global_load_dwordx4 {vr(V_E+24+4*tt,4)}, v{V_TMP+8}, s[{S_PTR}:{S_PTR+1}] sc1")
        L = a.newlabel(P + "_csl")
        a(f"s_cmp_ge_u32 s{S_WV}, 4"); a(f"s_cbranch_scc1 {L}")
        a(f"s_mul_i32 s{S_T}, s{S_ROLE}, 20480")
        a(f"s_add_u32 s{S_T}, s{S_T}, {CSG_OFF}")
        a(f"v_lshl_add_u32 v{V_TMP+8}, v0, 3, s{S_T}")
        for j in range(10):
            if j % 2 == 0 and j: a(f"v_add_u32 v{V_TMP+8}, 4096, v{V_TMP+8}")
            a(f"global_load_dwordx2 {vr(V_E+32+2*j,2)}, v{V_TMP+8}, s[{S_PTR}:{S_PTR+1}] offset:{(j%2)*2048} sc1")
        a.label(L)
    def gran_check(typ):
        Lp = a.newlabel(P + "_gr"); Lok = Lp + "ok"
        a(f"s_mov_b32 s{S_T+2}, 0")
        a.label(Lp)
        a("s_waitcnt vmcnt(0)")
        a(f"v_cmp_ne_u32 vcc, v{V_E+24+2}, v{V_NON}")
        if typ == 'B':
            a(f"v_cmp_ne_u32 s[{S_T}:{S_T+1}], v{V_E+28+2}, v{V_NON}")
            a(f"s_or_b64 vcc, vcc, s[{S_T}:{S_T+1}]")
        L = a.newlabel(P + "_grc")
        a(f"s_cmp_ge_u32 s{S_WV}, 4"); a(f"s_cbranch_scc1 {L}")
        for j in range(10):
            a(f"v_cmp_ne_u32 s[{S_T}:{S_T+1}], v{V_E+32+2*j+1}, v{V_NON}")
            a(f"s_or_b64 vcc, vcc, s[{S_T}:{S_T+1}]")
        a.label(L)
        a(f"s_add_u32 s{S_T+2}, s{S_T+2}, 1")
        a(f"s_cmp_gt_u32 s{S_T+2}, 4000")
        a(f"s_cbranch_scc1 {Lok}")
        a(f"s_cbranch_vccz {Lok}")
        a("s_sleep 4")
        gran_issue(typ)
        a(f"s_branch {Lp}")
        a.label(Lok)
        for tt in range(1 if typ == 'A' else 2):
            a(f"v_mov_b32 v{V_M+2*tt}, v{V_E+24+4*tt}")
            a(f"v_mov_b32 v{V_M+2*tt+1}, v{V_E+24+4*tt+1}")
    def stats_part1(typ):
        if 'S' not in dis: gran_check(typ)
        else: a("s_waitcnt vmcnt(0)")
        L = a.newlabel(P + "_cs2")
        a(f"s_cmp_ge_u32 s{S_WV}, 4"); a(f"s_cbranch_scc1 {L}")
        for j in range(1, 10):
            a(f"v_add_f32 v{V_E+32}, v{V_E+32}, v{V_E+32+2*j}")
        a(f"v_lshlrev_b32 v{V_TMP+8}, 2, v0")
        a(f"ds_write_b32 v{V_TMP+8}, v{V_E+32} offset:{CS}")
        a.label(L)

    a("s_cmp_ge_u32 s2, 256")
    a(f"s_cbranch_scc1 {P}_END")
    a("s_load_dwordx4 s[4:7], s[0:1], 0")
    a("s_load_dwordx4 s[8:11], s[0:1], 16")
    a("s_load_dwordx4 s[12:15], s[0:1], 40")
    a(f"s_load_dwordx2 s[{S_PTR+8}:{S_PTR+9}], s[0:1], 56")
    a(f"s_load_dwordx4 s[{S_T}:{S_T+3}], s[0:1], 80")
    if timing: a(f"s_memtime s[{S_T0}:{S_T0+1}]")
    if timing: a("s_memrealtime s[98:99]")
    a(f"v_and_b32 v{V_L}, 63, v0")
    a(f"v_lshrrev_b32 v{V_TMP}, 6, v0")
    a(f"v_and_b32 v{V_T31}, 31, v0")
    a(f"v_readfirstlane_b32 s{S_WV}, v{V_TMP}")
    a(f"v_bfe_u32 v{V_HF}, v0, 5, 1")
    a(f"s_and_b32 s{S_T+4}, s2, 7")
    a(f"s_lshr_b32 s{S_T+5}, s2, 3")
    a(f"s_and_b32 s{S_T+6}, s{S_T+4}, 1")
    a(f"s_lshl_b32 s{S_T+6}, s{S_T+6}, 3")
    a(f"s_and_b32 s{S_T+7}, s{S_T+5}, 7")
    a(f"s_add_u32 s{S_MT}, s{S_T+6}, s{S_T+7}")
    a(f"s_lshr_b32 s{S_T+4}, s{S_T+4}, 1")
    a(f"s_lshl_b32 s{S_T+4}, s{S_T+4}, 2")
    a(f"s_lshr_b32 s{S_T+5}, s{S_T+5}, 3")
    a(f"s_add_u32 s{S_ROLE}, s{S_T+4}, s{S_T+5}")
    a(f"s_lshr_b32 s{S_GI}, s{S_ROLE}, 1")
    a(f"s_and_b32 s{S_M2}, s{S_ROLE}, 1")
    a(f"s_sub_u32 s{S_SIG}, s{S_MT}, 10")
    a(f"s_cmp_lt_u32 s{S_MT}, 10")
    a(f"s_cselect_b32 s{S_SIG}, s{S_MT}, s{S_SIG}")
    if 'R' in dis: a(f"s_mov_b32 s{S_SIG}, 0")
    if 'H' in dis:
        a(f"s_and_b32 s{S_SIG}, s{S_MT}, 1"); a(f"s_mul_i32 s{S_SIG}, s{S_SIG}, 5")
    a(f"s_lshl_b32 s{S_XSO}, s{S_SIG}, 7")
    V_ROW, V_S8 = V_TMP + 1, V_TMP + 4
    a(f"v_lshrrev_b32 v{V_TMP}, 3, v{V_L}")
    a(f"s_lshl_b32 s{S_T+4}, s{S_WV}, 3")
    a(f"v_add_u32 v{V_ROW}, s{S_T+4}, v{V_TMP}")
    a(f"v_bfe_u32 v{V_TMP+2}, v{V_ROW}, 1, 3")
    a(f"v_and_b32 v{V_TMP+3}, 7, v{V_L}")
    a(f"v_xor_b32 v{V_TMP+2}, v{V_TMP+2}, v{V_TMP+3}")
    a(f"v_and_b32 v{V_TMP+8}, 3, v{V_TMP+2}")
    a(f"v_lshrrev_b32 v{V_TMP+2}, 2, v{V_TMP+2}")
    a(f"v_lshl_add_u32 v{V_TMP+2}, v{V_TMP+8}, 1, v{V_TMP+2}")
    a(f"v_mul_u32_u24 v{V_XV}, 1280, v{V_ROW}")
    a(f"v_lshl_add_u32 v{V_XV}, v{V_TMP+2}, 4, v{V_XV}")
    a(f"v_bfe_u32 v{V_S8}, v{V_L}, 4, 1")
    a(f"v_lshlrev_b32 v{V_S8}, 2, v{V_S8}")
    a(f"v_xor_b32 v{V_S8}, v{V_S8}, v{V_TMP+3}")
    a(f"s_lshl_b32 s{S_M0X}, s{S_WV}, 10")
    a(f"s_add_u32 s{S_M0W}, s{S_M0X}, {WOFF}")
    a(f"s_mov_b32 s{S_XRD}, {XOFF}"); a(f"s_mov_b32 s{S_WRD}, 0")
    a(f"s_mul_i32 s{S_T+4}, s{S_MT}, 163840")
    a(f"s_lshl_b32 s{S_T+5}, s{S_ROLE}, 3")
    a(f"s_add_u32 s{S_T+5}, s{S_T+5}, s{S_WV}")
    a(f"s_mul_i32 s{S_T+5}, s{S_T+5}, 1280")
    a(f"v_lshlrev_b32 v{V_M+6}, 4, v{V_L}")
    a(f"v_add_u32 v{V_TMP+8}, 1024, v{V_M+6}")
    a(f"v_cmp_gt_u32 vcc, 16, v{V_L}")
    a(f"v_mov_b32 v{V_TMP+7}, 0x7f000000")
    a("s_waitcnt lgkmcnt(0)")
    pst(32)
    a.srd_off(S_X, 4, 5, f"s{S_T+4}", 163840)
    a(f"v_cndmask_b32 v{V_M+7}, v{V_TMP+7}, v{V_TMP+8}, vcc")
    a(f"s_mov_b64 s[{S_PTR}:{S_PTR+1}], s[{S_T+2}:{S_T+3}]")
    a(f"s_mov_b64 s[{S_PTR+2}:{S_PTR+3}], s[{S_T}:{S_T+1}]")
    a(f"s_mov_b32 s{S_RSO}, s{S_T+5}")
    a(f"s_cmp_eq_u32 s2, 70"); a(f"s_cselect_b32 s{S_NM}, 1, 0")
    a(f"s_cmp_eq_u32 s{S_WV}, 7"); a(f"s_cselect_b32 s{S_NM}, s{S_NM}, 0")
    a(f"s_cmp_eq_u32 s{S_NM}, 0")
    a(f"s_cbranch_scc1 {P}_NM0")
    a(f"v_mov_b32 v{V_TMP+8}, {EPOCH_OFF}")
    a(f"global_load_dword v{V_NON}, v{V_TMP+8}, s[{S_PTR}:{S_PTR+1}] sc1")
    a.label(P + "_NM0")
    a(f"buffer_load_dwordx4 {vr(V_E+64,4)}, v{V_M+6}, s[{S_X}:{S_X+3}], s{S_RSO} offen")
    a(f"buffer_load_dwordx4 {vr(V_E+68,4)}, v{V_M+7}, s[{S_X}:{S_X+3}], s{S_RSO} offen")
    dma_x_now(0)
    pst(33)
    a(f"s_mov_b64 s[{S_PTR+4}:{S_PTR+5}], s[8:9]")
    a(f"s_mov_b64 s[{S_PTR+6}:{S_PTR+7}], s[14:15]")
    a(f"s_mov_b64 s[{S_PTR+10}:{S_PTR+11}], s[10:11]")
    if 'p' in dis or PRIO & 1:
        a(f"s_cmp_lt_u32 s{S_WV}, 4")
        a(f"s_cbranch_scc1 {P}_NOPRIO")
        a("s_setprio 1")
        a.label(P + "_NOPRIO")
    a(f"s_cmp_eq_u32 s{S_M2}, 1")
    a(f"s_cbranch_scc1 {P}_B")

    V_U, V_ROW0, V_RSW = V_M + 0, V_M + 1, V_M + 2
    def common_setup():
        a(f"v_bfe_u32 v{V_U}, v{V_L}, 4, 1")
        a(f"v_lshlrev_b32 v{V_U}, 2, v{V_U}")
        a(f"v_and_b32 v{V_TMP+8}, 3, v{V_L}")
        a(f"v_add_u32 v{V_U}, v{V_U}, v{V_TMP+8}")
        a(f"v_bfe_u32 v{V_ROW0}, v{V_L}, 2, 2")
        a(f"v_bfe_u32 v{V_RSW}, v{V_L}, 3, 1")
        a(f"v_lshlrev_b32 v{V_RSW}, 2, v{V_RSW}")
        a(f"v_lshl_add_u32 v{V_ROW0}, v{V_HF}, 3, v{V_ROW0}")
    def cs_roles():
        a(f"s_cmp_lt_u32 s{S_MT}, 10")
        a(f"s_cselect_b32 s{S_CSK}, s{S_TQ}, 99")
        a(f"s_cselect_b32 s{S_CSPUB}, 1, 0")
        a(f"s_cselect_b32 s{S_C2W}, 1, 0")
        a(f"s_cmp_lt_u32 s{S_WV}, 4"); a(f"s_cselect_b32 s{S_C2W}, s{S_C2W}, 0")
        a(f"v_mov_b32 v{V_ONES+1}, 0")
    def after_setup():
        pst(35)
        prologue_w2()
        for i in range(4): a(f"v_mov_b32 v{V_M+4+i}, {hex(ONES2)}")
        pst(36)
        a("s_waitcnt vmcnt(12)")
        xrow_stats()
        a("s_waitcnt vmcnt(6)")
        pst(37)
        L = a.newlabel(P + "_nm")
        a(f"s_cmp_eq_u32 s{S_NM}, 0")
        a(f"s_cbranch_scc1 {L}")
        a(f"v_add_u32 v{V_NON}, 1, v{V_NON}")
        a(f"v_max_u32 v{V_NON}, 1, v{V_NON}")
        a(f"v_mov_b32 v{V_TMP+7}, 0")
        a(f"v_mov_b32 v{V_TMP+8}, {EPOCH_OFF}")
        a("s_mov_b64 exec, 1")
        a(f"global_store_dword v{V_TMP+7}, v{V_NON}, s[{S_PTR+2}:{S_PTR+3}] sc0 sc1")
        a(f"global_store_dword v{V_TMP+8}, v{V_NON}, s[{S_PTR}:{S_PTR+1}] sc0 sc1")
        a("s_mov_b64 exec, -1")
        a.label(L)

    a(f"s_lshr_b32 s{S_HP}, s{S_WV}, 2")
    a(f"s_and_b32 s{S_TQ}, s{S_WV}, 3")
    for p in range(4):
        a.srd(S_W0 + 4 * p, 6, 7, 640 * 3840)
        a(f"s_mov_b32 s{S_WSTEP+p}, {64*3840}")
    a(f"s_mul_i32 s{S_T}, s{S_GI}, 160")
    a(f"s_lshl_b32 s{S_T+1}, s{S_GI}, 7")
    a(f"v_mul_u32_u24 v{V_TMP+5}, 3840, v{V_ROW}")
    a(f"v_lshl_add_u32 v{V_TMP+6}, v{V_S8}, 4, v{V_TMP+5}")
    a(f"s_add_u32 s{S_T+2}, s{S_T}, 1280")
    a(f"v_add_u32 v{V_WV}, s{S_T+2}, v{V_TMP+6}")
    a(f"s_add_u32 s{S_T+2}, s{S_T}, {2560+32}")
    a(f"v_add_u32 v{V_WV+2}, s{S_T+2}, v{V_TMP+6}")
    a(f"v_add_u32 v{V_WV+3}, s{S_T+1}, v{V_TMP+6}")
    a(f"v_and_b32 v{V_TMP+7}, 1, v{V_S8}")
    a(f"v_lshl_add_u32 v{V_TMP+7}, v{V_TMP+7}, 4, v{V_TMP+5}")
    a(f"v_mov_b32 v{V_TMP+8}, 2560")
    a(f"v_mov_b32 v{V_TMP+9}, {1280+128}")
    a(f"v_cmp_gt_u32 vcc, 4, v{V_S8}")
    a("s_nop 1")
    a(f"v_cndmask_b32 v{V_TMP+8}, v{V_TMP+8}, v{V_TMP+9}, vcc")
    a(f"v_add3_u32 v{V_WV+1}, v{V_TMP+7}, v{V_TMP+8}, s{S_T}")
    prologue_w()
    pst(34)
    a(f"s_mul_i32 s{S_T}, s{S_GI}, 3200")
    a.srd_off(S_WS, S_PTR + 4, S_PTR + 5, f"s{S_T}", 3200)
    common_setup()
    a(f"v_and_b32 v{V_TMP+1}, 3, v{V_U}")
    a(f"v_lshlrev_b32 v{V_TMP+1}, 3, v{V_TMP+1}")
    a(f"v_cmp_lt_u32 vcc, 3, v{V_U}")
    for T in range(4):
        cs = []
        for hp in (0, 1):
            TT = T if T < len(TILES[hp]) else 0
            ent = []
            for u in range(8):
                q, hf = u >> 1, u & 1
                c, hi = tile_quad(hp, TT, q, hf)
                ent.append((SLOT_A[c] << 1) | hi)
            cs.append((sum(ent[s] << (8 * s) for s in range(4)), sum(ent[4 + s] << (8 * s) for s in range(4))))
        a(f"s_cmp_eq_u32 s{S_HP}, 0")
        a(f"s_mov_b32 s{S_T+2}, {hex(cs[1][0])}")
        a(f"s_cselect_b32 s{S_T+2}, {hex(cs[0][0])}, s{S_T+2}")
        a(f"s_mov_b32 s{S_T+3}, {hex(cs[1][1])}")
        a(f"s_cselect_b32 s{S_T+3}, {hex(cs[0][1])}, s{S_T+3}")
        a(f"v_mov_b32 v{V_TMP+2}, s{S_T+2}")
        a(f"v_mov_b32 v{V_TMP+3}, s{S_T+3}")
        a(f"v_cndmask_b32 v{V_TMP+2}, v{V_TMP+2}, v{V_TMP+3}, vcc")
        a(f"v_lshrrev_b32 v{V_TMP+2}, v{V_TMP+1}, v{V_TMP+2}")
        a(f"v_and_b32 v{V_TMP+3}, 1, v{V_TMP+2}")
        a(f"v_bfe_u32 v{V_TMP+4}, v{V_TMP+2}, 1, 3")
        a(f"v_bfe_u32 v{V_TMP+5}, v{V_TMP+2}, 4, 2")
        a(f"v_xor_b32 v{V_TMP+4}, v{V_TMP+4}, v{V_RSW}")
        a(f"v_lshlrev_b32 v{V_TMP+4}, 4, v{V_TMP+4}")
        a(f"v_lshl_add_u32 v{V_TMP+4}, v{V_TMP+3}, 3, v{V_TMP+4}")
        a(f"v_lshl_add_u32 v{V_TMP+4}, v{V_TMP+5}, 13, v{V_TMP+4}")
        a(f"v_lshl_add_u32 v{V_TMP+4}, v{V_ROW0}, 7, v{V_TMP+4}")
        a(f"v_add_u32 v{V_WB+T}, {WOFF}, v{V_TMP+4}")
    def x_addr(tts, rowbase_sgpr_shift, sg):
        a(f"v_bfe_u32 v{V_TMP+1}, v{V_T31}, 1, 3")
        a(f"v_lshlrev_b32 v{V_TMP+2}, 2, v{V_HF}")
        a(f"v_xor_b32 v{V_TMP+1}, v{V_TMP+1}, v{V_TMP+2}")
        a(f"s_lshl_b32 s{S_T}, s{sg}, {rowbase_sgpr_shift}")
        for tt in range(tts):
            a(f"v_add_u32 v{V_TMP+2}, s{S_T}, v{V_T31}")
            if tt: a(f"v_add_u32 v{V_TMP+2}, {32*tt}, v{V_TMP+2}")
            a(f"v_lshlrev_b32 v{V_TMP+2}, 7, v{V_TMP+2}")
            a(f"v_lshl_add_u32 v{V_XA+tt}, v{V_TMP+1}, 4, v{V_TMP+2}")
    x_addr(1, 5, S_TQ)
    cs_roles()
    a(f"v_lshlrev_b32 v{V_TMP+1}, 2, v0")
    a(f"v_mov_b32 v{V_TMP+2}, 0")
    a(f"v_cmp_gt_u32 vcc, 320, v0")
    a(f"s_and_saveexec_b64 s[{S_T+6}:{S_T+7}], vcc")
    a(f"ds_write_b32 v{V_TMP+1}, v{V_TMP+2} offset:{ZERO}")
    a(f"s_mov_b64 exec, s[{S_T+6}:{S_T+7}]")
    after_setup()
    def trailA():
        a(f"v_lshlrev_b32 v{V_TMP+8}, 4, v0")
        a(f"buffer_load_dwordx4 {vr(V_E+76,4)}, v{V_TMP+8}, s[{S_WS}:{S_WS+3}], 0 offen")
    V_MN, V_RS, V_C = V_MN0, V_RS0, V_M + 2
    CSR = V_E
    A2 = V_E + 48
    V_VPA, V_PHA, V_QA, V_A2A, V_CSA = V_M + 3, V_M + 4, V_M + 5, V_M + 6, V_M + 7
    def wphi_lds():
        a(f"v_lshlrev_b32 v{V_TMP+8}, 4, v0")
        a(f"v_cmp_gt_u32 vcc, 200, v0")
        a(f"s_and_saveexec_b64 s[{S_T+6}:{S_T+7}], vcc")
        a(f"ds_write_b128 v{V_TMP+8}, {vr(V_E+76,4)} offset:{WPHI}")
        a(f"s_mov_b64 exec, s[{S_T+6}:{S_T+7}]")
    def a_addr():
        T0 = V_TMP + 2
        a(f"v_bfe_u32 v{T0}, v{V_L}, 4, 1")
        a(f"v_lshlrev_b32 v{T0}, 2, v{T0}")
        a(f"v_and_b32 v{T0+1}, 3, v{V_L}")
        a(f"v_add_u32 v{T0}, v{T0}, v{T0+1}")
        a(f"v_and_b32 v{T0+1}, 1, v{T0}")
        a(f"v_lshrrev_b32 v{T0}, 1, v{T0}")
        a(f"v_bfe_u32 v{T0+2}, v{V_L}, 2, 2")
        a(f"v_mul_u32_u24 v{T0+2}, 40, v{T0+2}")
        a(f"v_lshl_add_u32 v{T0+2}, v{T0}, 3, v{T0+2}")
        a(f"s_mul_i32 s{S_T}, s{S_HP}, 1600")
        a(f"v_mul_u32_u24 v{T0+3}, 800, v{T0+1}")
        a(f"v_add3_u32 v{T0+2}, v{T0+2}, v{T0+3}, s{S_T}")
        a(f"v_add_u32 v{T0+2}, {WPHI}, v{T0+2}")
        a(f"v_mov_b32 v{T0+3}, {ZERO}")
        a(f"v_cmp_eq_u32 vcc, v{T0+1}, v{V_HF}")
        a(f"s_mul_i32 s{S_T}, s{S_HP}, 512")
        a(f"v_lshl_add_u32 v{V_CSA}, v{V_HF}, 4, s{S_T}")
        a(f"v_cndmask_b32 v{V_A2A}, v{T0+3}, v{T0+2}, vcc")
        a(f"v_lshrrev_b32 v{T0}, 7, v{V_XA}")
        a(f"s_lshl_b32 s{S_T}, s{S_HP}, 1")
        a(f"v_add_u32 v{T0+1}, s{S_T}, v{V_HF}")
        a(f"v_mul_u32_u24 v{V_VPA}, 192, v{T0}")
        a(f"v_mad_u32_u24 v{V_VPA}, v{T0+1}, 48, v{V_VPA}")
        a(f"v_add_u32 v{V_VPA}, {VP}, v{V_VPA}")
        a(f"v_mul_u32_u24 v{V_PHA}, 320, v{T0}")
        a(f"v_mul_u32_u24 v{T0+2}, 80, v{T0+1}")
        a(f"v_add_u32 v{V_PHA}, v{V_PHA}, v{T0+2}")
        a(f"s_lshl_b32 s{S_T}, s{S_MT}, 2")
        a(f"s_add_u32 s{S_T}, s{S_T}, s{S_TQ}")
        a(f"s_mul_i32 s{S_T}, s{S_T}, 80")
        a(f"s_lshl_b32 s{S_T+1}, s{S_GI}, 3")
        a(f"s_add_u32 s{S_T}, s{S_T}, s{S_T+1}")
        a(f"s_lshl_b32 s{S_T}, s{S_T}, 9")
        a(f"v_lshl_add_u32 v{V_QA}, v{V_T31}, 4, s{S_T}")
    def a_h91():
        stats_part1('A')
    def a_post9():
        for T in range(3):
            for q in range(4):
                a(f"ds_read_b128 {vr(CSR+16*T+4*q,4)}, v{V_CSA} offset:{CS+T*128+q*32}")
        for xy in range(2):
            for s_ in range(3):
                for rd in range(2):
                    a(f"ds_read_b64_tr_b16 {vr(A2+(xy*3+s_)*4+2*rd,2)}, v{V_A2A} offset:{s_*320+rd*160+xy*32}")
    hooksA = {(2, 3): wphi_lds, (5, 3): a_addr, (9, 1): a_h91, 'post9': a_post9}
    a(f"s_cmp_lg_u32 s{S_HP}, 0")
    a(f"s_cbranch_scc1 {P}A_H1")
    run_main('A', 4, P + "A0", trailA, hooksA)
    a(f"s_branch {P}A_EPI")
    a.label(P + "A_H1")
    run_main('A', 3, P + "A1", trailA, hooksA)
    a.label(P + "A_EPI")
    stamp("A main loop end")
    def qregs(lg):
        T, p = where(0, lg)
        return [acc(T) + 4 * p + r for r in range(4)]
    def cs_of(r): return CSR + (r - V_ACC)
    kv_ = sum([qregs(('k', i)) for i in range(5)], [])
    vv = sum([qregs(('v', i)) for i in range(5)], [])
    a("s_nop 7"); a("s_nop 3")
    for r in kv_: a(f"v_fmac_f32 v{r}, v{cs_of(r)}, v{V_MN}")
    KF = V_XF
    for p in range(10):
        a(f"v_cvt_pk_bf16_f32 v{KF+p}, v{kv_[2*p]}, v{kv_[2*p+1]}")
    a(f"v_mov_b32 v{KF+10}, 0"); a(f"v_mov_b32 v{KF+11}, 0")
    a(f"v_mul_f32 v{V_C}, {hex(LOG2E)}, v{V_RS}")
    PX, PY = V_XF + 24, V_XF + 40
    a("s_nop 0")
    for xy, PP in ((0, PX), (1, PY)):
        for s_ in range(3):
            c = "0" if s_ == 0 else vr(PP, 16)
            a(f"v_mfma_f32_32x32x16_bf16 {vr(PP,16)}, {vr(A2+(xy*3+s_)*4,4)}, {vr(KF+4*s_,4)}, {c}")
    CL3 = V_XF + 56
    for q in range(4):
        a(f"ds_read_b128 {vr(CL3+4*q,4)}, v{V_CSA} offset:{CS+3*128+q*32}")
    a.srd_off(S_WS, S_PTR, S_PTR + 1, QBUF_OFF, QBUF_BYTES)
    def store_light(src, csr, addr, pk):
        for p in range(4):
            for e in range(2):
                r = src + 2 * p + e
                a(f"v_fmac_f32 v{r}, v{csr+2*p+e}, v{V_MN}")
                a(f"v_mul_f32 v{r}, v{r}, v{V_RS}")
            a(f"v_cvt_pk_bf16_f32 v{pk+p}, v{src+2*p}, v{src+2*p+1}")
        a(f"buffer_store_dwordx4 {vr(pk,4)}, v{addr}, s[{S_WS}:{S_WS+3}], 0 offen{OSC}")
    l00, l01 = LIGHTS[0][0][0][1], LIGHTS[0][0][1][1]; l10, l11 = LIGHTS[1][0][0][1], LIGHTS[1][0][1][1]
    assert l01 - l00 == l11 - l10
    a(f"s_cmp_eq_u32 s{S_HP}, 0")
    a(f"s_mov_b32 s{S_T}, {l10*512}")
    a(f"s_cselect_b32 s{S_T}, {l00*512}, s{S_T}")
    a(f"v_mul_u32_u24 v{V_TMP+5}, {(l01-l00)*512}, v{V_HF}")
    a(f"v_add3_u32 v{V_TMP+5}, v{V_TMP+5}, v{V_QA}, s{S_T}")
    store_light(acc(0), CSR, V_TMP + 5, A2)
    a(f"s_cmp_lg_u32 s{S_HP}, 0")
    a(f"s_cbranch_scc1 {P}A_noT3")
    (m0, m1), (n0, n1) = LIGHTS[0][1], LIGHTS[0][2]
    a(f"v_mul_u32_u24 v{V_TMP+5}, {(m1[1]-m0[1])*512}, v{V_HF}")
    a(f"v_add_u32 v{V_TMP+5}, v{V_TMP+5}, v{V_QA}")
    a(f"v_add_u32 v{V_TMP+6}, {n0[1]*512}, v{V_TMP+5}")
    assert n1[1] - n0[1] == m1[1] - m0[1]
    if m0[1]: a(f"v_add_u32 v{V_TMP+5}, {m0[1]*512}, v{V_TMP+5}")
    a("s_waitcnt lgkmcnt(0)")
    store_light(acc(3), CL3, V_TMP + 5, A2 + 4)
    store_light(acc(3) + 8, CL3 + 8, V_TMP + 6, A2 + 8)
    a.label(P + "A_noT3")
    a("s_barrier")
    VPK = V_XF + 12
    for p in range(10):
        for e in range(2):
            r = vv[2 * p + e]
            a(f"v_fmac_f32 v{r}, v{cs_of(r)}, v{V_MN}")
            a(f"v_mul_f32 v{r}, v{r}, v{V_RS}")
        a(f"v_cvt_pk_bf16_f32 v{VPK+p}, v{vv[2*p]}, v{vv[2*p+1]}")
    a(f"v_mov_b32 v{VPK+10}, 0x3f80")
    a(f"v_mov_b32 v{VPK+11}, 0")
    for j in range(3):
        a(f"ds_write_b128 v{V_VPA}, {vr(VPK+4*j,4)} offset:{16*j}")
    stamp("A before softmax")
    p_ = [PX + i for i in range(16)] + [PY + i for i in range(4)]
    EP = CSR; EM = CSR + 20
    PH = V_XF
    softmax20(a, p_, V_C, EP, EM, PH, V_TMP)
    for j in range(5):
        a(f"ds_write_b128 v{V_PHA}, {vr(PH+4*j,4)} offset:{PHI+16*j}")
    stamp("A after softmax")
    a(f"v_mov_b32 v{V_TMP+4}, 0")
    a(f"global_load_dword v{V_TMP+5}, v{V_TMP+4}, s[{S_PTR+2}:{S_PTR+3}] offset:128 sc1")
    a(f"s_lshr_b32 s{S_T}, s{S_WV}, 1")
    a(f"s_and_b32 s{S_T+1}, s{S_WV}, 1")
    W0 = acc(1)
    V_MNL, V_RSL, V_QAL = V_MN, V_RS, V_QA
    a(f"v_bfe_u32 v{W0}, v{V_L}, 2, 2")
    a(f"v_lshl_add_u32 v{W0}, v{V_HF}, 3, v{W0}")
    a(f"v_bfe_u32 v{W0+1}, v{V_L}, 4, 1")
    a(f"v_lshlrev_b32 v{W0+1}, 2, v{W0+1}")
    a(f"v_and_b32 v{W0+2}, 3, v{V_L}")
    a(f"v_add_u32 v{W0+1}, v{W0+1}, v{W0+2}")
    a(f"s_mul_i32 s{S_T+2}, s{S_T}, 48")
    a(f"s_add_u32 s{S_T+2}, s{S_T+2}, {VP}")
    a(f"v_mul_u32_u24 v{W0+2}, 192, v{W0}")
    a(f"v_lshl_add_u32 v{W0+2}, v{W0+1}, 3, v{W0+2}")
    a(f"v_add_u32 v{W0+2}, s{S_T+2}, v{W0+2}")
    a(f"s_mul_i32 s{S_T+2}, s{S_T}, 80")
    a(f"s_lshl_b32 s{S_T+3}, s{S_T+1}, 6")
    a(f"s_add_u32 s{S_T+2}, s{S_T+2}, s{S_T+3}")
    a(f"v_mul_u32_u24 v{W0+3}, 320, v{W0}")
    a(f"v_lshl_add_u32 v{W0+3}, v{W0+1}, 3, v{W0+3}")
    a(f"v_add_u32 v{W0+3}, s{S_T+2}, v{W0+3}")
    a.srd_off(S_WS, S_PTR, S_PTR + 1, KVS_OFF, KVS_BYTES)
    a(f"s_lshl_b32 s{S_T+2}, s{S_GI}, 2")
    a(f"s_add_u32 s{S_T+2}, s{S_T+2}, s{S_T}")
    a(f"s_mul_i32 s{S_T+2}, s{S_T+2}, 3360")
    a(f"s_lshl_b32 s{S_T+3}, s{S_T+1}, 7")
    a(f"s_add_u32 s{S_T+2}, s{S_T+2}, s{S_T+3}")
    a(f"v_mul_u32_u24 v{W0}, 640, v{V_HF}")
    a(f"v_lshl_add_u32 v{W0}, v{V_T31}, 2, v{W0}")
    a(f"v_add_u32 v{W0}, s{S_T+2}, v{W0}")
    a("s_waitcnt lgkmcnt(0)")
    a("s_barrier")
    stamp("A phi barrier")
    KA, KB = V_XF, V_XF + 32
    for kk in range(8):
        for rd in range(2):
            a(f"ds_read_b64_tr_b16 {vr(KA+4*kk+2*rd,2)}, v{W0+2} offset:{kk*3072+rd*768}")
            a(f"ds_read_b64_tr_b16 {vr(KB+4*kk+2*rd,2)}, v{W0+3} offset:{PHI+kk*5120+rd*1280}")
    KVD = V_E
    for kk in range(8):
        a(f"s_waitcnt lgkmcnt({min(15, 4*(7-kk))})")
        c = "0" if kk == 0 else vr(KVD, 16)
        a(f"v_mfma_f32_32x32x16_bf16 {vr(KVD,16)}, {vr(KA+4*kk,4)}, {vr(KB+4*kk,4)}, {c}")
    stamp("A kv mfma issued")
    a(f"s_mov_b32 s{S_T+5}, 0")
    a.label(P + "A_POLL")
    a("s_waitcnt vmcnt(0)")
    a(f"s_add_u32 s{S_T+5}, s{S_T+5}, 1")
    a(f"s_cmp_gt_u32 s{S_T+5}, 4000")
    a(f"s_cbranch_scc1 {P}A_GO")
    a(f"v_readfirstlane_b32 s{S_T+4}, v{V_TMP+5}")
    a(f"s_cmp_ge_u32 s{S_T+4}, 14")
    a(f"s_cbranch_scc1 {P}A_GO")
    a("s_sleep 2")
    a(f"global_load_dword v{V_TMP+5}, v{V_TMP+4}, s[{S_PTR+2}:{S_PTR+3}] offset:128 sc1")
    a(f"s_branch {P}A_POLL")
    a.label(P + "A_GO")
    a(f"s_cmp_eq_u32 s{S_T+1}, 0")
    a(f"s_cselect_b32 s{S_T+4}, 32, 8")
    a(f"v_cmp_gt_u32 vcc, s{S_T+4}, v{V_T31}")
    a(f"s_and_b64 exec, exec, vcc")
    a("s_nop 7"); a("s_nop 3")
    for q in range(2):
        for r in range(4):
            a(f"buffer_atomic_add_f32 v{KVD+4*q+r}, v{W0}, s[{S_WS}:{S_WS+3}], 0 offen offset:{(8*q+r)*160}")
    a(f"buffer_atomic_add_f32 v{KVD+8}, v{W0}, s[{S_WS}:{S_WS+3}], 0 offen offset:{16*160}")
    a(f"v_cmp_eq_u32 vcc, 0, v{V_HF}")
    a(f"s_and_b64 exec, exec, vcc")
    for r in range(1, 4):
        a(f"buffer_atomic_add_f32 v{KVD+8+r}, v{W0}, s[{S_WS}:{S_WS+3}], 0 offen offset:{(16+r)*160}")
    a("s_mov_b64 exec, -1")
    stamp("A atomics issued")
    a(f"s_branch {P}_DONE")

    a.label(P + "_B")
    a(f"s_and_b32 s{S_HP}, s{S_WV}, 3")
    a(f"s_lshr_b32 s{S_TQ}, s{S_WV}, 2")
    a(f"s_lshl_b32 s{S_T}, s{S_GI}, 2")
    a(f"s_sub_u32 s{S_T+1}, s{S_GI}, 5")
    a(f"s_max_i32 s{S_T+1}, s{S_T+1}, 0")
    a(f"s_sub_u32 s{S_N}, s{S_T}, s{S_T+1}")
    a(f"s_cmp_lt_u32 s{S_GI}, 5")
    a(f"s_cselect_b32 s{S_CNT}, 4, 3")
    for p in range(4):
        a(f"s_cmp_lt_u32 {p}, s{S_CNT}")
        a(f"s_cselect_b32 s{S_T}, {p}, 0")
        a(f"s_add_u32 s{S_T}, s{S_T}, s{S_N}")
        a(f"s_add_u32 s{S_T+2}, s{S_T}, 8")
        a(f"s_sub_u32 s{S_T+3}, s{S_T}, 2")
        a(f"s_cmp_lt_u32 s{S_T}, 2")
        a(f"s_cselect_b32 s{S_W0+4*p}, s6, s12")
        a(f"s_cselect_b32 s{S_W0+4*p+1}, s7, s13")
        a(f"s_mov_b32 s{S_W0+4*p+2}, {640*3456}")
        a(f"s_cselect_b32 s{S_W0+4*p+2}, {640*3840}, s{S_W0+4*p+2}")
        a(f"s_mov_b32 s{S_W0+4*p+3}, 0x00020000")
        a(f"s_mov_b32 s{S_T+1}, 3456")
        a(f"s_cselect_b32 s{S_T+1}, 3840, s{S_T+1}")
        a(f"s_cselect_b32 s{S_T+2}, s{S_T+2}, s{S_T+3}")
        a(f"s_and_b32 s{S_W0+4*p+1}, s{S_W0+4*p+1}, 0xffff")
        a(f"s_lshl_b32 s{S_WSTEP+p}, s{S_T+1}, 6")
        a(f"s_lshl_b32 s{S_T+2}, s{S_T+2}, 7")
        a(f"v_mul_lo_u32 v{V_TMP+5}, v{V_ROW}, s{S_T+1}")
        a(f"v_lshl_add_u32 v{V_TMP+5}, v{V_S8}, 4, v{V_TMP+5}")
        a(f"v_add_u32 v{V_WV+p}, s{S_T+2}, v{V_TMP+5}")
    prologue_w()
    a(f"s_add_u32 s{S_N}, s{S_N}, s{S_HP}")
    common_setup()
    a(f"v_and_b32 v{V_TMP+1}, 1, v{V_U}")
    a(f"v_bfe_u32 v{V_TMP+2}, v{V_U}, 1, 1")
    a(f"v_bfe_u32 v{V_TMP+3}, v{V_U}, 2, 1")
    a(f"v_lshl_add_u32 v{V_TMP+1}, v{V_TMP+3}, 1, v{V_TMP+1}")
    a(f"s_lshl_b32 s{S_T}, s{S_HP}, 13")
    a(f"s_add_u32 s{S_T}, s{S_T}, {WOFF}")
    for T in range(2):
        a(f"v_add_u32 v{V_TMP+4}, {4*T}, v{V_TMP+1}")
        a(f"v_xor_b32 v{V_TMP+4}, v{V_TMP+4}, v{V_RSW}")
        a(f"v_lshlrev_b32 v{V_TMP+4}, 4, v{V_TMP+4}")
        a(f"v_lshl_add_u32 v{V_TMP+4}, v{V_TMP+2}, 3, v{V_TMP+4}")
        a(f"v_lshl_add_u32 v{V_TMP+4}, v{V_ROW0}, 7, v{V_TMP+4}")
        a(f"v_add_u32 v{V_WB+T}, s{S_T}, v{V_TMP+4}")
    x_addr(2, 6, S_TQ)
    cs_roles()
    a(f"s_lshl_b32 s{S_B}, s{S_MT}, 3")
    a(f"s_add_u32 s{S_B}, s{S_B}, s{S_GI}")
    after_setup()
    a(f"s_cmp_lt_u32 s{S_B}, 14")
    a(f"s_cselect_b32 s{S_ZW}, 1, 0")
    a(f"s_cmp_eq_u32 s{S_WV}, 2")
    a(f"s_cselect_b32 s{S_ZFW}, s{S_ZW}, 0")
    def trailB():
        a(f"buffer_load_dword v{V_ONES}, v{V_ONES+1}, s[{S_X}:{S_X+3}], 0 offen")
    CSR = V_E
    def b_post9():
        a(f"s_mul_i32 s{S_T}, s{S_HP}, 256")
        a(f"v_lshl_add_u32 v{V_TMP+8}, v{V_HF}, 4, s{S_T}")
        for T in range(2):
            for q in range(4):
                a(f"ds_read_b128 {vr(CSR+16*T+4*q,4)}, v{V_TMP+8} offset:{CS+T*128+q*32}")
    run_main('B', 2, P + "B", trailB, {(9, 1): lambda: stats_part1('B'), 'post9': b_post9})
    stamp("B main loop end")
    prep_finish()
    stamp("B prep done")
    a(f"s_cmp_ge_u32 s{S_HP}, s{S_CNT}")
    a(f"s_cbranch_scc1 {P}B_EPI_DONE")
    a(f"s_cmp_lt_u32 s{S_N}, 2")
    a(f"s_cbranch_scc1 {P}B_QLINE")
    a(f"s_sub_u32 s{S_T}, s{S_N}, 2")
    BIA = V_E + 52
    a(f"s_lshl_b32 s{S_T+1}, s{S_MT}, 3")
    a(f"s_lshl_b32 s{S_T+2}, s{S_TQ}, 2")
    a(f"s_add_u32 s{S_T+1}, s{S_T+1}, s{S_T+2}")
    a(f"s_mul_i32 s{S_T+1}, s{S_T+1}, {KS}")
    a(f"s_lshl_b32 s{S_T+2}, s{S_T}, 1")
    a(f"s_add_u32 s{S_T+1}, s{S_T+1}, s{S_T+2}")
    a(f"s_lshl_b32 s{S_T+1}, s{S_T+1}, 10")
    a(f"v_lshrrev_b32 v{V_TMP+5}, 4, v{V_T31}")
    a(f"v_mul_u32_u24 v{V_TMP+5}, {KS*1024}, v{V_TMP+5}")
    a(f"v_and_b32 v{V_TMP+6}, 15, v{V_T31}")
    a(f"v_lshl_add_u32 v{V_TMP+6}, v{V_HF}, 4, v{V_TMP+6}")
    a(f"v_lshl_add_u32 v{V_TMP+5}, v{V_TMP+6}, 4, v{V_TMP+5}")
    a(f"v_add_u32 v{V_TMP+5}, s{S_T+1}, v{V_TMP+5}")
    a(f"v_add_u32 v{V_TMP+6}, {2*KS*1024}, v{V_TMP+5}")
    a("s_waitcnt lgkmcnt(0)")
    MR = [(V_MN0, V_RS0), (V_MN1, V_RS1)]
    for tt in range(2):
        for T in range(2):
            A_ = acc(T * 2 + tt)
            for i in range(16):
                a(f"v_fmac_f32 v{A_+i}, v{CSR+16*T+i}, v{MR[tt][0]}")
    BF = V_XF + 20
    for T in range(2):
        for p in range(2):
            for j in range(4):
                src = BIA + (T * 2 + p) * 4 + j
                a(f"v_lshlrev_b32 v{BF+16*T+8*p+2*j}, 16, v{src}")
                a(f"v_and_b32 v{BF+16*T+8*p+2*j+1}, 0xffff0000, v{src}")
    a.srd_off(S_WS, S_PTR, S_PTR + 1, ABUF_OFF, ABUF_BYTES)
    OPK = V_E
    for tt in range(2):
        for T in range(2):
            A_ = acc(T * 2 + tt)
            for i in range(16):
                a(f"v_fma_f32 v{A_+i}, v{A_+i}, v{MR[tt][1]}, v{BF+16*T+i}")
                a(f"v_max_f32 v{A_+i}, 0, v{A_+i}")
                a(f"v_mul_f32 v{A_+i}, v{A_+i}, v{A_+i}")
            for p in range(2):
                o = OPK + ((tt * 2 + T) * 2 + p) * 4
                for j in range(4):
                    a(f"v_cvt_pk_bf16_f32 v{o+j}, v{A_+8*p+2*j}, v{A_+8*p+2*j+1}")
                a(f"buffer_store_dwordx4 {vr(o,4)}, v{V_TMP+5+tt}, s[{S_WS}:{S_WS+3}], 0 offen offset:{T*1024+p*512}{OSC}")
    a(f"s_branch {P}B_EPI_DONE")
    a.label(P + "B_QLINE")
    a.srd_off(S_WS, S_PTR, S_PTR + 1, QBUF_OFF, QBUF_BYTES)
    a(f"s_lshl_b32 s{S_T+1}, s{S_MT}, 2")
    a(f"s_lshl_b32 s{S_T+2}, s{S_TQ}, 1")
    a(f"s_add_u32 s{S_T+1}, s{S_T+1}, s{S_T+2}")
    a(f"s_mul_i32 s{S_T+1}, s{S_T+1}, 80")
    a(f"s_lshl_b32 s{S_T+2}, s{S_N}, 3")
    a(f"s_add_u32 s{S_T+1}, s{S_T+1}, s{S_T+2}")
    a(f"s_add_u32 s{S_T+1}, s{S_T+1}, 64")
    a(f"s_lshl_b32 s{S_T+1}, s{S_T+1}, 9")
    a(f"v_lshlrev_b32 v{V_TMP+5}, 9, v{V_HF}")
    a(f"v_lshl_add_u32 v{V_TMP+5}, v{V_T31}, 4, v{V_TMP+5}")
    a(f"v_add_u32 v{V_TMP+5}, s{S_T+1}, v{V_TMP+5}")
    a(f"v_add_u32 v{V_TMP+6}, {80*512}, v{V_TMP+5}")
    a("s_waitcnt lgkmcnt(0)")
    OPK = V_XF + 20
    for tt in range(2):
        for T in range(2):
            A_ = acc(T * 2 + tt)
            for i in range(16):
                a(f"v_fmac_f32 v{A_+i}, v{CSR+16*T+i}, v{MR[tt][0]}")
                a(f"v_mul_f32 v{A_+i}, v{A_+i}, v{MR[tt][1]}")
            for p in range(2):
                o = OPK + ((tt * 2 + T) * 2 + p) * 4
                for j in range(4):
                    a(f"v_cvt_pk_bf16_f32 v{o+j}, v{A_+8*p+2*j}, v{A_+8*p+2*j+1}")
                a(f"buffer_store_dwordx4 {vr(o,4)}, v{V_TMP+5+tt}, s[{S_WS}:{S_WS+3}], 0 offen offset:{(4*T+2*p)*512}{OSC}")
    a.label(P + "B_EPI_DONE")
    stamp("B epi done")
    a.label(P + "_DONE")
    if fused:
        a("s_mov_b64 exec, -1")
        a(f"v_mov_b32 v{V_TMP}, {159936}")
        a(f"v_mov_b32 v{V_TMP+2}, 0"); a(f"v_mov_b32 v{V_TMP+3}, 0")
        a(f"ds_write_b64 v{V_TMP}, {vr(V_TMP+2,2)}")
        a("s_waitcnt vmcnt(0) lgkmcnt(0)")
        a("s_barrier")
        L = P + "_dn"
        a(f"s_cmp_lg_u32 s{S_WV}, 0"); a(f"s_cbranch_scc1 {L}")
        a(f"s_lshl_b32 s{S_T}, s{S_MT}, 4"); a(f"s_add_u32 s{S_T}, s{S_T}, s{S_ROLE}")
        a(f"s_lshl_b32 s{S_T}, s{S_T}, 2"); a(f"s_add_u32 s{S_T}, s{S_T}, {DONE_OFF}")
        tag_store(S_T)
        a.label(L)
        a(f"s_mov_b32 s59, s100")
        a(f"s_mov_b32 s60, s{S_MT}"); a(f"s_mov_b32 s61, s{S_ROLE}")
        return a.text(), 256, 102, 256, LDS_K1
    if timing:
        a("s_mov_b64 exec, -1")
        a("s_waitcnt vmcnt(0)")
        stamp_n[0] = 15
        stamp("end")
        a("s_memrealtime s[44:45]")
        a("s_waitcnt lgkmcnt(0)")
        a("s_lshl_b32 s46, s2, 7")
        a(f"s_lshl_b32 s47, s{S_WV}, 4")
        a("s_add_u32 s46, s46, s47")
        a(f"s_add_u32 s46, s46, {0x1320000}")
        a("v_mov_b32 v12, s46"); a("v_mov_b32 v14, s98"); a("v_mov_b32 v15, s44")
        a("s_mov_b64 s[44:45], exec"); a("s_mov_b64 exec, 1")
        a(f"global_store_dwordx2 v12, v[14:15], s[{S_PTR}:{S_PTR+1}]")
        a("s_mov_b64 exec, s[44:45]")
        a("s_cmp_eq_u32 s2, 0")
        a(f"s_cselect_b32 s40, {0x1300000}, 0")
        a("s_cmp_eq_u32 s2, 64")
        a(f"s_cselect_b32 s40, {0x1300000+4096}, s40")
        a("s_cmp_eq_u32 s40, 0")
        a(f"s_cbranch_scc1 {P}_END")
        a(f"s_lshl_b32 s41, s{S_WV}, 9")
        a("s_add_u32 s40, s40, s41")
        a(f"v_lshlrev_b32 v13, 2, v{V_L}")
        a("v_add_u32 v13, s40, v13")
        a(f"global_store_dword v13, v{V_STAMP}, s[{S_PTR}:{S_PTR+1}]")
    a.label(P + "_END")
    a("s_endpgm")
    return a.text(), 256, 102, 256, LDS_K1

if __name__ == "__main__":
    import sys
    body, vg, sg, ac, lds = gen_k1(timing=True, dis=sys.argv[2] if len(sys.argv) > 2 else '', SC={'a': ' sc0 sc1', 'b': ' sc1', 'c': '', 'd': ' sc0'}[sys.argv[3] if len(sys.argv) > 3 else 'a'])
    open(sys.argv[1], "w").write(file_text([("k1_kernel", 256, 512, lds)], [("k1_kernel", body, vg, sg, ac)]))
```

```python
from asmlib import *
from layout import *
from common import *

R = 7
STG = 20480
PRIV = R * STG
PW = 6240
LDS_K2 = PRIV + 2 * PW
NSTG = 19

def gen_k2(timing=False, pfx="K2", SC=" sc0 sc1", fused=False, PSTG=0, dis='', PRIO=0):
    a = Asm()
    P = pfx
    S_A, S_B, S_X, S_O, S_B2, S_G = 16, 20, 24, 28, 32, 36
    S_T = 40
    S_WV, S_MT, S_JN, S_W, S_HP, S_TT, S_PB = 48, 49, 50, 51, 52, 53, 54
    S_SA, S_SB, S_LB, S_NON = 56, 57, 58, 59
    S_ROT = 61
    S_T0 = 94
    V_L, V_T, V_G, V_T31, V_HF = 1, 2, 3, 4, 5
    V_A = 6
    V_B0, V_B1 = 10, 11
    V_XO, V_B2O, V_XO4, V_B2O4 = 12, 13, 14, 15
    V_LA = 16
    V_STAMP = 19
    V_TMP = 20
    V_X = 30; V_BB = 40
    V_LB1, V_LB2 = 50, 51
    V_ACC = 52
    V_FR = 72
    V_E = 112
    DA = 20
    LDF = " sc1" if fused else ""
    stamp_n = [0]
    def stamp(name):
        if not timing: return
        i = stamp_n[0]; stamp_n[0] += 1
        a(f"s_memtime s[{S_T0+2}:{S_T0+3}]")
        a("s_waitcnt lgkmcnt(0)")
        a(f"s_sub_u32 s{S_T0+2}, s{S_T0+2}, s{S_T0}")
        a(f"v_writelane_b32 v{V_STAMP}, s{S_T0+2}, {32+i if fused else i}")
    if not fused:
        a("s_cmp_ge_u32 s2, 256")
        a(f"s_cbranch_scc1 {P}_END")
    a("s_load_dwordx2 s[4:5], s[0:1], 0")
    a("s_load_dwordx2 s[6:7], s[0:1], 16")
    a("s_load_dwordx4 s[8:11], s[0:1], 64")
    a("s_load_dwordx4 s[12:15], s[0:1], 80")
    if timing and not fused:
        a(f"s_memtime s[{S_T0}:{S_T0+1}]")
        a("s_memrealtime s[98:99]")
    a(f"v_and_b32 v{V_L}, 63, v0")
    a(f"v_lshrrev_b32 v{V_TMP}, 6, v0")
    a(f"v_and_b32 v{V_T}, 15, v0")
    a(f"v_readfirstlane_b32 s{S_WV}, v{V_TMP}")
    a(f"v_bfe_u32 v{V_G}, v0, 4, 2")
    a(f"v_and_b32 v{V_T31}, 31, v0")
    a(f"v_bfe_u32 v{V_HF}, v0, 5, 1")
    a(f"s_and_b32 s{S_W}, s{S_WV}, 3")
    if fused:
        a("s_lshl_b32 s40, s60, 1")
        a("s_lshr_b32 s41, s61, 3")
        a(f"s_add_u32 s{S_MT}, s40, s41")
        a(f"s_and_b32 s{S_JN}, s61, 7")
    else:
        a("s_and_b32 s40, s2, 7")
        a("s_lshr_b32 s41, s2, 3")
        a("s_lshr_b32 s42, s40, 1")
        a("s_lshl_b32 s42, s42, 3")
        a("s_lshr_b32 s43, s41, 2")
        a(f"s_add_u32 s{S_MT}, s42, s43")
        a("s_and_b32 s40, s40, 1")
        a("s_lshl_b32 s40, s40, 2")
        a("s_and_b32 s41, s41, 3")
        a(f"s_add_u32 s{S_JN}, s40, s41")
        if '1' in dis:
            a(f"s_mov_b32 s{S_MT}, 0"); a(f"s_mov_b32 s{S_JN}, 0")
        if '2' in dis:
            a("s_lshr_b32 s41, s2, 3"); a(f"s_lshr_b32 s{S_MT}, s41, 2"); a(f"s_and_b32 s{S_JN}, s41, 3")
    a(f"s_and_b32 s40, s{S_MT}, 7")
    a("s_mul_i32 s40, s40, 7")
    a(f"s_and_b32 s41, s{S_JN}, 3")
    a("s_mul_i32 s41, s41, 14")
    a("s_add_u32 s40, s40, s41")
    a("s_sub_u32 s41, s40, 54")
    a("s_cmp_lt_u32 s40, 54")
    a(f"s_cselect_b32 s{S_ROT}, s40, s41")
    if 'F' not in dis: a(f"s_mov_b32 s{S_ROT}, 0")
    for key, mul in (('2', 12), ('3', 8), ('4', 16)):
        if 'R' + key in dis:
            a(f"s_add_u32 s40, s{S_MT}, s{S_JN}"); a("s_and_b32 s40, s40, 1"); a(f"s_mul_i32 s{S_ROT}, s40, {mul}")
    if 'Q' in dis:
        a(f"s_and_b32 s40, s{S_MT}, 1"); a(f"s_and_b32 s41, s{S_JN}, 1"); a("s_lshl_b32 s41, s41, 1"); a("s_add_u32 s40, s40, s41"); a(f"s_mul_i32 s{S_ROT}, s40, 8")
    a(f"v_lshlrev_b32 v{V_B0}, 4, v{V_L}")
    a(f"v_add_u32 v{V_B1}, 4096, v{V_B0}")
    a("s_waitcnt lgkmcnt(0)")
    if not fused:
        a(f"s_add_u32 s44, s14, {EPOCH_OFF}")
        a("s_addc_u32 s45, s15, 0")
        a(f"s_load_dword s{S_NON}, s[44:45], 0")
    LFLAG = LDS_K2
    def poll_done(mask, lab, leader, word):
        a(f"s_cmp_lg_u32 s{S_WV}, {leader}")
        a(f"s_cbranch_scc1 {lab}_F")
        a(f"v_add_u32 v{V_TMP}, {DONE_OFF}, v{V_B0}")
        a("s_mov_b32 s42, 0")
        a.label(lab)
        a(f"global_load_dwordx4 {vr(V_TMP+2,4)}, v{V_TMP}, s[14:15] sc1")
        a("s_waitcnt vmcnt(0)")
        first = True
        for e in range(4):
            if mask >> e & 1:
                if first: a(f"v_cmp_ne_u32 vcc, s{S_NON}, v{V_TMP+2+e}"); first = False
                else:
                    a(f"v_cmp_ne_u32 s[44:45], s{S_NON}, v{V_TMP+2+e}")
                    a("s_or_b64 vcc, vcc, s[44:45]")
        a("s_add_u32 s42, s42, 1")
        a("s_cmp_gt_u32 s42, 4000")
        a(f"s_cbranch_scc1 {lab}_OK")
        a(f"s_cbranch_vccz {lab}_OK")
        a("s_sleep 6")
        a(f"s_branch {lab}")
        a.label(lab + "_OK")
        a(f"v_mov_b32 v{V_TMP}, {LFLAG + 4*word}")
        a(f"v_mov_b32 v{V_TMP+1}, 1")
        a(f"ds_write_b32 v{V_TMP}, v{V_TMP+1}")
        a("s_waitcnt lgkmcnt(0)")
        a(f"s_branch {lab}_X")
        a.label(lab + "_F")
        a(f"v_mov_b32 v{V_TMP}, {LFLAG + 4*word}")
        a("s_mov_b32 s42, 0")
        a.label(lab + "_FL")
        a(f"ds_read_b32 v{V_TMP+1}, v{V_TMP}")
        a("s_waitcnt lgkmcnt(0)")
        a(f"v_readfirstlane_b32 s43, v{V_TMP+1}")
        a("s_add_u32 s42, s42, 1")
        a("s_cmp_gt_u32 s42, 2000000")
        a(f"s_cbranch_scc1 {lab}_X")
        a("s_cmp_eq_u32 s43, 1")
        a(f"s_cbranch_scc1 {lab}_X")
        a("s_sleep 1")
        a(f"s_branch {lab}_FL")
        a.label(lab + "_X")
    a(f"s_cmp_ge_u32 s{S_WV}, 4")
    a(f"s_cbranch_scc1 {P}_LOADER")
    a(f"s_lshr_b32 s{S_HP}, s{S_W}, 1")
    a(f"s_and_b32 s{S_TT}, s{S_W}, 1")
    a(f"s_mul_i32 s{S_PB}, s{S_HP}, {PW}")
    a(f"s_add_u32 s{S_PB}, s{S_PB}, {PRIV}")
    def xb_loads():
        a.srd(S_X, 4, 5, 2621440)
        a.srd(S_O, 10, 11, 2621440)
        a.srd(S_B2, 8, 9, 1280)
        a(f"s_lshl_b32 s40, s{S_MT}, 6")
        a(f"s_lshl_b32 s42, s{S_W}, 4")
        a("s_add_u32 s40, s40, s42")
        a(f"v_add_u32 v{V_TMP}, s40, v{V_T}")
        a(f"v_mul_u32_u24 v{V_XO}, 1280, v{V_TMP}")
        a(f"s_mul_i32 s42, s{S_JN}, 160")
        a(f"v_lshl_add_u32 v{V_B2O}, v{V_G}, 4, s42")
        a(f"v_add_u32 v{V_XO}, v{V_XO}, v{V_B2O}")
        a(f"v_lshlrev_b32 v{V_TMP}, 3, v{V_G}")
        a(f"v_sub_u32 v{V_XO4}, v{V_XO}, v{V_TMP}")
        a(f"v_sub_u32 v{V_B2O4}, v{V_B2O}, v{V_TMP}")
        a(f"buffer_load_dwordx4 {vr(V_X,4)}, v{V_XO}, s[{S_X}:{S_X+3}], 0 offen")
        a(f"buffer_load_dwordx4 {vr(V_X+4,4)}, v{V_XO}, s[{S_X}:{S_X+3}], 0 offen offset:64")
        a(f"buffer_load_dwordx2 {vr(V_X+8,2)}, v{V_XO4}, s[{S_X}:{S_X+3}], 0 offen offset:128")
        a(f"buffer_load_dwordx4 {vr(V_BB,4)}, v{V_B2O}, s[{S_B2}:{S_B2+3}], 0 offen")
        a(f"buffer_load_dwordx4 {vr(V_BB+4,4)}, v{V_B2O}, s[{S_B2}:{S_B2+3}], 0 offen offset:64")
        a(f"buffer_load_dwordx2 {vr(V_BB+8,2)}, v{V_B2O4}, s[{S_B2}:{S_B2+3}], 0 offen offset:128")
    a_load_fn = [None]
    def producer_loads():
        a(f"s_lshl_b32 s41, s{S_JN}, 1")
        a(f"s_add_u32 s41, s41, s{S_HP}")
        a("s_mul_i32 s42, s41, 1600")
        a.srd_off(S_G, 6, 7, "s42", 1600)
        WP = V_E
        a(f"buffer_load_dwordx4 {vr(WP,4)}, v{V_B0}, s[{S_G}:{S_G+3}], 0 offen")
        a(f"buffer_load_dwordx4 {vr(WP+4,4)}, v{V_B0}, s[{S_G}:{S_G+3}], 0 offen offset:1024")
        a("s_mul_i32 s42, s41, 6720")
        a(f"s_add_u32 s42, s42, {KVS_OFF}")
        a("s_nop 3")
        a.srd_off(S_G, 14, 15, "s42", 6720)
        KV = V_E + 8
        for i in range(7):
            a(f"buffer_load_dwordx4 {vr(KV+4*i,4)}, v{V_B0 if i < 4 else V_B1}, s[{S_G}:{S_G+3}], 0 offen offset:{(i%4)*1024}{LDF}")
        a(f"s_lshl_b32 s40, s{S_MT}, 1")
        a(f"s_add_u32 s40, s40, s{S_TT}")
        a("s_mul_i32 s40, s40, 80")
        a("s_mul_i32 s42, s41, 5")
        a("s_add_u32 s40, s40, s42")
        a("s_lshl_b32 s40, s40, 9")
        a(f"v_lshl_add_u32 v{V_TMP}, v{V_T31}, 4, s40")
        a(f"v_mul_u32_u24 v{V_TMP+1}, {3*512}, v{V_HF}")
        a(f"v_add_u32 v{V_TMP+1}, v{V_TMP+1}, v{V_TMP}")
        a("s_nop 3")
        a.srd_off(S_G, 14, 15, QBUF_OFF, QBUF_BYTES)
        QF = V_E + 36
        a(f"buffer_load_dwordx4 {vr(QF,4)}, v{V_TMP+1}, s[{S_G}:{S_G+3}], 0 offen{LDF}")
        a(f"buffer_load_dwordx4 {vr(QF+4,4)}, v{V_TMP+1}, s[{S_G}:{S_G+3}], 0 offen offset:512{LDF}")
        a(f"buffer_load_dwordx4 {vr(QF+8,4)}, v{V_TMP}, s[{S_G}:{S_G+3}], 0 offen offset:1024{LDF}")
    def producer():
        WP = V_E; KV = V_E + 8; QF = V_E + 36
        WPL, ZL, KVL = 0, 1600, 2880
        Z = V_E + 48
        for i in range(4): a(f"v_mov_b32 v{Z+i}, 0")
        a(f"v_add_u32 v{V_TMP+2}, s{S_PB}, v{V_B0}")
        a(f"ds_write_b128 v{V_TMP+2}, {vr(Z,4)} offset:{ZL}")
        a(f"ds_write_b128 v{V_TMP+2}, {vr(Z,4)} offset:{ZL+256}")
        T0 = V_TMP + 3
        a(f"v_bfe_u32 v{T0}, v{V_L}, 4, 1")
        a(f"v_lshlrev_b32 v{T0}, 2, v{T0}")
        a(f"v_and_b32 v{T0+1}, 3, v{V_L}")
        a(f"v_add_u32 v{T0}, v{T0}, v{T0+1}")
        a(f"v_and_b32 v{T0+1}, 1, v{T0}")
        a(f"v_lshrrev_b32 v{T0}, 1, v{T0}")
        a(f"v_bfe_u32 v{T0+2}, v{V_L}, 2, 2")
        a(f"v_mul_u32_u24 v{T0+2}, 40, v{T0+2}")
        a(f"v_lshl_add_u32 v{T0+2}, v{T0}, 3, v{T0+2}")
        a(f"v_mul_u32_u24 v{T0+3}, 960, v{T0+1}")
        a(f"v_add3_u32 v{T0+2}, v{T0+2}, v{T0+3}, s{S_PB}")
        AD01, AD20, AD21, AZ = V_E + 52, V_E + 53, V_E + 54, V_E + 55
        a(f"s_add_u32 s42, s{S_PB}, {ZL}")
        a(f"v_mov_b32 v{AZ}, s42")
        a(f"v_cmp_eq_u32 vcc, v{T0+1}, v{V_HF}")
        a(f"v_cmp_eq_u32 s[44:45], 0, v{T0+1}")
        a(f"v_add_u32 v{T0+3}, 640, v{T0+2}")
        a(f"v_subrev_u32 v{T0+4}, 160, v{T0+2}")
        a(f"v_cndmask_b32 v{AD01}, v{AZ}, v{T0+2}, vcc")
        a("s_and_b64 s[46:47], vcc, s[44:45]")
        a("s_andn2_b64 s[44:45], vcc, s[44:45]")
        a("s_nop 1")
        a(f"v_cndmask_b32 v{AD20}, v{AZ}, v{T0+3}, s[46:47]")
        a(f"v_cndmask_b32 v{AD21}, v{AZ}, v{T0+4}, s[44:45]")
        a(f"v_lshrrev_b32 v{T0}, 3, v{V_T31}")
        a(f"v_bfe_u32 v{T0+1}, v{V_T31}, 2, 1")
        a(f"v_and_b32 v{T0+2}, 3, v{V_T31}")
        a(f"v_lshl_add_u32 v{T0+3}, v{T0}, 2, v{T0+2}")
        a(f"v_mul_u32_u24 v{T0+3}, 80, v{T0+3}")
        a(f"v_mul_u32_u24 v{T0+4}, 1680, v{T0+1}")
        a(f"s_add_u32 s42, s{S_PB}, {KVL}")
        a(f"v_add3_u32 v{T0+3}, v{T0+3}, v{T0+4}, s42")
        AX3, AY3 = V_E + 56, V_E + 57
        a(f"v_cmp_eq_u32 vcc, v{T0+1}, v{V_HF}")
        a("s_nop 1")
        a(f"v_cndmask_b32 v{AX3}, v{AZ}, v{T0+3}, vcc")
        a(f"v_add_u32 v{T0+3}, 1280, v{T0+3}")
        a(f"v_lshl_add_u32 v{T0+5}, v{T0}, 2, v{T0+2}")
        a(f"v_cmp_ge_u32 s[44:45], 4, v{T0+5}")
        a("s_and_b64 vcc, vcc, s[44:45]")
        a("s_nop 1")
        a(f"v_cndmask_b32 v{AY3}, v{AZ}, v{T0+3}, vcc")
        a("s_waitcnt vmcnt(20)")
        a(f"ds_write_b128 v{V_TMP+2}, {vr(WP,4)} offset:{WPL}")
        a(f"v_cmp_gt_u32 vcc, 36, v{V_L}")
        a("s_and_saveexec_b64 s[44:45], vcc")
        a(f"ds_write_b128 v{V_TMP+2}, {vr(WP+4,4)} offset:{WPL+1024}")
        a("s_mov_b64 exec, s[44:45]")
        a(f"v_lshlrev_b32 v{V_TMP+1}, 3, v{V_L}")
        a(f"v_add_u32 v{V_TMP+1}, s{S_PB}, v{V_TMP+1}")
        a("s_waitcnt vmcnt(13)")
        KP = V_E + 60
        for i in range(7):
            a(f"v_cvt_pk_bf16_f32 v{KP+2*i}, v{KV+4*i}, v{KV+4*i+1}")
            a(f"v_cvt_pk_bf16_f32 v{KP+2*i+1}, v{KV+4*i+2}, v{KV+4*i+3}")
        for i in range(6):
            a(f"ds_write_b64 v{V_TMP+1}, {vr(KP+2*i,2)} offset:{KVL+i*512}")
        a(f"v_cmp_gt_u32 vcc, 36, v{V_L}")
        a("s_and_saveexec_b64 s[44:45], vcc")
        a(f"ds_write_b64 v{V_TMP+1}, {vr(KP+12,2)} offset:{KVL+6*512}")
        a("s_mov_b64 exec, s[44:45]")
        a("s_waitcnt lgkmcnt(0)")
        A2 = V_E + 76
        for xy in range(2):
            for s_ in range(3):
                for rd in range(2):
                    if s_ < 2: a(f"ds_read_b64_tr_b16 {vr(A2+(xy*3+s_)*4+2*rd,2)}, v{AD01} offset:{s_*320+rd*160+xy*32}")
                    else: a(f"ds_read_b64_tr_b16 {vr(A2+(xy*3+s_)*4+2*rd,2)}, v{AD20 if rd == 0 else AD21} offset:{xy*32}")
        PX, PY = V_E, V_E + 16
        a("s_waitcnt vmcnt(10) lgkmcnt(0)")
        for xy, PP in ((0, PX), (1, PY)):
            for s_ in range(3):
                c = "0" if s_ == 0 else vr(PP, 16)
                a(f"v_mfma_f32_32x32x16_bf16 {vr(PP,16)}, {vr(A2+(xy*3+s_)*4,4)}, {vr(QF+4*s_,4)}, {c}")
        A3 = V_FR
        for xy, AD in ((0, AX3), (1, AY3)):
            for s3 in range(5):
                a(f"ds_read_b128 {vr(A3+(xy*5+s3)*4,4)}, v{AD} offset:{s3*16}")
        VC = V_TMP + 9
        a(f"v_mov_b32 v{VC}, {hex(LOG2E)}")
        a("s_nop 7"); a("s_nop 3")
        stamp("before softmax")
        p_ = [PX + i for i in range(16)] + [PY + i for i in range(4)]
        EP, EM, PH = V_E + 32, V_E + 52, V_E + 76
        softmax20(a, p_, VC, EP, EM, PH, V_TMP + 3)
        X3, Y3 = V_E, V_E + 16
        a("s_waitcnt lgkmcnt(0)")
        for xy, PP in ((0, X3), (1, Y3)):
            for s3 in range(5):
                c = "0" if s3 == 0 else vr(PP, 16)
                a(f"v_mfma_f32_32x32x16_bf16 {vr(PP,16)}, {vr(A3+(xy*5+s3)*4,4)}, {vr(PH+4*s3,4)}, {c}")
        a(f"s_lshl_b32 s41, s{S_JN}, 1")
        a(f"s_add_u32 s41, s41, s{S_HP}")
        a("s_mul_i32 s41, s41, 5")
        a("s_add_u32 s41, s41, 216")
        a(f"s_lshl_b32 s40, s{S_MT}, 2")
        a(f"s_lshl_b32 s42, s{S_TT}, 1")
        a("s_add_u32 s40, s40, s42")
        a(f"v_lshrrev_b32 v{T0}, 4, v{V_T31}")
        a(f"v_add_u32 v{T0}, s40, v{T0}")
        a(f"v_mul_u32_u24 v{T0}, {KS*1024}, v{T0}")
        a(f"v_and_b32 v{T0+1}, 15, v{V_T31}")
        a(f"v_lshl_add_u32 v{T0}, v{T0+1}, 4, v{T0}")
        def caddr(dst, cexpr_reg):
            a(f"v_lshrrev_b32 v{T0+2}, 2, v{cexpr_reg}")
            a(f"v_and_b32 v{T0+3}, 3, v{cexpr_reg}")
            a(f"v_lshl_add_u32 v{dst}, v{T0+2}, 10, v{T0}")
            a(f"v_lshl_add_u32 v{dst}, v{T0+3}, 8, v{dst}")
        SA0, SA1, SA2 = V_E + 32, V_E + 33, V_E + 34
        a(f"v_lshl_add_u32 v{T0+4}, v{V_HF}, 1, s41")
        caddr(SA0, T0 + 4)
        a(f"v_add_u32 v{T0+4}, 1, v{T0+4}")
        caddr(SA1, T0 + 4)
        a(f"s_add_u32 s41, s41, 4")
        a(f"v_mov_b32 v{T0+4}, s41")
        caddr(SA2, T0 + 4)
        a.srd_off(S_G, 14, 15, ABUF_OFF, ABUF_BYTES)
        a("s_nop 7"); a("s_nop 7")
        a(f"v_add_f32 v{T0}, 0x358637bd, v{Y3+4}")
        a(f"v_rcp_f32 v{T0}, v{T0}")
        a("s_nop 0")
        OP = V_E + 36; C4 = V_E + 44
        for i in range(16): a(f"v_mul_f32 v{X3+i}, v{X3+i}, v{T0}")
        for i in range(4): a(f"v_mul_f32 v{Y3+i}, v{Y3+i}, v{T0}")
        for p in range(8): a(f"v_cvt_pk_bf16_f32 v{OP+p}, v{X3+2*p}, v{X3+2*p+1}")
        for p in range(2):
            a(f"v_cvt_pk_bf16_f32 v{C4+p}, v{Y3+2*p}, v{Y3+2*p+1}")
            a(f"v_cvt_pk_bf16_f32 v{C4+2+p}, v{Y3+2*p}, v{Y3+2*p+1}")
        for n in range(10, 20): a_load_fn[0](n)
        a(f"buffer_store_dwordx4 {vr(OP,4)}, v{SA0}, s[{S_G}:{S_G+3}], 0 offen{SC}")
        a(f"buffer_store_dwordx4 {vr(OP+4,4)}, v{SA1}, s[{S_G}:{S_G+3}], 0 offen{SC}")
        a(f"v_permlane32_swap_b32 v{C4}, v{C4+2}")
        a(f"v_permlane32_swap_b32 v{C4+1}, v{C4+3}")
        a("s_mov_b64 s[44:45], exec")
        a("s_mov_b32 exec_hi, 0")
        a(f"buffer_store_dwordx4 {vr(C4,4)}, v{SA2}, s[{S_G}:{S_G+3}], 0 offen{SC}")
        a("s_mov_b64 exec, s[44:45]")
        stamp("o stored")
    def ks_of(n):
        i, j = divmod(n, 4)
        if i < 13: return 4 * i + j
        if i == 13: return 52 + j if j < 2 else None
        return 54 + 4 * (i - 14) + j
    def af(n):
        sl = n % DA
        return 216 + 4 * sl if sl < 10 else 176 + 4 * (sl - 10)
    def a_load(n):
        k = ks_of(n)
        fl = " sc1" if n >= 56 else LDF
        if k is not None and k < 54:
            a(f"s_add_u32 s41, s{S_ROT}, {k}")
            a("s_sub_u32 s42, s41, 54")
            a("s_cmp_lt_u32 s41, 54")
            a("s_cselect_b32 s41, s41, s42")
            a("s_lshl_b32 s41, s41, 10")
        else:
            a(f"s_mov_b32 s41, {0x7f000000 if k is None else k*1024}")
        a(f"buffer_load_dwordx4 {vr(af(n),4)}, v{V_B0}, s[{S_A}:{S_A+3}], s41 offen{fl}")
    a(f"s_lshl_b32 s40, s{S_MT}, 2")
    a(f"s_add_u32 s40, s40, s{S_W}")
    a(f"s_mul_i32 s40, s40, {KS*1024}")
    a.srd_off(S_A, 14, 15, "s40", KS * 1024)
    producer_loads()
    a("s_barrier")
    for n in range(10): a_load(n)
    for i in range(20): a(f"v_mov_b32 v{V_ACC+i}, 0")
    a(f"v_add_u32 v{V_LB1}, 0x10000, v{V_B0}")
    a(f"v_add_u32 v{V_LB2}, 0x20000, v{V_B0}")
    LB = [V_B0, V_LB1, V_LB2]
    def fr(buf, k): return V_FR + buf * 20 + k * 4
    def reads(i, j, buf):
        base = (i % R) * STG + j * 5120
        L = []
        for nt in range(5):
            o = base + nt * 1024
            L.append(f"ds_read_b128 {vr(fr(buf,nt),4)}, v{LB[o >> 16]} offset:{o & 0xffff}")
        return L
    a_load_fn[0] = a_load
    producer()
    xb_loads()
    a("s_waitcnt lgkmcnt(0)")
    a("s_barrier")
    stamp("B0")
    NB = 4
    NK = NSTG * 4
    NO = 56
    NOI = 45
    def prime(n0):
        for jj in range(3):
            m = n0 + jj
            for x in reads(m // 4, m % 4, m % NB): a(x)
    prime(0)
    order = [("A", n) for n in range(20)] + [("st", k) for k in range(3)] + [("xb", k) for k in range(6)]
    for n in range(NK):
        i, j = divmod(n, 4)
        buf = n % NB
        m = n + 3
        if j == 1 and i < NSTG - 1:
            a("s_waitcnt lgkmcnt(0)")
            a("s_barrier")
            if timing:
                a(f"s_memtime s[{S_T0+2}:{S_T0+3}]")
                a("s_waitcnt lgkmcnt(0)")
                a(f"s_sub_u32 s{S_T0+2}, s{S_T0+2}, s{S_T0}")
                a(f"v_writelane_b32 v{V_STAMP}, s{S_T0+2}, {16+i}")
        else:
            a(f"s_waitcnt lgkmcnt({5*min(2, NK - 1 - n)})")
        if True:
            pos = order.index(("A", n))
            need = pos
            if n == 20: need = max(pos, order.index(("xb", 5)))
            a(f"s_waitcnt vmcnt({min(63, len(order) - 1 - need)})")
        rl = [] if (m >= NK or 'r' in dis) else reads(m // 4, m % 4, m % NB)
        for nt in range(5):
            if 'm' not in dis: a(f"v_mfma_f32_16x16x32_bf16 {vr(V_ACC+4*nt,4)}, {vr(fr(buf,nt),4)}, {vr(af(n),4)}, {vr(V_ACC+4*nt,4)}")
            if nt == 0:
                for x in rl[:3]: a(x)
            if nt == 1:
                for x in rl[3:]: a(x)
        nxt = [x for x in range(NK) if ("A", x) not in order]
        lim = n + DA
        todo = [x for x in nxt if x <= lim and (x < NO or n >= NOI)]
        for x in todo[:4]:
            a_load(x); order.append(("A", x))
    stamp("main end")
    Rr = V_ACC
    T = V_TMP
    a("s_waitcnt vmcnt(0)")
    SB_ = V_E
    for p in range(10):
        a(f"v_lshlrev_b32 v{T}, 16, v{V_X+p}")
        a(f"v_and_b32 v{T+1}, 0xffff0000, v{V_X+p}")
        a(f"v_lshlrev_b32 v{T+2}, 16, v{V_BB+p}")
        a(f"v_and_b32 v{T+3}, 0xffff0000, v{V_BB+p}")
        a(f"v_add_f32 v{SB_+2*p}, v{T}, v{T+2}")
        a(f"v_add_f32 v{SB_+2*p+1}, v{T+1}, v{T+3}")
    for i in range(20): a(f"v_add_f32 v{Rr+i}, v{Rr+i}, v{SB_+i}")
    O = V_E + 24
    for p in range(10): a(f"v_cvt_pk_bf16_f32 v{O+p}, v{Rr+2*p}, v{Rr+2*p+1}")
    OF = " sc1" if 'W' in dis else (" nt" if 'V' in dis else "")
    a(f"buffer_store_dwordx4 {vr(O,4)}, v{V_XO}, s[{S_O}:{S_O+3}], 0 offen{OF}")
    a(f"buffer_store_dwordx4 {vr(O+4,4)}, v{V_XO}, s[{S_O}:{S_O+3}], 0 offen offset:64{OF}")
    a(f"buffer_store_dwordx2 {vr(O+8,2)}, v{V_XO4}, s[{S_O}:{S_O+3}], 0 offen offset:128{OF}")
    if timing:
        a("s_waitcnt vmcnt(0)")
        stamp_n[0] = 31 if fused else 15
        stamp("end")
        a("s_memrealtime s[44:45]")
        a("s_waitcnt lgkmcnt(0)")
        a("s_lshl_b32 s46, s2, 7")
        a(f"s_lshl_b32 s47, s{S_WV}, 4")
        a("s_add_u32 s46, s46, s47")
        a(f"s_add_u32 s46, s46, {0x1330000}")
        a("v_mov_b32 v12, s46"); a("v_mov_b32 v14, s98"); a("v_mov_b32 v15, s44")
        a("s_mov_b64 s[44:45], exec"); a("s_mov_b64 exec, 1")
        a(f"global_store_dwordx2 v12, v[14:15], s[14:15]")
        a("s_mov_b64 exec, s[44:45]")
        a(f"s_cmp_lg_u32 s2, {0 if fused else 5}")
        a(f"s_cbranch_scc1 {P}_END")
        a(f"s_cmp_lg_u32 s{S_WV}, 0")
        a(f"s_cbranch_scc1 {P}_END")
        a(f"v_lshlrev_b32 v13, 2, v{V_L}")
        a(f"v_add_u32 v13, {0x1310000}, v13")
        a(f"global_store_dword v13, v{V_STAMP}, s[14:15]")
        a("v_mov_b32 v20, 0x1300000")
        a("global_load_dwordx4 v[24:27], v20, s[14:15]")
        a("global_load_dwordx4 v[28:31], v20, s[14:15] offset:16")
        a("global_load_dword v32, v20, s[14:15] offset:60")
        a("v_mov_b32 v21, 0x1320000")
        a("global_load_dwordx2 v[34:35], v21, s[14:15]")
        a("s_memrealtime s[44:45]")
        a("s_waitcnt vmcnt(0) lgkmcnt(0)")
        a("v_sub_u32 v36, v35, v34")
        a("v_mov_b32 v37, s98")
        a("v_sub_u32 v37, v37, v34")
        a("v_mov_b32 v38, s44")
        a("v_sub_u32 v38, v38, v34")
        a(f"v_readlane_b32 s46, v{V_STAMP}, 15")
        a("v_mov_b32 v39, s46")
        a(f"v_readlane_b32 s46, v{V_STAMP}, 2")
        a("v_mov_b32 v33, s46")
        a("v_mov_b32 v22, 0")
        a("s_mov_b64 exec, 1")
        a("global_store_dwordx4 v22, v[24:27], s[12:13]")
        a("global_store_dwordx4 v22, v[28:31], s[12:13] offset:16")
        a("global_store_dwordx4 v22, v[32:35], s[12:13] offset:32")
        a("global_store_dwordx4 v22, v[36:39], s[12:13] offset:48")
    a("s_endpgm")
    a.label(P + "_LOADER")
    if PRIO & 2: a("s_setprio 2")
    a("s_waitcnt lgkmcnt(0)")
    a(f"s_mul_i32 s40, s{S_JN}, 5120")
    a(f"s_add_u32 s41, s40, {BBUF_OFF}")
    a.srd_off(S_B, 14, 15, "s41", 0)
    a(f"s_sub_u32 s{S_B+2}, {BBUF_BYTES}, s40")
    a(f"s_mul_i32 s{S_SB}, s{S_W}, 40960")
    a(f"s_mul_i32 s{S_LB}, s{S_W}, 5120")
    def set_off(i):
        if i <= 13:
            a(f"s_add_u32 s40, s{S_W}, {4*i}")
            a(f"s_add_u32 s41, s40, s{S_ROT}")
            a("s_sub_u32 s42, s41, 54")
            a("s_cmp_lt_u32 s41, 54")
            a("s_cselect_b32 s41, s41, s42")
            a(f"s_mul_i32 s{S_SB}, s41, 40960")
            if i == 13:
                a("s_cmp_lt_u32 s40, 54")
                a(f"s_cselect_b32 s{S_SB}, s{S_SB}, 0x7f000000")
        else:
            a(f"s_add_u32 s40, s{S_W}, {54 + 4*(i-14)}")
            a(f"s_mul_i32 s{S_SB}, s40, 40960")
    def issue(i):
        set_off(i)
        base = (i % R) * STG
        a(f"s_add_u32 m0, s{S_LB}, {base}")
        a("s_nop 0")
        for nt in range(4):
            a(f"buffer_load_dwordx4 v{V_B0}, s[{S_B}:{S_B+3}], s{S_SB} offen offset:{nt*1024}{LDF} lds")
        a(f"s_add_u32 m0, s{S_LB}, {base + 4096}")
        a("s_nop 0")
        a(f"buffer_load_dwordx4 v{V_B1}, s[{S_B}:{S_B+3}], s{S_SB} offen{LDF} lds")
    a("s_barrier")
    for i in range(R):
        if i >= 3: a("s_waitcnt vmcnt(10)")
        issue(i)
    a("s_barrier")
    def poll_issue():
        L = P + "_PI"
        a(f"s_cmp_lg_u32 s{S_WV}, 4")
        a(f"s_cbranch_scc1 {L}")
        a(f"s_lshl_b32 s40, s{S_MT}, 7")
        a(f"s_add_u32 s40, s40, {OFLAG_OFF}")
        a(f"v_and_b32 v{V_TMP}, 7, v{V_L}")
        a(f"v_lshl_add_u32 v{V_TMP}, v{V_TMP}, 2, s40")
        a(f"global_load_dword v{V_TMP+1}, v{V_TMP}, s[14:15] sc1")
        a.label(L)
    def poll():
        Lp = P + "_POLL"
        a(f"s_cmp_lg_u32 s{S_WV}, 4")
        a(f"s_cbranch_scc1 {Lp}_OK")
        a("s_waitcnt vmcnt(10)")
        a(f"v_cmp_ne_u32 vcc, s{S_NON}, v{V_TMP+1}")
        a(f"s_cbranch_vccz {Lp}_OK")
        a("s_mov_b32 s42, 0")
        a.label(Lp)
        a("s_sleep 2")
        a(f"global_load_dword v{V_TMP+1}, v{V_TMP}, s[14:15] sc1")
        a("s_waitcnt vmcnt(0)")
        a(f"v_cmp_ne_u32 vcc, s{S_NON}, v{V_TMP+1}")
        a("s_add_u32 s42, s42, 1")
        a("s_cmp_gt_u32 s42, 8000")
        a(f"s_cbranch_scc1 {Lp}_OK")
        a(f"s_cbranch_vccnz {Lp}")
        a.label(Lp + "_OK")
    for i in range(NSTG - 1):
        hi = min(NSTG - 1, R - 1 + i)
        a(f"s_waitcnt vmcnt({5*(hi-(i+1))})")
        if i + 1 == 12: poll()
        a("s_barrier")
        if i + 1 == 6:
            L = P + "_NOARR"
            a(f"s_cmp_lg_u32 s{S_WV}, 4")
            a(f"s_cbranch_scc1 {L}")
            a(f"s_lshl_b32 s40, s{S_MT}, 7")
            a(f"s_lshl_b32 s41, s{S_JN}, 2")
            a("s_add_u32 s40, s40, s41")
            a(f"s_add_u32 s40, s40, {OFLAG_OFF}")
            a(f"v_mov_b32 v{V_TMP}, s40")
            a(f"v_mov_b32 v{V_TMP+1}, s{S_NON}")
            a("s_mov_b64 s[44:45], exec")
            a("s_mov_b64 exec, 1")
            a(f"global_store_dword v{V_TMP}, v{V_TMP+1}, s[14:15] sc0 sc1")
            a("s_mov_b64 exec, s[44:45]")
            a.label(L)
        if i + 1 == 10: poll_issue()
        if i + R < NSTG: issue(i + R)
    a.label(P + "_END")
    a("s_endpgm")
    return a.text(), 256, 100, 256, LDS_K2

if __name__ == "__main__":
    import sys
    body, vg, sg, ac, lds = gen_k2(timing=True)
    open(sys.argv[1], "w").write(file_text([("k2_kernel", 256, 512, lds)], [("k2_kernel", body, vg, sg, ac)]))
```

```python
import sys
from asmlib import *
import k1, k2d as k2c
NAME = "parallel_sum__linear_kernel_hedgehog__dense_activation_squared_relu__prompt_kernel"
def build(path, timing=False, OSC=' sc1', fused=False, PSTG=0, dis2='', PRIO=0):
    if not fused:
        b1, v1, s1, a1, l1 = k1.gen_k1(timing=timing, OSC=OSC, PRIO=PRIO)
        b2, v2, s2, a2, l2 = k2c.gen_k2(timing=timing, PSTG=PSTG, dis=dis2, PRIO=PRIO)
        txt = file_text([("k1_kernel", 256, 512, l1), ("k2_kernel", 256, 512, l2)], [("k1_kernel", b1, v1, s1, a1), ("k2_kernel", b2, v2, s2, a2)])
    else:
        b1, v1, s1, a1, l1 = k1.gen_k1(timing=timing, OSC=OSC, fused=True)
        b2, v2, s2, a2, l2 = k2c.gen_k2(timing=timing, fused=True, PSTG=PSTG)
        body = b1 + b2 + "K1_END:\n    s_endpgm\n"
        txt = file_text([("f_kernel", 256, 512, max(l1, l2))], [("f_kernel", body, 256, 102, 256)])
    open(path, "w").write(txt)
if __name__ == "__main__":
    import argparse
    ap = argparse.ArgumentParser()
    ap.add_argument("out"); ap.add_argument("-t", action="store_true"); ap.add_argument("-f", action="store_true"); ap.add_argument("-p", type=int, default=0); ap.add_argument("-d2", default=""); ap.add_argument("-prio", type=int, default=0)
    a = ap.parse_args()
    build(a.out, timing=a.t, fused=a.f, PSTG=a.p, dis2=a.d2, PRIO=a.prio)
```
